```python
import torch

def _softmax(x, axis=-1):
    return torch.softmax(x, dim=axis)
def _gelu(x):
    return torch.nn.functional.gelu(x, approximate="tanh")
def _silu(x):
    return torch.nn.functional.silu(x)
def _sigmoid(x):
    return torch.sigmoid(x)
def _layernorm(x, axis=-1, eps=1e-5):
    m = x.mean(dim=axis, keepdim=True)
    v = x.var(dim=axis, keepdim=True, unbiased=False)
    return (x - m) / torch.sqrt(v + eps)
def _scatter_add(tgt, idx, src, axis=0):
    return tgt.clone().index_add_(axis, idx, src)
def _segment_sum(src, seg, n):
    out = torch.zeros((n,) + src.shape[1:], dtype=src.dtype)
    return out.index_add_(0, seg, src)
def _pad(x, pw):
    flat = tuple(v for pair in reversed(pw) for v in pair)
    return torch.nn.functional.pad(x, flat)

kernel_name = 'parallel_sum__linear_kernel_hedgehog__glu_gated_reglu__prompt'

def setup_inputs():

    _w = (lambda a: (lambda t: t.to(torch.bfloat16) if t.is_floating_point() else t)(torch.as_tensor(a)))
    def _A_setup():
        B, S, D, H = 1, 2048, 640, 32
        Dh = D // H
        return {
            "x": _w((lambda *s: torch.randn(*s, dtype=torch.bfloat16) * 0.05)(B, S, D)),
            "wqkv": _w((lambda *s: torch.randn(*s, dtype=torch.bfloat16) * 0.2)(D, 3 * D)),
            "w_phi": _w((lambda *s: torch.randn(*s, dtype=torch.bfloat16) * 0.2)(H, Dh, Dh) * (Dh ** -0.5)),
            "wo": _w((lambda *s: torch.randn(*s, dtype=torch.bfloat16) * 0.05)(D, D)),
        }
    _A_in = _A_setup()

    def _B_setup():
        B, S, D, F = 1, 2048, 640, 1536
        return {
            "x": _w((lambda *s: torch.randn(*s, dtype=torch.bfloat16) * 0.05)(B, S, D)),
            "W_gate": _w((lambda *s: torch.randn(*s, dtype=torch.bfloat16) * 0.4)(D, F) * (2.0 / D) ** 0.5),
            "W_up": _w((lambda *s: torch.randn(*s, dtype=torch.bfloat16) * 0.4)(D, F) * (2.0 / D) ** 0.5),
            "W_down": _w((lambda *s: torch.randn(*s, dtype=torch.bfloat16) * 0.4)(F, D) * (1.0 / F) ** 0.5),
        }
    _B_in = _B_setup()

    return {
        "A_x": _A_in["x"],
        "A_wqkv": _A_in["wqkv"],
        "A_w_phi": _A_in["w_phi"],
        "A_wo": _A_in["wo"],
        "B_x": _B_in["x"],
        "B_W_gate": _B_in["W_gate"],
        "B_W_up": _B_in["W_up"],
        "B_W_down": _B_in["W_down"],
    }

def reference(A_x, A_wqkv, A_w_phi, A_wo, B_x, B_W_gate, B_W_up, B_W_down):
    def _A_ref(x, wqkv, w_phi, wo):
        B, S, D = x.shape
        H = 32; Dh = D // H
        qkv = (lambda x, *d: x.permute(*d))((x @ wqkv).reshape(B, S, 3, H, Dh), 2, 0, 3, 1, 4)
        q, k, v = qkv[0], qkv[1], qkv[2]
        pq = torch.einsum("bhsd,hdf->bhsf", q, w_phi)
        pk = torch.einsum("bhsd,hdf->bhsf", k, w_phi)
        phi_q = torch.concatenate([_softmax(pq, axis=-1), _softmax(-pq, axis=-1)], axis=-1)
        phi_k = torch.concatenate([_softmax(pk, axis=-1), _softmax(-pk, axis=-1)], axis=-1)
        kv = torch.einsum("bhsf,bhsd->bhfd", phi_k, v)
        z  = torch.einsum("bhsf->bhf", phi_k)
        num = torch.einsum("bhqf,bhfd->bhqd", phi_q, kv)
        den = torch.einsum("bhqf,bhf->bhq", phi_q, z)[..., None] + 1e-6
        o = num / den
        return (lambda x, *d: x.permute(*d))(o, 0, 2, 1, 3).reshape(B, S, D) @ wo

    def _B_ref(x, W_gate, W_up, W_down):
        gate = torch.einsum("bsd,df->bsf", x, W_gate)
        up = torch.einsum("bsd,df->bsf", x, W_up)
        gate = gate * (lambda x, dt: x.to(dt))(gate > 0, gate.dtype)
        h = gate * up
        return torch.einsum("bsf,fd->bsd", h, W_down)

    x = A_x
    xn = _layernorm(x, axis=-1)
    return x + _A_ref(xn, A_wqkv, A_w_phi, A_wo) + _B_ref(xn, B_W_gate, B_W_up, B_W_down)
```

```python
class R:
    __slots__ = ("kind", "idx", "n")

    def __init__(self, kind, idx, n=1):
        self.kind, self.idx, self.n = kind, idx, n

    def __str__(self):
        if self.n == 1:
            return f"{self.kind}{self.idx}"
        return f"{self.kind}[{self.idx}:{self.idx + self.n - 1}]"

    __repr__ = __str__

    def regs(self):
        return [(self.kind, self.idx + i) for i in range(self.n)]

    def __getitem__(self, i):
        if isinstance(i, slice):
            a = i.start or 0
            b = self.n if i.stop is None else i.stop
            assert 0 <= a < b <= self.n, (self, i)
            return R(self.kind, self.idx + a, b - a)
        assert 0 <= i < self.n, (self, i)
        return R(self.kind, self.idx + i, 1)


def V(i, n=1):
    return R("v", i, n)


def A(i, n=1):
    return R("a", i, n)


def S(i, n=1):
    return R("s", i, n)


VCC = "vcc"
EXEC = "exec"
M0 = "m0"
SPECIAL = {"vcc": [("x", "vcc")], "exec": [("x", "exec")], "m0": [("x", "m0")]}


def regs_of(o):
    if isinstance(o, R):
        return o.regs()
    if isinstance(o, str):
        s = o.lstrip("-")
        if s in SPECIAL:
            return SPECIAL[s]
    if isinstance(o, Neg):
        return regs_of(o.r)
    return []


class Neg:
    def __init__(self, r):
        self.r = r

    def __str__(self):
        return f"-{self.r}"


TRANS = {"v_exp_f32", "v_rcp_f32", "v_rsq_f32", "v_log_f32", "v_sqrt_f32"}
DOTS = {"v_dot2c_f32_bf16", "v_dot2_f32_bf16"}
RMW = {"v_fmac_f32", "v_dot2c_f32_bf16"}
MFMA_PASSES = {"v_mfma_f32_32x32x16_bf16": 8, "v_mfma_f32_16x16x32_bf16": 4}


class I:
    __slots__ = ("op", "text", "rd", "wr", "cls", "tag", "meta")

    def __init__(self, op, text, rd, wr, cls, tag=None, meta=None):
        self.op, self.text, self.rd, self.wr, self.cls, self.tag, self.meta = op, text, rd, wr, cls, tag, meta


def fmt(o):
    if isinstance(o, float):
        import struct
        return hex(struct.unpack("<I", struct.pack("<f", o))[0])
    if isinstance(o, int):
        return str(o) if -16 <= o <= 64 else hex(o & 0xFFFFFFFF)
    return str(o)


def mk(op, *ops, mods="", tag=None):
    text = op + (" " + ", ".join(fmt(o) for o in ops) if ops else "") + ((" " + mods) if mods else "")
    rd, wr = [], []
    meta = None
    if op.startswith("v_mfma"):
        cls = "mfma"
        wr = regs_of(ops[0])
        rd = regs_of(ops[1]) + regs_of(ops[2]) + regs_of(ops[3])
        meta = dict(passes=MFMA_PASSES[op], d=set(regs_of(ops[0])), ab=set(regs_of(ops[1]) + regs_of(ops[2])),
                    c=set(regs_of(ops[3])), cfirst=(regs_of(ops[3]) or [None])[0], clen=len(regs_of(ops[3])))
    elif op.startswith("v_cmp"):
        cls = "valu"
        wr = regs_of(ops[0])
        for o in ops[1:]:
            rd += regs_of(o)
    elif op.startswith("v_permlane"):
        cls = "valu"
        wr = regs_of(ops[0]) + regs_of(ops[1])
        rd = list(wr)
    elif op.startswith("v_"):
        cls = "valu"
        wr = regs_of(ops[0])
        for o in ops[1:]:
            rd += regs_of(o)
        if op in RMW:
            rd += wr
        if op.startswith("v_cndmask") and len(ops) == 3:
            rd += SPECIAL["vcc"]
    elif op.startswith("ds_read"):
        cls = "ds"
        wr = regs_of(ops[0])
        rd = regs_of(ops[1])
        meta = dict(load=True)
    elif op.startswith("ds_"):
        cls = "ds"
        for o in ops:
            rd += regs_of(o)
        meta = dict(load=False)
    elif op.startswith("buffer_load"):
        cls = "vmem"
        if " lds" in (" " + mods):
            for o in ops:
                rd += regs_of(o)
            rd += SPECIAL["m0"]
            meta = dict(load=False, dma=True)
        else:
            wr = regs_of(ops[0])
            for o in ops[1:]:
                rd += regs_of(o)
            meta = dict(load=True)
    elif op.startswith("buffer_store") or op.startswith("buffer_atomic"):
        cls = "vmem"
        for o in ops:
            rd += regs_of(o)
        meta = dict(load=False, store=True, data=set(regs_of(ops[0])), wide=op.endswith("x4") or op.endswith("x3"))
    elif op.startswith("global_load"):
        cls = "vmem"
        wr = regs_of(ops[0])
        for o in ops[1:]:
            rd += regs_of(o)
        meta = dict(load=True)
    elif op in ("s_barrier", "s_endpgm", "s_setprio", "s_sleep"):
        cls = "misc"
    elif op == "s_nop":
        cls = "nop"
        meta = dict(n=ops[0] + 1)
    elif op.startswith("s_cbranch") or op == "s_branch":
        cls = "branch"
        if "exec" in op:
            rd = SPECIAL["exec"]
        if "vcc" in op:
            rd = SPECIAL["vcc"]
    elif op.startswith("s_load"):
        cls = "smem"
        wr = regs_of(ops[0])
        rd = regs_of(ops[1])
    elif op.startswith("s_cmp") or op.startswith("s_bitcmp"):
        cls = "salu"
        for o in ops:
            rd += regs_of(o)
    elif op.startswith("s_and_saveexec"):
        cls = "salu"
        wr = regs_of(ops[0]) + SPECIAL["exec"]
        rd = regs_of(ops[1]) + SPECIAL["exec"]
    elif op.startswith("s_"):
        cls = "salu"
        wr = regs_of(ops[0])
        for o in ops[1:]:
            rd += regs_of(o)
    else:
        raise ValueError(op)
    if cls in ("valu", "mfma", "ds", "vmem"):
        rd = rd + SPECIAL["exec"]
    return I(op, text, rd, wr, cls, tag, meta)


class Prog:
    def __init__(self):
        self.ins = []

    def add(self, i):
        self.ins.append(i)
        return i

    def e(self, op, *ops, mods="", tag=None):
        return self.add(mk(op, *ops, mods=mods, tag=tag))

    def label(self, name):
        self.add(I("label", name + ":", [], [], "label"))

    def comment(self, text):
        self.add(I("comment", "; " + text, [], [], "comment"))

    def raw(self, text):
        self.add(I("raw", text, [], [], "comment"))

    stamps_on = False
    STAMP_S0 = 64

    def stamp(self, name, real=False):
        if not self.stamps_on:
            return
        if not hasattr(self, "stamp_names"):
            self.stamp_names = []
        k = self.STAMP_S0 + 2 * len(self.stamp_names)
        assert k + 1 <= 101
        self.stamp_names.append(name)
        op = "s_memrealtime" if real else "s_memtime"
        self.add(I(op, f"{op} s[{k}:{k + 1}]", [], [], "misc"))

    def dump_stamps(self, srd, soff_reg, vtmp):
        if not self.stamps_on:
            return
        self.wait_smem()
        self.wait_vm0()
        self.e("s_mov_b64", "exec", 1)
        for n in range(len(self.stamp_names)):
            self.e("v_mov_b32", vtmp[0], S(self.STAMP_S0 + 2 * n))
            self.e("v_mov_b32", vtmp[1], 4 * n)
            self.e("buffer_store_dword", vtmp[0], vtmp[1], srd, soff_reg, mods="offen")
            self.wait_vm0()
        self.e("s_mov_b64", "exec", -1)

    def wait_tag(self, tag):
        self.add(I("wait_tag", "", [], [], "pseudo", tag))

    def wait_vm0(self):
        self.add(I("wait_vm0", "", [], [], "pseudo"))

    def wait_lgkm0(self):
        self.add(I("wait_lgkm0", "", [], [], "pseudo"))

    def wait_smem(self):
        self.add(I("wait_smem", "", [], [], "pseudo"))

    def touch(self, *regs):
        rd = []
        for r in regs:
            rd += regs_of(r)
        self.add(I("touch", "", rd, [], "pseudo"))

    def fork_save(self):
        self.add(I("fork_save", "", [], [], "pseudo"))

    def fork_restore(self):
        self.add(I("fork_restore", "", [], [], "pseudo"))

    def region_begin(self):
        self.add(I("region_begin", "", [], [], "pseudo"))

    def region_end(self):
        self.add(I("region_end", "", [], [], "pseudo"))


def wait_instr(vm=None, lgkm=None):
    parts = []
    if vm is not None:
        assert 0 <= vm <= 63
        parts.append(f"vmcnt({vm})")
    if lgkm is not None:
        assert 0 <= lgkm <= 15
        parts.append(f"lgkmcnt({lgkm})")
    return I("s_waitcnt", "s_waitcnt " + " ".join(parts), [], [], "wait")


def insert_waits(ins):
    out = []
    vm_n = 0
    lg_n = 0
    vm_done = 0
    lg_done = 0
    pend = {}
    tags = {}
    stack = []
    stats = dict(vm=0, lg=0)

    def need(kind, seq):
        nonlocal vm_done, lg_done
        if kind == "vm":
            if seq < vm_done:
                return None
            n = min(63, vm_n - seq - 1)
            vm_done = vm_n - n
            stats["vm"] += 1
            return wait_instr(vm=n)
        if seq < lg_done:
            return None
        n = min(15, lg_n - seq - 1)
        lg_done = lg_n - n
        stats["lg"] += 1
        return wait_instr(lgkm=n)

    for i in ins:
        if i.cls == "pseudo":
            if i.op == "wait_tag":
                w = need("vm", tags[i.tag])
                if w:
                    out.append(w)
            elif i.op == "wait_vm0":
                out.append(wait_instr(vm=0))
                vm_done = vm_n
            elif i.op == "wait_lgkm0":
                if lg_done < lg_n:
                    out.append(wait_instr(lgkm=0))
                lg_done = lg_n
            elif i.op == "wait_smem":
                out.append(wait_instr(lgkm=0))
                lg_done = lg_n
            elif i.op == "touch":
                worst = {}
                for r in i.rd:
                    q = pend.get(r)
                    if q and (q[0] not in worst or q[1] > worst[q[0]]):
                        worst[q[0]] = q[1]
                for k, s_ in worst.items():
                    w = need(k, s_)
                    if w:
                        out.append(w)
                for r in i.rd:
                    pend.pop(r, None)
            elif i.op == "fork_save":
                stack.append((vm_n, lg_n, vm_done, lg_done, dict(pend), dict(tags)))
            elif i.op == "fork_restore":
                vm_n, lg_n, vm_done, lg_done, pend, tags = stack.pop()
                out.append(mk("s_nop", 11))
            elif i.op == "region_begin":
                stack.append((vm_n, lg_n, vm_done, lg_done, dict(pend)))
                out.append(mk("s_nop", 11))
            elif i.op == "region_end":
                assert vm_done == vm_n or vm_n == stack[-1][0], "region must drain vmcnt"
                assert lg_done == lg_n or lg_n == stack[-1][1], "region must drain lgkmcnt"
                vm_n, lg_n, vm_done, lg_done, pend = stack.pop()
                out.append(mk("s_nop", 11))
            continue
        worst = {}
        for r in list(i.rd) + list(i.wr):
            p = pend.get(r)
            if p:
                if p[0] not in worst or p[1] > worst[p[0]]:
                    worst[p[0]] = p[1]
        for k, s in worst.items():
            w = need(k, s)
            if w:
                out.append(w)
        for r in list(i.rd) + list(i.wr):
            pend.pop(r, None)
        out.append(i)
        if i.cls == "vmem":
            if i.tag is not None:
                tags[i.tag] = vm_n
            if i.meta.get("load"):
                for r in i.wr:
                    pend[r] = ("vm", vm_n)
            vm_n += 1
        elif i.cls == "ds":
            if i.meta.get("load"):
                for r in i.wr:
                    pend[r] = ("lg", lg_n)
            lg_n += 1
    return out, stats


def isv(r):
    return r[0] in ("v", "a")


def insert_nops(ins):
    out = []
    pos = 0
    valu_w = {}
    trans_w = {}
    dot_w = {}
    sgpr_w = {}
    mfma_w = {}
    mfma_c = {}
    store_d = {}
    m0_w = -100
    exec_valu_w = -100
    nnop = 0

    for i in ins:
        if i.cls in ("label", "comment"):
            out.append(i)
            continue
        req = pos

        def after(p, n):
            nonlocal req
            req = max(req, p + 1 + n)

        if i.cls == "mfma":
            m = i.meta
            for r in i.rd:
                if r in valu_w:
                    after(valu_w[r], 2)
            for r in m["ab"]:
                if r in mfma_w:
                    after(mfma_w[r][0], {4: 8, 8: 12}[mfma_w[r][1]])
            for r in m["c"]:
                if r in mfma_w:
                    p, ps, first, ln = mfma_w[r]
                    if first == m["cfirst"] and ln == m["clen"] and ps == m["passes"]:
                        continue
                    after(p, {4: 6, 8: 10}[ps])
            for r in m["d"]:
                if r in mfma_w and r not in m["c"]:
                    after(mfma_w[r][0], {4: 6, 8: 10}[mfma_w[r][1]])
            after(exec_valu_w, 4)
        elif i.cls in ("valu", "ds", "vmem"):
            for r in list(i.rd) + list(i.wr):
                if r in mfma_w:
                    after(mfma_w[r][0], {4: 8, 8: 12}[mfma_w[r][1]])
            if i.cls == "valu":
                for r in i.wr:
                    if r in mfma_c:
                        after(mfma_c[r][0], {4: 3, 8: 7}[mfma_c[r][1]])
                    if r in store_d:
                        after(store_d[r], 2)
                for r in i.rd:
                    if r in trans_w and i.op not in TRANS:
                        after(trans_w[r], 1)
                    if r in dot_w and not (i.op in DOTS and r in i.wr):
                        after(dot_w[r], 3)
                    if r in sgpr_w:
                        after(sgpr_w[r], 2)
                for r in i.wr:
                    if r in dot_w and i.op not in DOTS:
                        after(dot_w[r], 3)
                if i.op.startswith("v_permlane"):
                    for r in i.rd:
                        if r in valu_w:
                            after(valu_w[r], 2)
                if i.op.startswith("v_readfirstlane") or i.op.startswith("v_readlane"):
                    for r in i.rd:
                        if r in valu_w:
                            after(valu_w[r], 1)
            else:
                for r in i.wr:
                    if r in store_d:
                        after(store_d[r], 1)
                if i.cls == "vmem":
                    for r in i.rd:
                        if r in sgpr_w:
                            after(sgpr_w[r], 5)
                    if i.meta.get("dma"):
                        after(m0_w, 1)
        elif i.cls in ("salu", "branch", "smem"):
            for r in i.rd:
                if r in sgpr_w:
                    after(sgpr_w[r], 4)
        while pos < req:
            n = min(req - pos, 16)
            out.append(mk("s_nop", n - 1))
            pos += n
            nnop += n
        out.append(i)
        if i.cls == "mfma":
            m = i.meta
            first = min(m["d"])
            for r in m["d"]:
                mfma_w[r] = (pos, m["passes"], first, len(m["d"]))
                valu_w.pop(r, None)
            for r in m["c"]:
                mfma_c[r] = (pos, m["passes"])
        elif i.cls == "valu":
            for r in i.wr:
                if isv(r):
                    valu_w[r] = pos
                    mfma_w.pop(r, None)
                    if i.op in TRANS:
                        trans_w[r] = pos
                    else:
                        trans_w.pop(r, None)
                    if i.op in DOTS:
                        dot_w[r] = pos
                    else:
                        dot_w.pop(r, None)
                else:
                    sgpr_w[r] = pos
                    if r == ("x", "exec"):
                        exec_valu_w = pos
        elif i.cls == "salu":
            for r in i.wr:
                sgpr_w.pop(r, None)
                if r == ("x", "m0"):
                    m0_w = pos
        elif i.cls == "vmem" and i.meta.get("store") and i.meta.get("wide"):
            for r in i.meta["data"]:
                store_d[r] = pos
        if i.cls in ("ds", "vmem"):
            for r in i.wr:
                mfma_w.pop(r, None)
                valu_w.pop(r, None)
        pos += i.meta["n"] if i.cls == "nop" else 1
    return out, nnop


def finalize(prog, verbose=None):
    ins, st = insert_waits(prog.ins)
    ins, nn = insert_nops(ins)
    if verbose:
        n = sum(1 for i in ins if i.cls not in ("label", "comment"))
        print(f"{verbose}: {n} instructions, waits vm={st['vm']} lgkm={st['lg']}, nop states={nn}")
    return "\n".join(i.text for i in ins)


KD = """
.section .rodata,"a"
.p2align 6
.amdhsa_kernel {name}
  .amdhsa_next_free_vgpr {vgpr}
  .amdhsa_next_free_sgpr 102
  .amdhsa_accum_offset {acc}
  .amdhsa_group_segment_fixed_size 0
  .amdhsa_kernarg_size 88
  .amdhsa_user_sgpr_count 2
  .amdhsa_user_sgpr_kernarg_segment_ptr 1
  .amdhsa_system_sgpr_workgroup_id_x 1
.end_amdhsa_kernel
"""


def kernel_text(name, body, vgpr=512, acc=256):
    return (f".text\n.globl {name}\n.p2align 8\n.type {name},@function\n{name}:\n" + body + "\n" +
            KD.format(name=name, vgpr=vgpr, acc=acc))
```

```python
from asmlib import V, A, S, Neg, Prog, mk
import layout as L

NAME = "l1_proj_kernel"
LDS_BYTES = 163840
SLOT = 20480
XSTG, XW = 40960, 28672
PTB = 155648
ZB = PTB + 3584
PKB, VB = 102400, 143360
WTS = 143360
LOG2E = 1.4426950408889634

sW, sRB, sP, sROT = S(52), S(53), S(54), S(55)
sSRC, sT0, sT1, sT2, sT3 = S(56), S(57), S(58), S(59), S(60)
sMASK, sL2E = S(61), S(62)
XS, WQ, WU, WS, PH, WD, DBG = (S(k, 4) for k in (24, 28, 32, 36, 40, 44, 48))
sROTQ, sROTU = S(20), S(21)
sHB, sWREG = S(22), [S(16), S(17), S(18)]
sONE = S(19)
lane, l16, l8, l4 = V(1), V(2), V(3), V(4)
RSTD, CEN = V(21), V(22)
XR = lambda s: V(96 + 4 * s, 4)
PKD = V(24, 48)
EP = V(72, 20)
TMP = [V(23), V(92), V(93), V(94), V(95)]
ACC_A, ACC_B, FB0, PHI0 = 0, 80, 160, 192

DEF = dict(rot=True, st=" sc1", q1x=4, q1y=5, q2x=4, q2y=3, q3y=4, depth=6, kv_at=150, stamps=False)


def v_(op, *a, **k):
    return ("v", [mk(op, *a, **k)])


def n_(*ins):
    return ("n", list(ins))


def srd(p, k, base, nbytes):
    p.e("s_mov_b32", k[0], base[0])
    p.e("s_mov_b32", k[1], base[1])
    p.e("s_mov_b32", k[2], nbytes)
    p.e("s_mov_b32", k[3], 0x20000)


class Pass:
    def __init__(self, name, kind, nt, acc, pitch, cpr, ndata, srdreg, srcpitch, rot, voff, pat, wreg, col0):
        self.name, self.kind, self.nt, self.acc, self.pitch, self.cpr = name, kind, nt, acc, pitch, cpr
        self.ndata, self.srd, self.srcpitch, self.rot = ndata, srdreg, srcpitch, rot
        self.voff, self.pat, self.wreg, self.col0 = voff, pat, wreg, col0
        self.ndma = len(voff)

    def reads(self, sl, t):
        P = self.pitch
        if self.kind == "U":
            return [(self.pat[rd], 16 * sl * P + 32 * t) for rd in range(2)]
        return [(self.pat[0], (16 * sl + 4 * rd) * P + 32 * t) for rd in range(2)]


def div_magic(n):
    return {20: 3277, 12: 5462, 10: 6554, 6: 10923}[n]


def setup_pass(p, ps, slot0, t):
    e = p.e
    P = ps.pitch
    if ps.kind == "U":
        e("s_lshr_b32", sT0, sW, 1)
        e("s_mul_i32", sT0, sT0, 64 * P)
        e("s_and_b32", sT1, sW, 1)
        e("s_mul_i32", sT1, sT1, 32 * P)
        e("s_add_u32", ps.wreg, sT0, sT1)
        e("s_lshr_b32", sT2, sW, 1)
        e("s_lshl_b32", sT2, sT2, 2)
        e("s_and_b32", sT1, sW, 1)
        e("s_lshl_b32", sT1, sT1, 5)
    else:
        e("s_mul_i32", ps.wreg, sW, 16 * P)
        e("s_lshl_b32", sT1, sW, 4)
    if ps.kind == "U":
        e("s_mul_i32", sT3, sP, 384)
        e("s_add_u32", sT3, sT3, 2 * ps.col0)
    else:
        e("s_mul_i32", sT3, sP, 160)
    for j in range(ps.ndma):
        q, row, c = t[0], t[1], t[2]
        e("v_add_u32", q, 64 * j, lane)
        e("v_mul_u32_u24", row, div_magic(ps.cpr), q)
        e("v_lshrrev_b32", row, 16, row)
        e("v_mul_u32_u24", c, ps.cpr, row)
        e("v_sub_u32", c, q, c)
        if ps.kind == "kv":
            seg = t[3]
            e("v_mul_u32_u24", seg, 52, c)
            e("v_lshrrev_b32", seg, 8, seg)
            e("v_mul_u32_u24", q, 5, seg)
            e("v_sub_u32", c, c, q)
            e("v_lshlrev_b32", c, 4, c)
            e("v_and_b32", q, 1, seg)
            e("v_mul_u32_u24", q, 1280, q)
            e("v_add_u32", c, c, q)
            e("v_lshrrev_b32", seg, 1, seg)
            e("v_mul_u32_u24", seg, 80, seg)
            e("v_add3_u32", c, c, seg, sT3)
            e("v_add_u32", c, 1280, c)
        elif ps.kind == "q":
            hf = t[3]
            e("v_mul_u32_u24", hf, 43, c)
            e("v_lshrrev_b32", hf, 8, hf)
            e("v_mul_u32_u24", q, 6, hf)
            e("v_sub_u32", c, c, q)
            e("v_min_u32", c, 4, c)
            e("v_lshlrev_b32", c, 4, c)
            e("v_mul_u32_u24", hf, 80, hf)
            e("v_add3_u32", c, c, hf, sT3)
        else:
            e("v_min_u32", c, ps.ndata - 1, c)
            e("v_lshlrev_b32", c, 4, c)
            e("v_add_u32", c, sT3, c)
            e("v_xor_b32", row, sT2, row)
        e("v_add_u32", row, sT1, row)
        e("v_mul_u32_u24", row, ps.srcpitch, row)
        e("v_add_u32", row, row, c)
        comp = 1024 * (j % 4)
        if comp:
            e("v_subrev_u32", ps.voff[j], comp, row)
        else:
            e("v_mov_b32", ps.voff[j], row)
    G1, kh, rho, pp = t[0], t[1], t[2], t[3]
    e("s_mov_b32", sT0, slot0)
    slot0 = sT0
    e("v_bfe_u32", G1, lane, 4, 1)
    e("v_lshrrev_b32", kh, 5, lane)
    e("v_bfe_u32", rho, lane, 2, 2)
    e("v_and_b32", pp, 3, lane)
    e("v_lshl_add_u32", rho, kh, 3, rho)
    e("v_mul_u32_u24", rho, P, rho)
    if ps.kind == "U":
        e("v_lshl_add_u32", rho, pp, 3, rho)
        e("v_mul_u32_u24", kh, 68 * P, G1)
        e("v_add3_u32", ps.pat[0], rho, kh, slot0)
        e("v_mul_u32_u24", kh, 60 * P, G1)
        e("v_add_u32", kh, 4 * P, kh)
        e("v_add3_u32", ps.pat[1], rho, kh, slot0)
    else:
        half = 160 if ps.kind == "kv" else 96
        e("v_and_b32", kh, 1, pp)
        e("v_mul_u32_u24", kh, half, kh)
        e("v_add_u32", rho, rho, kh)
        e("v_lshrrev_b32", pp, 1, pp)
        e("v_lshl_add_u32", pp, G1, 1, pp)
        e("v_lshl_add_u32", rho, pp, 3, rho)
        e("v_add_u32", ps.pat[0], slot0, rho)


def dma_atoms(ps, slot, first_of_pass, tag):
    out = []
    for j in range(ps.ndma):
        ins = []
        if j == 0 and first_of_pass:
            ins.append(mk("s_mov_b32", sSRC, ps.rot))
        ins.append(mk("s_add_u32", "m0", ps.wreg, slot * SLOT + (4096 if j == 4 else 0)))
        last = j == ps.ndma - 1
        ins.append(mk("buffer_load_dwordx4", ps.voff[j], ps.srd, sSRC, mods=f"offen offset:{1024 * (j % 4)} lds",
                      tag=tag if last else None))
        if last:
            step = 64 * ps.srcpitch
            ins.append(mk("s_add_u32", sSRC, sSRC, step))
            ins.append(mk("s_cmp_eq_u32", sSRC, 10 * step))
            ins.append(mk("s_cselect_b32", sSRC, 0, sSRC))
        out.append(ins)
    return out


def center_atoms(s, t0, t1):
    out = []
    for r in range(4):
        x = XR(s)[r]
        out += [v_("v_lshlrev_b32", t0, 16, x), v_("v_and_b32", t1, sMASK, x),
                v_("v_fma_f32", t0, t0, RSTD, CEN), v_("v_fma_f32", t1, t1, RSTD, CEN),
                v_("v_cvt_pk_bf16_f32", x, t0, t1)]
    return out


PHI_FRAGS = [(0, 0), (0, 1), (0, 2), (1, 0), (1, 1), (1, 2), (1, 3), (1, 4), (2, 2), (2, 3), (2, 4)]
PHI_CONST = {(0, 0): 0, (1, 0): 32, (1, 1): 792, (2, 1): 824}


def phi_addr_setup(p, regs, t):
    e = p.e
    kh, jj, par, b0 = t[0], t[1], t[2], t[3]
    e("v_lshrrev_b32", kh, 5, lane)
    e("v_bfe_u32", jj, lane, 4, 1)
    e("v_bfe_u32", par, lane, 1, 1)
    e("v_lshl_add_u32", jj, jj, 1, par)
    e("v_mul_u32_u24", b0, 1600, kh)
    e("v_bfe_u32", par, lane, 2, 2)
    e("v_mul_u32_u24", par, 40, par)
    e("v_add_u32", b0, b0, par)
    e("v_lshl_add_u32", b0, jj, 3, b0)
    e("v_add_u32", b0, PTB, b0)
    e("v_and_b32", par, 1, lane)
    e("v_mov_b32", regs[4], ZB)
    e("v_cmp_eq_u32", "vcc", par, kh)
    e("v_cndmask_b32", regs[0], regs[4], b0, "vcc")
    e("v_cmp_eq_u32", "vcc", 0, jj)
    e("v_cndmask_b32", regs[1], regs[4], regs[0], "vcc")
    e("v_cmp_le_u32", "vcc", 1, jj)
    e("v_cndmask_b32", regs[2], regs[4], regs[0], "vcc")
    e("v_cmp_ge_u32", "vcc", 1, jj)
    e("v_cndmask_b32", regs[3], regs[4], regs[0], "vcc")


def phi_read_atoms(regs):
    out = []
    sel = {(0, 0): regs[0], (1, 0): regs[1], (1, 1): regs[2], (2, 1): regs[3]}
    for idx, (tp, c) in enumerate(PHI_FRAGS):
        for rd in range(2):
            R0 = 8 * c + 4 * rd
            hl = 1 if R0 >= 20 else 0
            d0 = R0 - 20 * hl
            dst = A(PHI0 + 4 * idx + 2 * rd, 2)
            if (tp, hl) in sel:
                out.append(n_(mk("ds_read_b64_tr_b16", dst, sel[(tp, hl)], mods=f"offset:{PHI_CONST[(tp, hl)] + 40 * d0}")))
            else:
                out.append(n_(mk("ds_read_b64_tr_b16", dst, regs[4])))
    return out


def pack_atoms(acc, n, dst, t0, t1):
    out = []
    for u in range(n):
        a, b = (t0, t1) if u % 2 == 0 else (TMP[3], TMP[4])
        out += [v_("v_accvgpr_read_b32", a, A(acc + 2 * u)), v_("v_accvgpr_read_b32", b, A(acc + 2 * u + 1)),
                v_("v_cvt_pk_bf16_f32", dst[u], a, b)]
    return out


def feature_mfma_atoms(kp):
    out = []
    seen = set()
    for idx, (tp, c) in enumerate(PHI_FRAGS):
        d = PKD[16 * tp:16 * tp + 16]
        out.append(("m", [mk("v_mfma_f32_32x32x16_bf16", d, A(PHI0 + 4 * idx, 4), kp[4 * c:4 * c + 4], d if tp in seen else 0)]))
        seen.add(tp)
    return out


def softmax_atoms(hh):
    pv = [PKD[20 * hh + i] for i in range(20)]
    mx, mn, s0, s1 = TMP[0], TMP[1], TMP[2], TMP[3]
    s2 = TMP[4]
    out = [v_("v_max3_f32", mx, pv[0], pv[1], pv[2]), v_("v_min3_f32", mn, pv[0], pv[1], pv[2])]
    for i in range(3, 19, 2):
        out += [v_("v_max3_f32", mx, mx, pv[i], pv[i + 1]), v_("v_min3_f32", mn, mn, pv[i], pv[i + 1])]
    out += [v_("v_max_f32", mx, mx, pv[19]), v_("v_min_f32", mn, mn, pv[19])]
    out += [v_("v_mul_f32", mx, sL2E, mx), v_("v_mul_f32", mn, sL2E, mn)]
    for i in range(20):
        out.append(v_("v_fma_f32", EP[i], pv[i], sL2E, Neg(mx)))
        out.append(v_("v_fma_f32", pv[i], Neg(pv[i]), sL2E, mn))
    for i in range(20):
        out.append(v_("v_exp_f32", EP[i], EP[i]))
        out.append(v_("v_exp_f32", pv[i], pv[i]))
    out += [v_("v_add_f32", s0, EP[0], EP[1]), v_("v_add_f32", s1, pv[0], pv[1]),
            v_("v_add_f32", mx, EP[2], EP[3]), v_("v_add_f32", mn, pv[2], pv[3])]
    for i in range(4, 20, 2):
        out += [v_("v_add_f32", s0, s0, EP[i]), v_("v_add_f32", s1, s1, pv[i]),
                v_("v_add_f32", mx, mx, EP[i + 1]), v_("v_add_f32", mn, mn, pv[i + 1])]
    out += [v_("v_add_f32", s0, s0, mx), v_("v_add_f32", s1, s1, mn)]
    out += [v_("v_rcp_f32", s0, s0), v_("v_rcp_f32", s1, s1)]
    for i in range(20):
        out.append(v_("v_mul_f32", EP[i], s0, EP[i]))
    for i in range(20):
        out.append(v_("v_mul_f32", pv[i], s1, pv[i]))
    for u in range(10):
        out.append(v_("v_cvt_pk_bf16_f32", EP[u], EP[2 * u], EP[2 * u + 1]))
    for u in range(10):
        out.append(v_("v_cvt_pk_bf16_f32", EP[10 + u], pv[2 * u], pv[2 * u + 1]))
    return out


def glu_tile_atoms(acc, dst, G, U):
    out = []
    for i in range(8):
        out.append(v_("v_accvgpr_read_b32", G[i], A(acc + i)))
    for i in range(8):
        out.append(v_("v_accvgpr_read_b32", U[i], A(acc + 8 + i)))
    for i in range(8):
        out.append(v_("v_max_f32", G[i], 0, G[i]))
    for i in range(8):
        out.append(v_("v_mul_f32", U[i], G[i], U[i]))
    for q in range(4):
        out.append(v_("v_cvt_pk_bf16_f32", dst[q], U[2 * q], U[2 * q + 1]))
    return out


def h_store(data, blk, second, st, wide):
    off = blk + (8 * 6144 if second else 0)
    ins = [mk("s_add_u32", sT0, sHB, off)]
    if wide:
        ins.append(mk("buffer_store_dwordx4", data, l16, WS, sT0, mods="offen" + st))
    else:
        ins.append(mk("buffer_store_dwordx2", data, l8, WS, sT0, mods="offen" + st))
    return n_(*ins)


def glu_atoms(acc, groups, st, regs):
    G, U, PA, PB = regs
    out = []
    for kind, t, blk in groups:
        out += glu_tile_atoms(acc + 16 * t, PA, G, U)
        if kind == "pair":
            out += glu_tile_atoms(acc + 16 * (t + 1), PB, G, U)
            for q in range(4):
                out.append(v_("v_permlane16_swap_b32", PA[q], PB[q]))
            out.append(h_store(PA, blk, False, st, True))
            out.append(h_store(PB, blk, True, st, True))
        else:
            out.append(v_("v_permlane16_swap_b32", PA[0], PA[2]))
            out.append(v_("v_permlane16_swap_b32", PA[1], PA[3]))
            out.append(h_store(PA[0:2], blk, False, st, False))
            out.append(h_store(PA[2:4], blk, True, st, False))
    return out


class Stream:
    def __init__(self, p, passes, ns, depth):
        self.p, self.passes, self.ns, self.depth = p, passes, ns, depth
        self.frags = [(pi, s, t) for pi, ps in enumerate(passes) for s in range(40) for t in range(ps.nt)]
        self.nstage = 10 * len(passes)
        self.dmaq = []
        self.next_read = 0
        self.cur_stage = -1
        self.side = []
        self.dma_next = 0
        self.stamp_at = set()

    def stage_of(self, f):
        pi, s, t = self.frags[f]
        return 10 * pi + s // 4

    def queue_stage(self):
        g = self.dma_next
        if g >= self.nstage:
            return
        ps = self.passes[g // 10]
        self.dmaq += dma_atoms(ps, g % self.ns, g % 10 == 0, f"W{g}")
        self.dma_next += 1

    def emit_dma_now(self):
        for ins in self.dmaq:
            for i in ins:
                self.p.add(i)
        self.dmaq = []

    def read_frag(self):
        f = self.next_read
        if f >= len(self.frags):
            return
        p = self.p
        pi, s, t = self.frags[f]
        ps = self.passes[pi]
        g = self.stage_of(f)
        if g != self.cur_stage:
            while self.dma_next <= g or any(i.tag == f"W{g}" for ins in self.dmaq for i in ins):
                if self.dmaq:
                    for i in self.dmaq.pop(0):
                        p.add(i)
                else:
                    self.queue_stage()
            p.wait_tag(f"W{g}")
            p.e("s_barrier")
            if g > 0 and g % 10 != 0:
                delta = ((g % self.ns) - ((g - 1) % self.ns)) * SLOT
                for r in ps.pat:
                    p.e("v_add_u32", r, delta, r)
            if g == 0:
                while self.dma_next < self.ns - 1:
                    self.queue_stage()
            else:
                self.queue_stage()
            self.cur_stage = g
        fb = FB0 + 4 * (f % 8)
        for rd, (reg, imm) in enumerate(ps.reads(s % 4, t)):
            p.e("ds_read_b64_tr_b16", A(fb + 2 * rd, 2), reg, mods=f"offset:{imm}")
        self.next_read += 1

    def prime(self):
        for _ in range(self.depth + 1):
            self.read_frag()

    def fill(self, quota):
        p = self.p
        n = 0
        while self.side and self.side[0][0] == "n" and n < 2:
            for i in self.side.pop(0)[1]:
                p.add(i)
            n += 1
        n = 0
        while self.side and self.side[0][0] == "v" and n < quota:
            for i in self.side.pop(0)[1]:
                p.add(i)
            n += 1

    def side_mfmas(self, quota):
        p = self.p
        while self.side and self.side[0][0] in ("m", "blk"):
            kind, ins = self.side.pop(0)
            if kind == "blk":
                ins(p)
                continue
            for i in ins:
                p.add(i)
            self.fill(quota)

    def flush_side(self):
        p = self.p
        while self.side:
            kind, ins = self.side.pop(0)
            if kind == "blk":
                ins(p)
            else:
                for i in ins:
                    p.add(i)

    def run_pass(self, pi, quota, deadline=None, hooks=None):
        p = self.p
        ps = self.passes[pi]
        idx = [f for f, fr in enumerate(self.frags) if fr[0] == pi]
        for n, f in enumerate(idx):
            _, s, t = self.frags[f]
            if hooks and n in hooks:
                hooks[n](self)
            if (pi, n) in self.stamp_at:
                p.stamp(f"p{pi}g{n}")
            if t == 0 and deadline is not None:
                lim = deadline(s)
                while len(self.side) > lim:
                    kind, ins = self.side.pop(0)
                    for i in ins:
                        p.add(i)
            d = A(ps.acc + 16 * t, 16)
            p.e("v_mfma_f32_32x32x16_bf16", d, A(FB0 + 4 * (f % 8), 4), XR(s), d if s else 0)
            crossing = self.next_read < len(self.frags) and self.stage_of(self.next_read) != self.cur_stage
            late = []
            if self.dmaq and not crossing:
                ins = self.dmaq.pop(0)
                k = next(n_ for n_, i in enumerate(ins) if i.cls == "vmem")
                for i in ins[:k]:
                    p.add(i)
                late = ins[k:]
            self.read_frag()
            for i in late:
                p.add(i)
            if f % 2 == 0 and f + 2 < len(self.frags):
                p.touch(A(FB0 + 4 * ((f + 1) % 8), 4), A(FB0 + 4 * ((f + 2) % 8), 4))
            self.fill(quota)
            self.side_mfmas(quota)


def prologue(p, typ, passes, o):
    e = p.e
    t = [V(23), V(24), V(25), V(26)]
    vx = [V(27 + j) for j in range(4)]
    for j in range(4):
        e("v_lshrrev_b32", t[0], 3, lane)
        e("v_lshrrev_b32", t[1], 4, lane)
        e("v_add_u32", t[1], 4 * j, t[1])
        e("v_and_b32", t[1], 7, t[1])
        e("v_and_b32", t[2], 7, lane)
        e("v_xor_b32", t[1], t[1], t[2])
        e("v_lshlrev_b32", t[1], 4, t[1])
        e("v_add_u32", t[0], 8 * j, t[0])
        e("v_mul_u32_u24", t[0], 1280, t[0])
        e("v_add_u32", t[0], t[0], t[1])
        if j:
            e("v_subrev_u32", vx[j], 1024 * j, t[0])
        else:
            e("v_mov_b32", vx[j], t[0])
    sXB, sXP, sXL = S(63), S(56), S(57)
    e("s_lshl_b32", sXB, sRB, 7)
    e("s_lshl_b32", sT1, sW, 5)
    e("s_add_u32", sXB, sXB, sT1)
    e("s_mul_i32", sXB, sXB, 1280)
    sXW = S(16)
    e("s_mul_i32", sXW, sW, XW)
    e("s_add_u32", sXW, sXW, XSTG)
    sPI = S(17)
    e("s_mov_b32", sPI, sROT)

    def x_piece(pi):
        e("s_add_u32", "m0", sXW, (pi % 7) * 4096)
        e("s_lshl_b32", sT2, sPI, 7)
        e("s_add_u32", sT2, sT2, sXB)
        for j in range(4):
            e("buffer_load_dwordx4", vx[j], XS, sT2, mods=f"offen offset:{1024 * j} lds", tag=f"X{pi}" if j == 3 else None)
        e("s_add_u32", sPI, sPI, 1)
        e("s_cmp_eq_u32", sPI, 10)
        e("s_cselect_b32", sPI, 0, sPI)

    for pi in range(7):
        x_piece(pi)
    p.stamp("x_issued")

    e("s_mul_i32", sT2, sP, 3200)
    e("s_mul_i32", sT3, sW, 800)
    e("s_add_u32", sT2, sT2, sT3)
    e("s_add_u32", "m0", sT3, PTB)
    e("buffer_load_dwordx4", l16, PH, sT2, mods="offen lds", tag="PT")
    Z4 = V(32, 4)
    for r in range(4):
        e("v_mov_b32", Z4[r], 0)
    e("v_add_u32", t[0], ZB, l16)
    e("ds_write_b128", t[0], Z4)
    e("ds_write_b128", t[0], Z4, mods="offset:1024")

    OOB = 0x7FF00000
    if typ == "X":
        e("s_cmp_eq_u32", sRB, 0)
        e("s_cselect_b32", sT2, 0, OOB)
        e("v_add_u32", V(36), sT2, l16)
        e("s_lshl_b32", sT3, sP, 2)
        e("s_add_u32", sT3, sT3, sW)
        e("s_mul_i32", S(18), sT3, 6144)
        e("s_add_u32", S(18), S(18), L.KV)
        e("s_add_u32", sT0, S(18), 4096)
        for k in range(6):
            e("buffer_store_dwordx4", Z4, V(36), WS, S(18) if k < 4 else sT0, mods=f"offen offset:{1024 * (k % 4)} sc1",
              tag="KVZ" if k == 5 else None)
        e("s_lshl_b32", sT3, sT3, 2)
        e("v_mov_b32", V(37), sT3)
        e("v_add_u32", V(37), sT2, V(37))
    else:
        e("s_or_b32", sT2, sRB, sP)
        e("s_cmp_eq_u32", sT2, 0)
        e("s_cselect_b32", sT2, 0, OOB)
        e("v_add_u32", V(36), sT2, l16)
        e("s_lshl_b32", sT3, sW, 10)
        e("s_add_u32", sT3, sT3, L.FL)
        e("buffer_store_dwordx4", Z4, V(36), WS, sT3, mods="offen sc1")

    vr = [V(38 + k) for k in range(4)]
    e("v_and_b32", t[0], 31, lane)
    e("v_lshrrev_b32", t[1], 5, lane)
    e("v_bfe_u32", t[2], lane, 1, 3)
    e("v_xor_b32", t[1], t[1], t[2])
    e("v_lshlrev_b32", t[0], 7, t[0])
    e("v_add_u32", t[0], sXW, t[0])
    for k in range(4):
        e("v_xor_b32", t[2], 2 * k, t[1])
        e("v_lshl_add_u32", vr[k], t[2], 4, t[0])
    tt = [V(42), V(43), V(44), V(45)]
    wsave = [S(95), S(96), S(97)]
    for k, ps in enumerate(passes):
        ps.wreg = wsave[k]
        first_stage = 10 * k
        setup_pass(p, ps, (first_stage % o["ns"]) * SLOT, tt)
    phr = [V(46 + k) for k in range(5)]
    phi_addr_setup(p, phr, tt)
    p.stamp("setup_done")

    acc = [V(51), V(52), V(53), V(54)]
    for r in acc:
        e("v_mov_b32", r, 0)
    stream = o["stream"]
    for pi in range(10):
        p.wait_tag(f"X{pi}")
        for k in range(4):
            e("ds_read_b128", XR(4 * pi + k), vr[k], mods=f"offset:{(pi % 7) * 4096}")
        if pi < 3:
            p.wait_lgkm0()
            x_piece(pi + 7)
            if pi == 2:
                stream.queue_stage()
                stream.queue_stage()
                stream.emit_dma_now()
        for k in range(4):
            for r in range(4):
                x = XR(4 * pi + k)[r]
                e("v_dot2c_f32_bf16", acc[r & 1], sONE, x)
                e("v_dot2c_f32_bf16", acc[2 + (r & 1)], x, x)
    p.stamp("x_done")
    if typ == "X":
        p.wait_tag("KVZ")
        e("v_mov_b32", V(36), 1)
        e("s_mov_b64", "exec", 1)
        e("buffer_store_dword", V(36), V(37), DBG, 0, mods="offen sc1")
        e("s_mov_b64", "exec", -1)
    e("v_add_f32", acc[0], acc[0], acc[1])
    e("v_add_f32", acc[2], acc[2], acc[3])
    e("v_mov_b32", acc[1], acc[0])
    e("v_mov_b32", acc[3], acc[2])
    e("v_permlane32_swap_b32", acc[0], acc[1])
    e("v_permlane32_swap_b32", acc[2], acc[3])
    e("v_add_f32", acc[0], acc[0], acc[1])
    e("v_add_f32", acc[2], acc[2], acc[3])
    e("v_mul_f32", acc[0], 1.0 / 640, acc[0])
    e("v_mul_f32", acc[2], 1.0 / 640, acc[2])
    e("v_fma_f32", acc[2], Neg(acc[0]), acc[0], acc[2])
    e("v_max_f32", acc[2], 0, acc[2])
    e("v_add_f32", acc[2], 1e-5, acc[2])
    e("v_rsq_f32", RSTD, acc[2])
    e("v_mul_f32", CEN, acc[0], RSTD)
    e("v_sub_f32", CEN, 0, CEN)
    p.wait_tag("PT")
    p.wait_lgkm0()
    return phr


def center_block(p, steps):
    for s in steps:
        for kind, ins in center_atoms(s, V(23), V(24)):
            for i in ins:
                p.add(i)


def run_first_pass(p, stream, quota, phr):
    center_block(p, (0, 1))
    stream.prime()
    p.stamp("primed")
    phi = phi_read_atoms(phr)
    groups = {}
    for s in range(2, 40):
        groups[s] = center_atoms(s, V(23 + 2 * (s & 1)), V(24 + 2 * (s & 1)))
        if s - 2 < len(phi):
            groups[s] = groups[s][:10] + [phi[s - 2]] + groups[s][10:]
    stream.side = [a for s in range(2, 40) for a in groups[s]]
    rest = lambda s: sum(len(groups[k]) for k in range(max(s, 1) + 1, 40))
    stream.run_pass(0, quota, deadline=rest)
    assert not stream.side


def poll_block(reg, addr, srdreg, soff, want, lab):
    def blk(p):
        p.e("v_cmp_eq_u32", "vcc", want, reg)
        p.e("s_cmp_eq_u64", "vcc", -1)
        p.e("s_cbranch_scc1", lab + "_ok")
        p.region_begin()
        p.e("s_mov_b32", sT3, 0)
        p.label(lab + "_spin")
        p.e("s_add_u32", sT3, sT3, 1)
        p.e("s_cmp_ge_u32", sT3, 1 << 18)
        p.e("s_cbranch_scc1", lab + "_ok")
        p.e("s_sleep", 2)
        p.e("buffer_load_dword", reg, addr, srdreg, soff, mods="offen sc1")
        p.wait_vm0()
        p.e("v_cmp_eq_u32", "vcc", want, reg)
        p.e("s_cmp_eq_u64", "vcc", -1)
        p.e("s_cbranch_scc0", lab + "_spin")
        p.label(lab + "_ok")
        p.region_end()
    return blk


def kv_block(o):
    def blk(p):
        e = p.e
        p.wait_lgkm0()
        e("s_barrier")
        pa, va, vb = V(5), V(6), V(7)
        t0, t1 = V(8), V(9)
        e("v_lshrrev_b32", t0, 4, lane)
        e("v_bfe_u32", t1, lane, 2, 2)
        e("v_lshl_add_u32", t0, t0, 3, t1)
        e("v_and_b32", t1, 3, lane)
        e("v_lshlrev_b32", t1, 3, t1)
        e("v_mul_u32_u24", pa, 320, t0)
        e("v_mul_u32_u24", vb, 160, t0)
        e("s_mul_i32", sT0, sW, 80)
        e("s_add_u32", sT0, sT0, PKB)
        e("v_add3_u32", pa, pa, t1, sT0)
        e("s_mul_i32", sT0, sW, 40)
        e("s_add_u32", sT0, sT0, VB)
        e("v_add3_u32", va, vb, t1, sT0)
        e("v_add_u32", vb, sT0, vb)
        e("v_add_u32", vb, 32, vb)
        e("v_and_b32", t0, 15, lane)
        e("v_cmp_eq_u32", S(100, 2), 4, t0)
        e("v_mov_b32", t1, 0x3F803F80)
        KA = PKD[0:24]
        AF = [PKD[24 + 4 * k:28 + 4 * k] for k in range(3)]
        BF = [EP[4 * k:4 * k + 4] for k in range(2)]
        AF2 = [PKD[36 + 4 * k:40 + 4 * k] for k in range(3)]
        BF2 = [EP[8 + 4 * k:12 + 4 * k] for k in range(2)]

        def reads(ks):
            a, b = (AF, BF) if ks % 2 == 0 else (AF2, BF2)
            for rd in range(2):
                for ft in range(3):
                    e("ds_read_b64_tr_b16", a[ft][2 * rd:2 * rd + 2], pa, mods=f"offset:{(32 * ks + 4 * rd) * 320 + 32 * ft}")
                e("ds_read_b64_tr_b16", b[0][2 * rd:2 * rd + 2], va, mods=f"offset:{(32 * ks + 4 * rd) * 160}")
                e("ds_read_b64_tr_b16", b[1][2 * rd:2 * rd + 2], vb, mods=f"offset:{(32 * ks + 4 * rd) * 160}")
        reads(0)
        for ks in range(4):
            if ks < 3:
                reads(ks + 1)
            a, b = (AF, BF) if ks % 2 == 0 else (AF2, BF2)
            for r in range(4):
                e("v_cndmask_b32", b[1][r], b[1][r], t1, S(100, 2))
            for dt in range(2):
                for ft in range(3):
                    d = KA[(dt * 3 + ft) * 4:(dt * 3 + ft) * 4 + 4]
                    e("v_mfma_f32_16x16x32_bf16", d, a[ft], b[dt], d if ks else 0)
        e("s_lshl_b32", sT0, sP, 2)
        e("s_add_u32", sT0, sT0, sW)
        e("s_mul_i32", sT0, sT0, 6144)
        e("s_add_u32", sT0, sT0, L.KV)
        e("s_add_u32", sT1, sT0, 4096)
        masks = {(0, 0): None, (1, 0): None, (2, 0): (0xFFFFFFFF, 0), (0, 1): (0x001F001F, 0x001F001F),
                 (1, 1): (0x001F001F, 0x001F001F), (2, 1): (0x001F001F, 0)}
        for (ft, dt), m in masks.items():
            if m:
                e("s_mov_b32", S(100), m[0])
                e("s_mov_b32", S(101), m[1])
                e("s_mov_b64", "exec", S(100, 2))
            for i in range(4):
                r = (dt * 3 + ft) * 4 + i
                off = r * 256
                e("buffer_atomic_add_f32", KA[r], l4, WS, sT0 if off < 4096 else sT1, mods=f"offen offset:{off & 4095}")
            if m:
                e("s_mov_b64", "exec", -1)
    return blk


def wt_round_atoms(rnd, st):
    su, sk, sc, sw_, sst, sM, sB, sC1 = S(4), S(5), S(6), S(7), S(8), S(9), S(12), S(13)
    sX, sY = S(14), S(15)
    a = []
    m = lambda *x, **k: a.append(n_(mk(*x, **k)))
    g = lambda *rows: a.append(n_(*[mk(*r) for r in rows]))
    g(("s_lshl_b32", su, sRB, 3), ("s_add_u32", su, su, sP), ("s_lshl_b32", su, su, 2), ("s_add_u32", su, su, sW))
    if rnd:
        g(("s_add_u32", su, su, 512), ("s_cmp_ge_u32", su, 680), ("s_cselect_b32", sX, 344, 0), ("s_sub_u32", su, su, sX))
    g(("s_mul_i32", sk, su, 52429), ("s_lshr_b32", sk, sk, 19),
      ("s_mul_i32", sX, sk, 10), ("s_sub_u32", sc, su, sX))
    g(("s_mul_i32", sw_, sk, 3856), ("s_lshr_b32", sw_, sw_, 16),
      ("s_mul_i32", sX, sw_, 17), ("s_sub_u32", sst, sk, sX))
    g(("s_mul_i32", sB, sw_, 12), ("s_add_u32", sB, sB, sst), ("s_lshl_b32", sB, sB, 5))
    g(("s_cmp_eq_u32", sst, 2), ("s_cselect_b32", sX, 1, 0), ("s_cmp_eq_u32", sst, 8), ("s_cselect_b32", sX, 1, sX))
    g(("s_cmp_eq_u32", sX, 1), ("s_cselect_b32", sM, 16, 8), ("s_cselect_b32", sC1, 8, 16))
    g(("s_sub_u32", sX, sst, 12), ("s_lshr_b32", sY, sX, 1), ("s_mul_i32", sY, sY, 80), ("s_and_b32", sX, sX, 1))
    g(("s_lshl_b32", sX, sX, 3), ("s_add_u32", sY, sY, sX), ("s_mul_i32", su, sw_, 160))
    g(("s_cmp_eq_u32", sst, 16), ("s_cselect_b32", sY, 16, sY), ("s_cselect_b32", sX, 80, 4), ("s_add_u32", sY, sY, su))
    g(("s_cmp_ge_u32", sst, 12), ("s_cselect_b32", sB, sY, sB), ("s_cselect_b32", sM, sX, sM),
      ("s_cselect_b32", sC1, 20, sC1), ("s_cselect_b32", sX, 40, 4),
      ("s_cselect_b32", WD[0], S(10), S(98)), ("s_cselect_b32", WD[1], S(11), S(99)),
      ("s_mov_b32", WD[2], 1536 * 640 * 2), ("s_cselect_b32", WD[2], 640 * 640 * 2, WD[2]), ("s_mov_b32", WD[3], 0x20000))
    t0, t1, vo = TMP[0], TMP[1], TMP[2]
    a.append(v_("v_lshrrev_b32", t0, 5, lane))
    a.append(v_("v_mul_u32_u24", t0, sM, t0))
    a.append(v_("v_bfe_u32", t1, lane, 3, 2))
    a.append(v_("v_add_u32", t0, t0, t1))
    a.append(v_("v_mul_u32_u24", t0, 1280, t0))
    a.append(v_("v_and_b32", t1, 7, lane))
    a.append(v_("v_lshl_add_u32", vo, t1, 4, t0))
    m("s_lshl_b32", su, sc, 7)
    m("s_lshl_b32", sw_, sW, 12)
    m("s_add_u32", sw_, sw_, WTS)
    for j in range(4):
        ins = [mk("s_mov_b32", "m0", sw_), mk("s_mul_i32", sY, sC1, j & 1), mk("s_add_u32", sY, sY, sB)]
        if j >> 1:
            ins.append(mk("s_add_u32", sY, sY, sX))
        ins += [mk("s_mul_i32", sY, sY, 1280), mk("s_add_u32", sY, sY, su)]
        if j:
            ins.append(mk("s_sub_u32", sY, sY, 1024 * j))
        ins.append(mk("buffer_load_dwordx4", vo, WD, sY, mods=f"offen offset:{1024 * j} lds", tag=f"WT{rnd}" if j == 3 else None))
        a.append(n_(*ins))
    b = []
    ra = TMP[0]
    b.append(v_("v_lshrrev_b32", ra, 4, lane))
    b.append(v_("v_bfe_u32", t1, lane, 2, 2))
    b.append(v_("v_lshl_add_u32", ra, ra, 3, t1))
    b.append(v_("v_lshlrev_b32", ra, 7, ra))
    b.append(v_("v_and_b32", t1, 3, lane))
    b.append(v_("v_lshl_add_u32", ra, t1, 3, ra))
    b.append(n_(mk("s_lshl_b32", sY, sW, 12), mk("s_add_u32", sY, sY, WTS)))
    b.append(v_("v_add_u32", ra, sY, ra))
    b.append(("blk", lambda p: p.wait_tag(f"WT{rnd}")))
    FR = PKD[0:16]
    for nt in range(4):
        for rd in range(2):
            b.append(n_(mk("ds_read_b64_tr_b16", FR[4 * nt + 2 * rd:4 * nt + 2 * rd + 2], ra, mods=f"offset:{rd * 512 + 32 * nt}")))
    b.append(n_(mk("s_mul_i32", sY, sk, 40), mk("s_lshl_b32", su, sc, 2)))
    b.append(n_(mk("s_add_u32", sY, sY, su), mk("s_lshl_b32", sY, sY, 10), mk("s_add_u32", sY, sY, L.WT)))
    for nt in range(4):
        b.append(n_(mk("buffer_store_dwordx4", FR[4 * nt:4 * nt + 4], l16, WS, sY, mods=f"offen offset:{1024 * nt}" + st)))
    return a, b


def body_x(p, o):
    e = p.e
    st = o["st"]
    kv = Pass("kv", "kv", 5, ACC_A, 320, 20, 20, WQ, 3840, sROTQ, [V(5 + j) for j in range(5)], [V(16)], None, 0)
    u80 = Pass("u80", "U", 5, ACC_B, 160, 10, 10, WU, 3072, sROTU, [V(10 + j) for j in range(5)], [V(17), V(18)], None, 0)
    o["ns"] = 5
    stream = Stream(p, [kv, u80], 5, o["depth"])
    o["stream"] = stream
    stream.stamp_at = set(o.get("sx", []))
    phr = prologue(p, "X", [kv, u80], o)
    run_first_pass(p, stream, o["q1x"], phr)
    p.stamp("pass1")
    KP = EP
    vPK, vV = V(19), V(20)
    side = []
    side += [v_("v_and_b32", TMP[0], 31, lane), n_(mk("s_lshl_b32", sT0, sW, 5)), v_("v_add_u32", TMP[0], sT0, TMP[0]),
             v_("v_lshrrev_b32", TMP[1], 5, lane), v_("v_mul_u32_u24", vPK, 320, TMP[0]), v_("v_mul_u32_u24", vV, 160, TMP[0]),
             v_("v_mul_u32_u24", TMP[2], 160, TMP[1]), v_("v_mul_u32_u24", TMP[1], 80, TMP[1]),
             v_("v_add_u32", vPK, vPK, TMP[2]), v_("v_add_u32", vV, vV, TMP[1]),
             v_("v_add_u32", vPK, PKB, vPK), v_("v_add_u32", vV, VB, vV)]
    side += pack_atoms(ACC_A, 20, KP, TMP[0], TMP[1])
    side += feature_mfma_atoms(KP)
    VP = PKD
    side += pack_atoms(ACC_A + 40, 20, EP, TMP[0], TMP[1])
    for c in range(5):
        side.append(n_(mk("ds_write_b128", vV, EP[4 * c:4 * c + 4], mods=f"offset:{16 * c}")))
    POLL, PADDR = V(5), V(6)
    side += [n_(mk("s_lshl_b32", sT0, sP, 2), mk("s_add_u32", sT0, sT0, sW)), n_(mk("s_lshl_b32", S(63), sT0, 2)),
             v_("v_mov_b32", PADDR, 0),
             n_(mk("buffer_load_dword", POLL, PADDR, DBG, S(63), mods="offen sc1"))]
    for hh in range(2):
        side += softmax_atoms(hh)
        for c in range(5):
            side.append(n_(mk("ds_write_b128", vPK, EP[4 * c:4 * c + 4], mods=f"offset:{80 * hh + 16 * c}")))
    side.append(("blk", lambda p_: p_.stamp("softmax_done")))
    side.append(("blk", poll_block(POLL, PADDR, DBG, S(63), 1, "L1X_z")))
    side.append(("blk", kv_block(o)))
    side.append(("blk", lambda p_: p_.stamp("kv_done")))
    stream.side = side
    stream.run_pass(1, o["q2x"])
    stream.flush_side()
    p.stamp("pass2")
    G, U = PKD[0:8], PKD[8:16]
    PA, PB = PKD[16:20], PKD[20:24]
    stream.side = glu_atoms(ACC_B, [("pair", 0, L.H_X01), ("pair", 2, L.H_X23), ("lone", 4, L.H_XL)], st, (G, U, PA, PB))
    stream.flush_side()
    p.stamp("end")


def body_y(p, o):
    e = p.e
    st = o["st"]
    u64 = Pass("u64", "U", 4, ACC_A, 160, 10, 8, WU, 3072, sROTU, [V(5 + j) for j in range(5)], [V(16), V(17)], None, 128)
    q = Pass("q", "q", 3, ACC_B, 192, 12, 12, WQ, 3840, sROTQ, [V(10 + j) for j in range(3)], [V(18)], None, 0)
    u48 = Pass("u48", "U", 3, ACC_A, 96, 6, 6, WU, 3072, sROTU, [V(13 + j) for j in range(3)], [V(19), V(20)], None, 80)
    o["ns"] = 7
    stream = Stream(p, [u64, q, u48], 7, o["depth"])
    o["stream"] = stream
    stream.stamp_at = set(o.get("sy", []))
    phr = prologue(p, "Y", [u64, q, u48], o)
    run_first_pass(p, stream, o["q1y"], phr)
    p.stamp("pass1")
    G, U = EP[0:8], EP[8:16]
    PA, PB = PKD[16:20], PKD[20:24]
    wa0, wb0 = wt_round_atoms(0, st)
    wa1, wb1 = wt_round_atoms(1, st)
    glu = glu_atoms(ACC_A, [("pair", 0, L.H_Y64A), ("pair", 2, L.H_Y64B)], st, (G, U, PA, PB))
    stream.side = wa0 + glu + wb0 + wa1
    stream.run_pass(1, o["q2y"], hooks={100: lambda s_: s_.side.extend(wb1)})
    stream.flush_side()
    p.stamp("pass2")
    KP = EP
    side = pack_atoms(ACC_B, 20, KP, TMP[0], TMP[1])
    side += feature_mfma_atoms(KP)
    side += [n_(mk("s_lshl_b32", sT1, sRB, 2), mk("s_add_u32", sT1, sT1, sW)),
             n_(mk("s_lshl_b32", sT1, sT1, 3), mk("s_add_u32", sT1, sT1, sP)),
             n_(mk("s_mul_i32", S(63), sT1, 10240), mk("s_add_u32", S(63), S(63), L.PHIQ))]
    for hh in range(2):
        side += softmax_atoms(hh)
        for c in range(5):
            blk = (5 * hh + c) * 1024
            side.append(n_(mk("s_add_u32", sT1, S(63), blk & ~4095),
                           mk("buffer_store_dwordx4", EP[4 * c:4 * c + 4], l16, WS, sT1, mods=f"offen offset:{blk & 4095}" + st)))
    stream.side = side
    stream.run_pass(2, o["q3y"])
    stream.flush_side()
    p.stamp("pass3")
    G, U = PKD[0:8], PKD[8:16]
    stream.side = glu_atoms(ACC_A, [("lone", 0, L.H_YL), ("pair", 1, L.H_Y48)], st, (G, U, PKD[16:20], PKD[20:24]))
    stream.flush_side()
    p.stamp("end")


def build(**kw):
    o = dict(DEF)
    o.update(kw)
    p = Prog()
    p.stamps_on = o["stamps"]
    e = p.e
    e("s_cmp_ge_u32", S(2), 256)
    e("s_cbranch_scc1", "L1_end")
    p.stamp("start_rt", real=True)
    p.stamp("start")
    e("s_load_dwordx8", S(4, 8), S(0, 2), 0)
    e("s_load_dwordx4", S(12, 4), S(0, 2), 40)
    e("s_load_dwordx2", S(98, 2), S(0, 2), 56)
    e("s_load_dwordx4", S(16, 4), S(0, 2), 72)
    e("v_and_b32", lane, 63, V(0))
    e("v_lshrrev_b32", V(5), 6, V(0))
    e("v_lshlrev_b32", l16, 4, lane)
    e("v_readfirstlane_b32", sW, V(5))
    e("v_lshlrev_b32", l8, 3, lane)
    e("v_lshlrev_b32", l4, 2, lane)
    e("s_and_b32", sT0, S(2), 7)
    e("s_lshr_b32", sT1, S(2), 3)
    e("s_and_b32", sRB, sT0, 1)
    e("s_lshl_b32", sRB, sRB, 3)
    e("s_and_b32", sT2, sT1, 7)
    e("s_add_u32", sRB, sRB, sT2)
    e("s_lshr_b32", sT0, sT0, 1)
    e("s_lshl_b32", sT0, sT0, 2)
    e("s_lshr_b32", sT1, sT1, 3)
    e("s_add_u32", sT0, sT0, sT1)
    e("s_lshr_b32", sP, sT0, 1)
    e("s_and_b32", S(63), sT0, 1)
    if o["rot"]:
        e("s_mul_i32", sT1, sT1, 3)
        e("s_add_u32", sROT, sT1, sT2)
        e("s_cmp_ge_u32", sROT, 10)
        e("s_cselect_b32", sT1, 10, 0)
        e("s_sub_u32", sROT, sROT, sT1)
    else:
        e("s_mov_b32", sROT, 0)
    e("s_mul_i32", sROTQ, sROT, 64 * 3840)
    e("s_mul_i32", sROTU, sROT, 64 * 3072)
    e("s_mov_b32", sMASK, 0xFFFF0000)
    e("s_mov_b32", sL2E, LOG2E)
    p.wait_smem()
    p.stamp("kernarg")
    extra = 1024 * 128 if o["stamps"] else 0
    srd(p, XS, S(4, 2), 2048 * 640 * 2)
    srd(p, WQ, S(6, 2), 640 * 1920 * 2)
    srd(p, PH, S(8, 2), 32 * 400 * 2)
    srd(p, WS, S(18, 2), L.WS_END + extra)
    srd(p, DBG, S(16, 2), 256)
    e("s_cmp_ge_u32", sW, 2)
    e("s_cselect_b32", WU[0], S(14), S(12))
    e("s_cselect_b32", WU[1], S(15), S(13))
    e("s_mov_b32", WU[2], 640 * 1536 * 2)
    e("s_mov_b32", WU[3], 0x20000)
    e("s_mov_b32", sONE, 0x3F803F80)
    e("s_lshl_b32", sT0, sRB, 3)
    e("s_lshl_b32", sT1, sW, 1)
    e("s_add_u32", sT0, sT0, sT1)
    e("s_lshl_b32", sT0, sT0, 3)
    e("s_add_u32", sT0, sT0, sP)
    e("s_mul_i32", sHB, sT0, 6144)
    e("s_add_u32", sHB, sHB, L.HB)
    e("s_cmp_eq_u32", S(63), 1)
    e("s_cbranch_scc1", "L1_Y")
    p.fork_save()
    names0 = list(getattr(p, "stamp_names", []))
    body_x(p, o)

    def dump():
        if o["stamps"]:
            p.stamp("end_rt", real=True)
            e("s_lshl_b32", sT0, S(2), 2)
            e("s_add_u32", sT0, sT0, sW)
            e("s_lshl_b32", sT0, sT0, 7)
            e("s_add_u32", sT0, sT0, L.WS_END)
            p.dump_stamps(WS, sT0, V(8, 2))
    dump()
    p.names_x = list(getattr(p, "stamp_names", []))
    e("s_endpgm")
    p.label("L1_Y")
    p.fork_restore()
    if o["stamps"]:
        p.stamp_names = list(names0)
    body_y(p, o)
    dump()
    p.names_y = list(getattr(p, "stamp_names", []))
    p.label("L1_end")
    e("s_endpgm")
    return p
```

```python
from asmlib import V, A, S, Neg, Prog, mk
import layout as L

NAME = "l2_gemm_kernel"
LDS_T = 0
LDS_Z = 7680
LDS_R = 16384
RPITCH = 336
LDS_BYTES = LDS_R + 4 * 64 * RPITCH


def srd(p, k, base, nbytes):
    p.e("s_mov_b32", S(k), S(base))
    p.e("s_mov_b32", S(k + 1), S(base + 1))
    p.e("s_mov_b32", S(k + 2), nbytes)
    p.e("s_mov_b32", S(k + 3), 0x20000)
    return S(k, 4)


def build(depth=5, stamps=False):
    p = Prog()
    p.stamps_on = stamps
    e = p.e
    e("s_cmp_ge_u32", S(2), 256)
    e("s_cbranch_scc1", "L2_end")
    p.stamp("start_rt", real=True)
    p.stamp("start")
    e("s_load_dwordx2", S(4, 2), S(0, 2), 0)
    e("s_load_dwordx2", S(6, 2), S(0, 2), 64)
    e("s_load_dwordx2", S(8, 2), S(0, 2), 80)
    lane, l16, l8, l4 = V(1), V(2), V(3), V(4)
    e("v_and_b32", lane, 63, V(0))
    e("v_lshrrev_b32", V(5), 6, V(0))
    e("v_lshlrev_b32", l16, 4, lane)
    e("v_readfirstlane_b32", S(20), V(5))
    e("v_lshlrev_b32", l8, 3, lane)
    e("v_lshlrev_b32", l4, 2, lane)
    sw, srt, sct = S(20), S(21), S(22)
    e("s_and_b32", S(23), S(2), 7)
    e("s_lshr_b32", S(24), S(2), 3)
    e("s_lshr_b32", srt, S(23), 1)
    e("s_lshl_b32", srt, srt, 3)
    e("s_and_b32", S(25), S(24), 7)
    e("s_add_u32", srt, srt, S(25))
    e("s_and_b32", sct, S(23), 1)
    e("s_lshl_b32", sct, sct, 2)
    e("s_lshr_b32", S(25), S(24), 3)
    e("s_add_u32", sct, sct, S(25))
    p.wait_smem()
    p.stamp("kernarg")
    XS = srd(p, 12, 4, 2048 * 640 * 2)
    OUT = srd(p, 16, 6, 2048 * 640 * 2)
    WS = srd(p, 28, 8, L.WS_END + (65536 * 4 if stamps else 0))

    g_, n16 = V(5), V(6)
    e("v_lshrrev_b32", g_, 4, lane)
    e("v_and_b32", n16, 15, lane)
    t0, t1 = V(7), V(8)
    e("v_and_b32", t0, 1, g_)
    e("v_mul_u32_u24", t0, 5120, t0)
    e("v_lshrrev_b32", t1, 1, g_)
    e("v_lshlrev_b32", t1, 5, t1)
    e("v_add_u32", t1, t1, n16)
    e("v_lshl_add_u32", t0, t1, 4, t0)
    e("s_lshr_b32", S(32), sw, 1)
    e("s_lshl_b32", S(33), srt, 1)
    e("s_add_u32", S(32), S(32), S(33))
    e("s_lshl_b32", S(32), S(32), 3)
    e("s_add_u32", S(32), S(32), sct)
    e("s_mul_i32", S(32), S(32), 10240)
    e("s_and_b32", S(33), sw, 1)
    e("s_lshl_b32", S(33), S(33), 8)
    e("s_add_u32", S(32), S(32), S(33))
    if L.PHIQ:
        e("s_add_u32", S(32), S(32), L.PHIQ)
    e("s_add_u32", S(33), S(32), 4096)
    e("s_lshl_b32", S(34), sct, 2)
    e("s_add_u32", S(34), S(34), sw)
    e("s_mul_i32", S(34), S(34), 6144)
    e("s_add_u32", S(34), S(34), L.KV)
    e("s_add_u32", S(35), S(34), 4096)
    KVR = V(36, 24)
    for r in range(24):
        off = r * 256
        e("buffer_load_dword", KVR[r], l4, WS, S(34) if off < 4096 else S(35), mods=f"offen offset:{off & 4095}")
    p.stamp("kv_issued")
    PQ = V(16, 20)
    for c in range(5):
        e("buffer_load_dwordx4", PQ[4 * c:4 * c + 4], t0, WS, S(32) if c < 4 else S(33), mods=f"offen offset:{(c & 3) * 1024}")

    sH = [S(36 + a) for a in range(4)]
    sO = [S(40 + a) for a in range(4)]
    sW = S(44)
    e("s_lshl_b32", S(45), srt, 5)
    e("s_lshl_b32", S(46), sw, 1)
    e("s_add_u32", S(45), S(45), S(46))
    e("s_mul_i32", S(46), S(45), 6144)
    e("s_add_u32", sH[0], S(46), L.HB)
    e("s_mul_i32", S(46), S(45), 2560)
    e("s_add_u32", sO[0], S(46), L.OB)
    for a in range(1, 4):
        e("s_add_u32", sH[a], sH[a - 1], 8 * 6144)
        e("s_add_u32", sO[a], sO[a - 1], 8 * 2560)
    e("s_mul_i32", sW, sw, 17 * 40)
    e("s_mul_i32", S(46), sct, 5)
    e("s_add_u32", sW, sW, S(46))
    e("s_lshl_b32", sW, sW, 10)
    e("s_add_u32", sW, sW, L.WT)

    pool = [A(80 + 4 * i, 4) for i in range(44)] + [V(128 + 4 * i, 4) for i in range(32)]
    assert depth * 9 <= len(pool)
    slot = lambda st, i: pool[(st % depth) * 9 + i]
    tmp_s = [S(48 + i) for i in range(12)]
    tmp_i = [0]

    def soff(base, off):
        hi, lo = off & ~4095, off & 4095
        if hi == 0:
            return base, lo, None
        t = tmp_s[tmp_i[0] % len(tmp_s)]
        tmp_i[0] += 1
        return t, lo, mk("s_add_u32", t, base, hi)

    def step_loads(st):
        out = []

        def ld(op, dst, voff, base, off, sc=""):
            s_, imm, pre = soff(base, off)
            grp = [pre] if pre else []
            grp.append(mk(op, dst, voff, WS, s_, mods=f"offen offset:{imm}{sc}"))
            out.append(grp)

        for a in range(4):
            q = slot(st, a)
            if st < 12:
                pp, sl = divmod(st, 6)
                rec = pp * 6144
                if sl == 2:
                    ld("buffer_load_dwordx2", q[0:2], l8, sH[a], rec + L.H_XL)
                    ld("buffer_load_dwordx2", q[2:4], l8, sH[a], rec + L.H_YL)
                else:
                    blk = {0: L.H_X01, 1: L.H_X23, 3: L.H_Y48, 4: L.H_Y64A, 5: L.H_Y64B}[sl]
                    ld("buffer_load_dwordx4", q, l16, sH[a], rec + blk)
            elif st < 16:
                ld("buffer_load_dwordx4", q, l16, sO[a], ((st - 12) >> 1) * 2560 + ((st - 12) & 1) * 1024, " sc1")
            else:
                ld("buffer_load_dwordx2", q[0:2], l8, sO[a], 2048, " sc1")
                ld("buffer_load_dwordx2", q[2:4], l8, sO[a], 2560 + 2048, " sc1")
        for nt in range(5):
            ld("buffer_load_dwordx4", slot(st, 4 + nt), l16, sW, st * 40960 + nt * 1024)
        return out

    def emit_groups(gs):
        for grp in gs:
            for i in grp:
                p.add(i)

    NPRE = 3
    for st in range(NPRE):
        emit_groups(step_loads(st))

    p.stamp("issued")
    for r in range(8, 12):
        e("v_mov_b32", V(r), 0)
    e("v_add_u32", V(13), LDS_Z, l16)
    e("ds_write_b128", V(13), V(8, 4))
    e("ds_write_b128", V(13), V(8, 4), mods="offset:1024")
    ta = V(14)
    e("v_mul_u32_u24", ta, 80, n16)
    e("v_lshl_add_u32", ta, g_, 3, ta)
    e("s_mul_i32", S(46), sw, 1920)
    e("v_add_u32", ta, S(46), ta)
    masks = {(0, 0): None, (1, 0): None, (2, 0): (0xFFFFFFFF, 0), (0, 1): (0x00FF00FF, 0x00FF00FF),
             (1, 1): (0x00FF00FF, 0x00FF00FF), (2, 1): (0x00FF00FF, 0)}
    for dt in range(2):
        for ft in range(3):
            r0 = (dt * 3 + ft) * 4
            e("v_cvt_pk_bf16_f32", KVR[r0], KVR[r0], KVR[r0 + 1])
            e("v_cvt_pk_bf16_f32", KVR[r0 + 1], KVR[r0 + 2], KVR[r0 + 3])
    for (ft, dt), m in masks.items():
        r0 = (dt * 3 + ft) * 4
        if m:
            e("s_mov_b32", S(46), m[0])
            e("s_mov_b32", S(47), m[1])
            e("s_mov_b64", "exec", S(46, 2))
        e("ds_write_b64", ta, KVR[r0:r0 + 2], mods=f"offset:{LDS_T + dt * 16 * 80 + ft * 32}")
        if m:
            e("s_mov_b64", "exec", -1)
    p.wait_lgkm0()
    e("s_barrier")

    p.stamp("T_done")
    aa = V(14)
    e("v_and_b32", t0, 3, n16)
    e("v_mul_u32_u24", t0, 80, t0)
    e("v_mul_u32_u24", t1, 1920, g_)
    e("v_add_u32", t0, t0, t1)
    e("v_lshrrev_b32", t1, 2, n16)
    e("v_cmp_eq_u32", "vcc", t1, g_)
    e("v_mov_b32", t1, LDS_Z)
    e("v_cndmask_b32", aa, t1, t0, "vcc")
    AB = [V(60 + 4 * i, 4) for i in range(8)]
    OA = V(92, 24)
    seq = [(u, c) for u in range(6) for c in range(5)]
    LA = 6

    def aread(n):
        u, c = seq[n]
        e("ds_read_b128", AB[n % 8], aa, mods=f"offset:{u * 320 + c * 16}")
    for n in range(LA):
        aread(n)
    for n, (u, c) in enumerate(seq):
        d = OA[4 * u:4 * u + 4]
        e("v_mfma_f32_16x16x32_bf16", d, AB[n % 8], PQ[4 * c:4 * c + 4], d if c else 0)
        if n + LA < len(seq):
            aread(n + LA)
    e("v_add_f32", V(9), 1e-6, OA[20])
    e("v_rcp_f32", V(9), V(9))
    for d in range(20):
        e("v_mul_f32", OA[d], V(9), OA[d])
    OP = V(16, 12)
    for q in range(10):
        e("v_cvt_pk_bf16_f32", OP[q], OA[2 * q], OA[2 * q + 1])
    e("s_lshl_b32", S(46), srt, 2)
    e("s_add_u32", S(46), S(46), sw)
    e("s_lshl_b32", S(46), S(46), 3)
    e("s_add_u32", S(46), S(46), sct)
    e("s_mul_i32", S(46), S(46), 2560)
    e("s_add_u32", S(46), S(46), L.OB)
    e("buffer_store_dwordx4", OP[0:4], l16, WS, S(46), mods="offen sc1")
    e("buffer_store_dwordx4", OP[4:8], l16, WS, S(46), mods="offen offset:1024 sc1")
    e("buffer_store_dwordx2", OP[8:10], l8, WS, S(46), mods="offen offset:2048 sc1", tag="ost")

    p.stamp("o_stored")
    XR = V(116, 10)
    xo = [V(100 + k) for k in range(5)]
    ro = [V(105 + k) for k in range(5)]
    e("s_lshl_b32", S(46), srt, 6)
    e("s_mul_i32", S(46), S(46), 1280)
    e("s_mul_i32", S(47), sct, 160)
    e("s_add_u32", S(46), S(46), S(47))
    e("s_mov_b32", S(47), 52429)
    for k in range(5):
        it, row = V(7), V(8)
        e("v_add_u32", it, 256 * k, V(0))
        e("v_mul_lo_u32", row, it, S(47))
        e("v_lshrrev_b32", row, 20, row)
        e("v_mul_u32_u24", V(9), 20, row)
        e("v_sub_u32", V(9), it, V(9))
        e("v_mul_u32_u24", V(10), 1280, row)
        e("v_lshl_add_u32", V(10), V(9), 3, V(10))
        e("v_add_u32", xo[k], S(46), V(10))
        e("v_mul_u32_u24", V(10), RPITCH, row)
        e("v_lshl_add_u32", V(10), V(9), 4, V(10))
        e("v_add_u32", ro[k], LDS_R, V(10))
        e("buffer_load_dwordx2", XR[2 * k:2 * k + 2], xo[k], XS, 0, mods="offen")

    for st in range(NPRE, depth):
        emit_groups(step_loads(st))

    ACC = lambda a, nt: A((a * 5 + nt) * 4, 4)
    sFL = S(60)
    e("s_lshl_b32", sFL, srt, 7)
    e("s_add_u32", sFL, sFL, L.FL)
    POLL = V(12)
    pollv = V(13)
    POLL_ISSUE, POLL_CHECK = 5, 6
    pending = []
    nxt = depth
    for st in range(17):
        if st >= 1 and nxt < 17 and (nxt < 12 or st > POLL_CHECK):
            want = min(17, st + depth)
            while nxt < want and (nxt < 12 or st > POLL_CHECK):
                pending += step_loads(nxt)
                nxt += 1
        if st == 1:
            p.wait_tag("ost")
            e("s_lshl_b32", S(46), sct, 2)
            e("s_add_u32", S(46), S(46), sw)
            e("s_lshl_b32", S(46), S(46), 2)
            e("s_add_u32", S(46), S(46), sFL)
            e("v_mov_b32", V(9), 1)
            e("v_mov_b32", V(10), 0)
            e("s_mov_b64", "exec", 1)
            e("buffer_store_dword", V(9), V(10), WS, S(46), mods="offen sc1")
            e("s_mov_b64", "exec", -1)
        if st == POLL_ISSUE:
            e("v_and_b32", pollv, 7, lane)
            e("v_lshlrev_b32", pollv, 2, pollv)
            e("s_lshl_b32", S(61), sw, 5)
            e("s_add_u32", S(61), S(61), sFL)
            e("buffer_load_dword", POLL, pollv, WS, S(61), mods="offen sc1")
        if st in (0, 4, 8, 12, 16):
            p.stamp(f"step{st}")
        n = 0
        for nt in range(5):
            for a in range(4):
                d = ACC(a, nt)
                e("v_mfma_f32_16x16x32_bf16", d, slot(st, 4 + nt), slot(st, a), d if st else 0)
                n += 1
                if pending and n % 2 == 0:
                    for i in pending.pop(0):
                        p.add(i)
        emit_groups(pending)
        pending = []
        if st == POLL_CHECK:
            e("v_cmp_eq_u32", "vcc", 1, POLL)
            e("s_cmp_eq_u64", "vcc", -1)
            e("s_cbranch_scc1", "L2_ready")
            p.region_begin()
            e("s_mov_b32", S(62), 0)
            p.label("L2_spin")
            e("s_add_u32", S(62), S(62), 1)
            e("s_cmp_ge_u32", S(62), 1 << 18)
            e("s_cbranch_scc1", "L2_ready")
            e("s_sleep", 2)
            e("buffer_load_dword", POLL, pollv, WS, S(61), mods="offen sc1")
            p.wait_vm0()
            e("v_cmp_eq_u32", "vcc", 1, POLL)
            e("s_cmp_eq_u64", "vcc", -1)
            e("s_cbranch_scc0", "L2_spin")
            p.label("L2_ready")
            p.region_end()

    p.stamp("loop_end")
    wa = V(7)
    e("v_mul_u32_u24", wa, RPITCH, n16)
    e("v_lshl_add_u32", wa, g_, 4, wa)
    e("s_mul_i32", S(46), sw, 64 * RPITCH)
    e("s_add_u32", S(46), S(46), LDS_R)
    e("v_add_u32", wa, S(46), wa)
    for a in range(4):
        for nt in range(5):
            e("ds_write_b128", wa, ACC(a, nt), mods=f"offset:{a * 16 * RPITCH + nt * 64}")
    p.wait_lgkm0()
    e("s_barrier")
    RB = V(16, 80)
    for k in range(5):
        for w in range(4):
            e("ds_read_b128", RB[16 * k + 4 * w:16 * k + 4 * w + 4], ro[k], mods=f"offset:{w * 64 * RPITCH}")
    e("s_mov_b32", S(46), 0xFFFF0000)
    for k in range(5):
        b = 16 * k
        for i in range(4):
            e("v_add_f32", RB[b + i], RB[b + i], RB[b + 4 + i])
            e("v_add_f32", RB[b + 8 + i], RB[b + 8 + i], RB[b + 12 + i])
        e("v_lshlrev_b32", RB[b + 4], 16, XR[2 * k])
        e("v_and_b32", RB[b + 5], S(46), XR[2 * k])
        e("v_lshlrev_b32", RB[b + 6], 16, XR[2 * k + 1])
        e("v_and_b32", RB[b + 7], S(46), XR[2 * k + 1])
        for i in range(4):
            e("v_add_f32", RB[b + i], RB[b + i], RB[b + 8 + i])
        for i in range(4):
            e("v_add_f32", RB[b + i], RB[b + i], RB[b + 4 + i])
        e("v_cvt_pk_bf16_f32", RB[b], RB[b], RB[b + 1])
        e("v_cvt_pk_bf16_f32", RB[b + 1], RB[b + 2], RB[b + 3])
        e("buffer_store_dwordx2", RB[b:b + 2], xo[k], OUT, 0, mods="offen")
    p.stamp("end")
    p.stamp("end_rt", real=True)
    if stamps:
        e("s_lshl_b32", S(46), S(2), 2)
        e("s_add_u32", S(46), S(46), sw)
        e("s_lshl_b32", S(46), S(46), 7)
        e("s_add_u32", S(46), S(46), L.WS_END)
        p.dump_stamps(WS, S(46), V(8, 2))
    p.label("L2_end")
    e("s_endpgm")
    return p
```

```python
import numpy as np

S_, D_, H_, DH, F_ = 2048, 640, 32, 20, 1536

PHIQ = 0
HB = PHIQ + 64 * 8 * 10240
OB = HB + 128 * 8 * 6144
WT = OB + 128 * 8 * 2560
KV = WT + 68 * 40 * 1024
FL = KV + 32 * 6144
WS_END = FL + 32 * 128

H_X01, H_X23, H_XL, H_YL, H_Y48, H_Y64A, H_Y64B = 0, 1024, 2048, 2560, 3072, 4096, 5120


def pair_f(F0, g, e):
    return F0 + 16 * (g & 1) + 8 * (e >> 2) + 4 * (g >> 1) + (e & 3)


def lone_f(f0, g, e4):
    return f0 + 8 * (g & 1) + 4 * (g >> 1) + e4


def krow(kappa, g, e):
    w, st = divmod(kappa, 17)
    if st < 12:
        base = 32 * (12 * w + st)
        if st % 6 == 2:
            return ("h", lone_f(base + 16 * (e >> 2), g, e & 3))
        return ("h", pair_f(base, g, e))
    if st < 16:
        ct = 2 * w + ((st - 12) >> 1)
        return ("o", 20 * (4 * ct + g) + 8 * ((st - 12) & 1) + e)
    ct = 2 * w + (e >> 2)
    return ("o", 20 * (4 * ct + g) + 16 + (e & 3))


def bf16_bits(x):
    u = np.ascontiguousarray(x, np.float32).view(np.uint32)
    return ((u + 0x7FFF + ((u >> 16) & 1)) >> 16).astype(np.uint16)


def bf16_val(b):
    return (np.ascontiguousarray(b).astype(np.uint32) << 16).view(np.float32)


def rbf(x):
    return bf16_val(bf16_bits(x))


def model(x, wqkv, wphi, wo, wg, wu, wd):
    x = x.astype(np.float32)
    mean = x.mean(-1, keepdims=True)
    var = (x * x).mean(-1, keepdims=True) - mean * mean
    rstd = 1.0 / np.sqrt(var + 1e-5)
    xn = rbf((x - mean) * rstd)
    qkv = xn @ wqkv
    q = rbf(qkv[:, :640]).reshape(S_, H_, DH)
    k = rbf(qkv[:, 640:1280]).reshape(S_, H_, DH)
    v = rbf(qkv[:, 1280:]).reshape(S_, H_, DH)
    pq = np.einsum("shd,hdf->shf", q, wphi)
    pk = np.einsum("shd,hdf->shf", k, wphi)

    def phi(p):
        a = np.exp(p - p.max(-1, keepdims=True))
        a /= a.sum(-1, keepdims=True)
        b = np.exp(-p - (-p).max(-1, keepdims=True))
        b /= b.sum(-1, keepdims=True)
        return rbf(np.concatenate([a, b], -1))

    phq, phk = phi(pq), phi(pk)
    kv = np.einsum("shf,shd->hfd", phk, v)
    z = phk.sum(0)
    kvb, zb = rbf(kv), rbf(z)
    num = np.einsum("shf,hfd->shd", phq, kvb)
    den = np.einsum("shf,hf->sh", phq, zb)[..., None] + 1e-6
    o = rbf(num / den).reshape(S_, D_)
    g = xn @ wg
    u = xn @ wu
    h = rbf(np.maximum(g, 0) * u)
    out = x + o @ wo + h @ wd
    return dict(xn=xn, phq=phq, phk=phk, v=v, kv=kv, z=z, o=o, h=h, out=out)


def pack_phiq(phq):
    b = bf16_bits(phq)
    img = np.zeros((64, 8, 10, 64, 8), np.uint16)
    for hf in range(2):
        for hh in range(2):
            for c in range(5):
                src = b.reshape(64, 32, 8, 4, 40)[:, :, :, 2 * hf + hh, 8 * c:8 * c + 8]
                img[:, :, 5 * hh + c, 32 * hf:32 * hf + 32, :] = src.transpose(0, 2, 1, 3)
    return img


def pack_h(h):
    b = bf16_bits(h).reshape(128, 16, F_)
    img = np.zeros((128, 8, 3072), np.uint16)
    lane = np.arange(64)
    g, r = lane >> 4, lane & 15
    for p in range(8):
        for off, F0 in ((H_X01, 0), (H_X23, 32), (H_Y48, 96), (H_Y64A, 128), (H_Y64B, 160)):
            for e in range(8):
                img[:, p, off // 2 + lane * 8 + e] = b[:, r, pair_f(192 * p + F0, g, e)]
        for off, f0 in ((H_XL, 64), (H_YL, 80)):
            for e in range(4):
                img[:, p, off // 2 + lane * 4 + e] = b[:, r, lone_f(192 * p + f0, g, e)]
    return img


def pack_o(o):
    b = bf16_bits(o).reshape(128, 16, D_)
    img = np.zeros((128, 8, 1280), np.uint16)
    lane = np.arange(64)
    g, r = lane >> 4, lane & 15
    for ct in range(8):
        for e in range(8):
            img[:, ct, lane * 8 + e] = b[:, r, 20 * (4 * ct + g) + e]
            img[:, ct, 512 + lane * 8 + e] = b[:, r, 20 * (4 * ct + g) + 8 + e]
        for e in range(4):
            img[:, ct, 1024 + lane * 4 + e] = b[:, r, 20 * (4 * ct + g) + 16 + e]
    return img


def pack_wt(wo, wd):
    wob, wdb = bf16_bits(wo), bf16_bits(wd)
    img = np.zeros((68, 40, 64, 8), np.uint16)
    lane = np.arange(64)
    for kappa in range(68):
        for g in range(4):
            for e in range(8):
                kind, row = krow(kappa, g, e)
                src = (wdb if kind == "h" else wob)[row].reshape(40, 16)
                img[kappa, :, 16 * g:16 * g + 16, e] = src
    return img


def pack_kv(kv, z):
    img = np.zeros((32, 24, 64), np.float32)
    for dt in range(2):
        for ft in range(3):
            for i in range(4):
                for g in range(4):
                    f = 16 * ft + 4 * g + i
                    if f >= 40:
                        continue
                    for n in range(16):
                        d = 16 * dt + n
                        if d < 20:
                            img[:, (dt * 3 + ft) * 4 + i, 16 * g + n] = kv[:, f, d]
                        elif d == 20:
                            img[:, (dt * 3 + ft) * 4 + i, 16 * g + n] = z[:, f]
    return img
```

```python
import sys
import asmlib as al, gen_l1, gen_l2

TARGET = "parallel_sum__linear_kernel_hedgehog__glu_gated_reglu__prompt.s"
HEADER = """; parallel_sum( hedgehog linear attention, gated ReGLU MLP ) on LayerNorm(x), gfx950
"""

def text(l1=None, l2=None, extra_launch=""):
    l1 = l1 or {}; l2 = l2 or {}
    p1 = gen_l1.build(**l1); p2 = gen_l2.build(**l2)
    s = HEADER
    s += f"; @launch kernel={gen_l1.NAME} grid=(256,1,1) block=(256,1,1) lds={gen_l1.LDS_BYTES}\n"
    s += f"; @launch kernel={gen_l2.NAME} grid=(256,1,1) block=(256,1,1) lds={gen_l2.LDS_BYTES}\n"
    s += extra_launch
    s += '.amdgcn_target "amdgcn-amd-amdhsa--gfx950"\n'
    s += al.kernel_text(gen_l1.NAME, al.finalize(p1, "L1"))
    s += al.kernel_text(gen_l2.NAME, al.finalize(p2, "L2"))
    return s

if __name__ == "__main__":
    out = sys.argv[1] if len(sys.argv) > 1 else TARGET
    open(out, "w").write(text())
    print("wrote", out)
```

```python
import sys
import asmlib as al, gen_all, gen_l1, gen_l2
from asmlib import *
def empty():
    p = Prog(); p.e("s_endpgm"); return al.kernel_text("empty_kernel", al.finalize(p), 8, 8)
base = gen_all.text()
EL = "; @launch kernel=empty_kernel grid=(256,1,1) block=(256,1,1) lds=0\n"
open("a.s", "w").write(base)
open("b.s", "w").write(gen_all.text(extra_launch=EL) + empty())
t = gen_all.text() + empty()
i = t.index("; @launch kernel=l1")
open("c.s", "w").write(t[:i] + EL + t[i:])
open("d.s", "w").write(gen_all.text(l1=dict(rot=False)))
open("e.s", "w").write(gen_all.text(l1=dict(st="")))
open("f.s", "w").write(gen_all.text(l1=dict(st=" nt")))
```

```python
class R:
    __slots__ = ("kind", "idx", "n")

    def __init__(self, kind, idx, n=1):
        self.kind, self.idx, self.n = kind, idx, n

    def __str__(self):
        if self.n == 1:
            return f"{self.kind}{self.idx}"
        return f"{self.kind}[{self.idx}:{self.idx + self.n - 1}]"

    __repr__ = __str__

    def regs(self):
        return [(self.kind, self.idx + i) for i in range(self.n)]

    def __getitem__(self, i):
        if isinstance(i, slice):
            a = i.start or 0
            b = self.n if i.stop is None else i.stop
            assert 0 <= a < b <= self.n, (self, i)
            return R(self.kind, self.idx + a, b - a)
        assert 0 <= i < self.n, (self, i)
        return R(self.kind, self.idx + i, 1)


def V(i, n=1):
    return R("v", i, n)


def A(i, n=1):
    return R("a", i, n)


def S(i, n=1):
    return R("s", i, n)


VCC = "vcc"
EXEC = "exec"
M0 = "m0"
SPECIAL = {"vcc": [("x", "vcc")], "exec": [("x", "exec")], "m0": [("x", "m0")]}


def regs_of(o):
    if isinstance(o, R):
        return o.regs()
    if isinstance(o, str):
        s = o.lstrip("-")
        if s in SPECIAL:
            return SPECIAL[s]
    if isinstance(o, Neg):
        return regs_of(o.r)
    return []


class Neg:
    def __init__(self, r):
        self.r = r

    def __str__(self):
        return f"-{self.r}"


TRANS = {"v_exp_f32", "v_rcp_f32", "v_rsq_f32", "v_log_f32", "v_sqrt_f32"}
DOTS = {"v_dot2c_f32_bf16", "v_dot2_f32_bf16"}
RMW = {"v_fmac_f32", "v_dot2c_f32_bf16"}
MFMA_PASSES = {"v_mfma_f32_32x32x16_bf16": 8, "v_mfma_f32_16x16x32_bf16": 4}


class I:
    __slots__ = ("op", "text", "rd", "wr", "cls", "tag", "meta")

    def __init__(self, op, text, rd, wr, cls, tag=None, meta=None):
        self.op, self.text, self.rd, self.wr, self.cls, self.tag, self.meta = op, text, rd, wr, cls, tag, meta


def fmt(o):
    if isinstance(o, float):
        import struct
        return hex(struct.unpack("<I", struct.pack("<f", o))[0])
    if isinstance(o, int):
        return str(o) if -16 <= o <= 64 else hex(o & 0xFFFFFFFF)
    return str(o)


def mk(op, *ops, mods="", tag=None):
    text = op + (" " + ", ".join(fmt(o) for o in ops) if ops else "") + ((" " + mods) if mods else "")
    rd, wr = [], []
    meta = None
    if op.startswith("v_mfma"):
        cls = "mfma"
        wr = regs_of(ops[0])
        rd = regs_of(ops[1]) + regs_of(ops[2]) + regs_of(ops[3])
        meta = dict(passes=MFMA_PASSES[op], d=set(regs_of(ops[0])), ab=set(regs_of(ops[1]) + regs_of(ops[2])),
                    c=set(regs_of(ops[3])), cfirst=(regs_of(ops[3]) or [None])[0], clen=len(regs_of(ops[3])))
    elif op.startswith("v_cmp"):
        cls = "valu"
        wr = regs_of(ops[0])
        for o in ops[1:]:
            rd += regs_of(o)
    elif op.startswith("v_permlane"):
        cls = "valu"
        wr = regs_of(ops[0]) + regs_of(ops[1])
        rd = list(wr)
    elif op.startswith("v_"):
        cls = "valu"
        wr = regs_of(ops[0])
        for o in ops[1:]:
            rd += regs_of(o)
        if op in RMW:
            rd += wr
        if op.startswith("v_cndmask") and len(ops) == 3:
            rd += SPECIAL["vcc"]
    elif op.startswith("ds_read"):
        cls = "ds"
        wr = regs_of(ops[0])
        rd = regs_of(ops[1])
        meta = dict(load=True)
    elif op.startswith("ds_"):
        cls = "ds"
        for o in ops:
            rd += regs_of(o)
        meta = dict(load=False)
    elif op.startswith("buffer_load"):
        cls = "vmem"
        if " lds" in (" " + mods):
            for o in ops:
                rd += regs_of(o)
            rd += SPECIAL["m0"]
            meta = dict(load=False, dma=True)
        else:
            wr = regs_of(ops[0])
            for o in ops[1:]:
                rd += regs_of(o)
            meta = dict(load=True)
    elif op.startswith("buffer_store") or op.startswith("buffer_atomic"):
        cls = "vmem"
        for o in ops:
            rd += regs_of(o)
        meta = dict(load=False, store=True, data=set(regs_of(ops[0])), wide=op.endswith("x4") or op.endswith("x3"))
    elif op.startswith("global_load"):
        cls = "vmem"
        wr = regs_of(ops[0])
        for o in ops[1:]:
            rd += regs_of(o)
        meta = dict(load=True)
    elif op in ("s_barrier", "s_endpgm", "s_setprio", "s_sleep"):
        cls = "misc"
    elif op == "s_nop":
        cls = "nop"
        meta = dict(n=ops[0] + 1)
    elif op.startswith("s_cbranch") or op == "s_branch":
        cls = "branch"
        if "exec" in op:
            rd = SPECIAL["exec"]
        if "vcc" in op:
            rd = SPECIAL["vcc"]
    elif op.startswith("s_load"):
        cls = "smem"
        wr = regs_of(ops[0])
        rd = regs_of(ops[1])
    elif op.startswith("s_cmp") or op.startswith("s_bitcmp"):
        cls = "salu"
        for o in ops:
            rd += regs_of(o)
    elif op.startswith("s_and_saveexec"):
        cls = "salu"
        wr = regs_of(ops[0]) + SPECIAL["exec"]
        rd = regs_of(ops[1]) + SPECIAL["exec"]
    elif op.startswith("s_"):
        cls = "salu"
        wr = regs_of(ops[0])
        for o in ops[1:]:
            rd += regs_of(o)
    else:
        raise ValueError(op)
    if cls in ("valu", "mfma", "ds", "vmem"):
        rd = rd + SPECIAL["exec"]
    return I(op, text, rd, wr, cls, tag, meta)


class Prog:
    def __init__(self):
        self.ins = []

    def add(self, i):
        self.ins.append(i)
        return i

    def e(self, op, *ops, mods="", tag=None):
        return self.add(mk(op, *ops, mods=mods, tag=tag))

    def label(self, name):
        self.add(I("label", name + ":", [], [], "label"))

    def comment(self, text):
        self.add(I("comment", "; " + text, [], [], "comment"))

    def raw(self, text):
        self.add(I("raw", text, [], [], "comment"))

    stamps_on = False
    STAMP_S0 = 64

    lane_stamps = False

    def stamp(self, name, real=False):
        if not self.stamps_on:
            return
        if self.lane_stamps:
            if not hasattr(self, "stamp_names"):
                self.stamp_names = []
            n = len(self.stamp_names)
            if n >= 2 or (n >= 1 and self.lane_ready):
                pass
            self.stamp_names.append(name)
            k = 90 + 2 * (n % 2)
            if n >= 2 and self.lane_ready:
                self.add(I("raw", f"v_writelane_b32 v0, s{k}, {n - 2}", [], [], "misc"))
            op = "s_memrealtime" if real else "s_memtime"
            self.add(I(op, f"{op} s[{k}:{k + 1}]", [], [], "misc"))
            return
        if not hasattr(self, "stamp_names"):
            self.stamp_names = []
        k = self.STAMP_S0 + 2 * len(self.stamp_names)
        assert k + 1 <= 101
        self.stamp_names.append(name)
        op = "s_memrealtime" if real else "s_memtime"
        self.add(I(op, f"{op} s[{k}:{k + 1}]", [], [], "misc"))

    lane_ready = True

    def dump_stamps(self, srd, soff_reg, vtmp):
        if not self.stamps_on:
            return
        if self.lane_stamps:
            n = len(self.stamp_names)
            self.wait_smem()
            self.wait_vm0()
            for m in (n - 2, n - 1):
                self.add(I("raw", f"v_writelane_b32 v0, s{90 + 2 * (m % 2)}, {m}", [], [], "misc"))
            self.add(I("raw", "s_nop 4", [], [], "misc"))
            self.e("buffer_store_dword", V(0), vtmp, srd, soff_reg, mods="offen")
            self.wait_vm0()
            return
        self.wait_smem()
        self.wait_vm0()
        self.e("s_mov_b64", "exec", 1)
        for n in range(len(self.stamp_names)):
            self.e("v_mov_b32", vtmp[0], S(self.STAMP_S0 + 2 * n))
            self.e("v_mov_b32", vtmp[1], 4 * n)
            self.e("buffer_store_dword", vtmp[0], vtmp[1], srd, soff_reg, mods="offen")
            self.wait_vm0()
        self.e("s_mov_b64", "exec", -1)

    def wait_tag(self, tag):
        self.add(I("wait_tag", "", [], [], "pseudo", tag))

    def wait_vm0(self):
        self.add(I("wait_vm0", "", [], [], "pseudo"))

    def wait_lgkm0(self):
        self.add(I("wait_lgkm0", "", [], [], "pseudo"))

    def wait_smem(self):
        self.add(I("wait_smem", "", [], [], "pseudo"))

    def touch(self, *regs):
        rd = []
        for r in regs:
            rd += regs_of(r)
        self.add(I("touch", "", rd, [], "pseudo"))

    def fork_save(self):
        self.add(I("fork_save", "", [], [], "pseudo"))

    def fork_restore(self):
        self.add(I("fork_restore", "", [], [], "pseudo"))

    def region_begin(self):
        self.add(I("region_begin", "", [], [], "pseudo"))

    def region_end(self):
        self.add(I("region_end", "", [], [], "pseudo"))


def wait_instr(vm=None, lgkm=None):
    parts = []
    if vm is not None:
        assert 0 <= vm <= 63
        parts.append(f"vmcnt({vm})")
    if lgkm is not None:
        assert 0 <= lgkm <= 15
        parts.append(f"lgkmcnt({lgkm})")
    return I("s_waitcnt", "s_waitcnt " + " ".join(parts), [], [], "wait")


def insert_waits(ins):
    out = []
    vm_n = 0
    lg_n = 0
    vm_done = 0
    lg_done = 0
    pend = {}
    tags = {}
    stack = []
    stats = dict(vm=0, lg=0)

    def need(kind, seq):
        nonlocal vm_done, lg_done
        if kind == "vm":
            if seq < vm_done:
                return None
            n = min(63, vm_n - seq - 1)
            vm_done = vm_n - n
            stats["vm"] += 1
            return wait_instr(vm=n)
        if seq < lg_done:
            return None
        n = min(15, lg_n - seq - 1)
        lg_done = lg_n - n
        stats["lg"] += 1
        return wait_instr(lgkm=n)

    for i in ins:
        if i.cls == "pseudo":
            if i.op == "wait_tag":
                w = need("vm", tags[i.tag])
                if w:
                    out.append(w)
            elif i.op == "wait_vm0":
                out.append(wait_instr(vm=0))
                vm_done = vm_n
            elif i.op == "wait_lgkm0":
                if lg_done < lg_n:
                    out.append(wait_instr(lgkm=0))
                lg_done = lg_n
            elif i.op == "wait_smem":
                out.append(wait_instr(lgkm=0))
                lg_done = lg_n
            elif i.op == "touch":
                worst = {}
                for r in i.rd:
                    q = pend.get(r)
                    if q and (q[0] not in worst or q[1] > worst[q[0]]):
                        worst[q[0]] = q[1]
                for k, s_ in worst.items():
                    w = need(k, s_)
                    if w:
                        out.append(w)
                for r in i.rd:
                    pend.pop(r, None)
            elif i.op == "fork_save":
                stack.append((vm_n, lg_n, vm_done, lg_done, dict(pend), dict(tags)))
            elif i.op == "fork_restore":
                vm_n, lg_n, vm_done, lg_done, pend, tags = stack.pop()
                out.append(mk("s_nop", 11))
            elif i.op == "region_begin":
                stack.append((vm_n, lg_n, vm_done, lg_done, dict(pend)))
                out.append(mk("s_nop", 11))
            elif i.op == "region_end":
                assert vm_done == vm_n or vm_n == stack[-1][0], "region must drain vmcnt"
                assert lg_done == lg_n or lg_n == stack[-1][1], "region must drain lgkmcnt"
                vm_n, lg_n, vm_done, lg_done, pend = stack.pop()
                out.append(mk("s_nop", 11))
            continue
        worst = {}
        for r in list(i.rd) + list(i.wr):
            p = pend.get(r)
            if p:
                if p[0] not in worst or p[1] > worst[p[0]]:
                    worst[p[0]] = p[1]
        for k, s in worst.items():
            w = need(k, s)
            if w:
                out.append(w)
        for r in list(i.rd) + list(i.wr):
            pend.pop(r, None)
        out.append(i)
        if i.cls == "vmem":
            if i.tag is not None:
                tags[i.tag] = vm_n
            if i.meta.get("load"):
                for r in i.wr:
                    pend[r] = ("vm", vm_n)
            vm_n += 1
        elif i.cls == "ds":
            if i.meta.get("load"):
                for r in i.wr:
                    pend[r] = ("lg", lg_n)
            lg_n += 1
    return out, stats


def isv(r):
    return r[0] in ("v", "a")


def insert_nops(ins):
    out = []
    pos = 0
    valu_w = {}
    trans_w = {}
    dot_w = {}
    sgpr_w = {}
    mfma_w = {}
    mfma_c = {}
    store_d = {}
    m0_w = -100
    exec_valu_w = -100
    nnop = 0

    for i in ins:
        if i.cls in ("label", "comment"):
            out.append(i)
            continue
        req = pos

        def after(p, n):
            nonlocal req
            req = max(req, p + 1 + n)

        if i.cls == "mfma":
            m = i.meta
            for r in i.rd:
                if r in valu_w:
                    after(valu_w[r], 2)
            for r in m["ab"]:
                if r in mfma_w:
                    after(mfma_w[r][0], {4: 8, 8: 12}[mfma_w[r][1]])
            for r in m["c"]:
                if r in mfma_w:
                    p, ps, first, ln = mfma_w[r]
                    if first == m["cfirst"] and ln == m["clen"] and ps == m["passes"]:
                        continue
                    after(p, {4: 6, 8: 10}[ps])
            for r in m["d"]:
                if r in mfma_w and r not in m["c"]:
                    after(mfma_w[r][0], {4: 6, 8: 10}[mfma_w[r][1]])
            after(exec_valu_w, 4)
        elif i.cls in ("valu", "ds", "vmem"):
            for r in list(i.rd) + list(i.wr):
                if r in mfma_w:
                    after(mfma_w[r][0], {4: 8, 8: 12}[mfma_w[r][1]])
            if i.cls == "valu":
                for r in i.wr:
                    if r in mfma_c:
                        after(mfma_c[r][0], {4: 3, 8: 7}[mfma_c[r][1]])
                    if r in store_d:
                        after(store_d[r], 2)
                for r in i.rd:
                    if r in trans_w and i.op not in TRANS:
                        after(trans_w[r], 1)
                    if r in dot_w and not (i.op in DOTS and r in i.wr):
                        after(dot_w[r], 3)
                    if r in sgpr_w:
                        after(sgpr_w[r], 2)
                for r in i.wr:
                    if r in dot_w and i.op not in DOTS:
                        after(dot_w[r], 3)
                if i.op.startswith("v_permlane"):
                    for r in i.rd:
                        if r in valu_w:
                            after(valu_w[r], 2)
                if i.op.startswith("v_readfirstlane") or i.op.startswith("v_readlane"):
                    for r in i.rd:
                        if r in valu_w:
                            after(valu_w[r], 1)
            else:
                for r in i.wr:
                    if r in store_d:
                        after(store_d[r], 1)
                if i.cls == "vmem":
                    for r in i.rd:
                        if r in sgpr_w:
                            after(sgpr_w[r], 5)
                    if i.meta.get("dma"):
                        after(m0_w, 1)
        elif i.cls in ("salu", "branch", "smem"):
            for r in i.rd:
                if r in sgpr_w:
                    after(sgpr_w[r], 4)
        while pos < req:
            n = min(req - pos, 16)
            out.append(mk("s_nop", n - 1))
            pos += n
            nnop += n
        out.append(i)
        if i.cls == "mfma":
            m = i.meta
            first = min(m["d"])
            for r in m["d"]:
                mfma_w[r] = (pos, m["passes"], first, len(m["d"]))
                valu_w.pop(r, None)
            for r in m["c"]:
                mfma_c[r] = (pos, m["passes"])
        elif i.cls == "valu":
            for r in i.wr:
                if isv(r):
                    valu_w[r] = pos
                    mfma_w.pop(r, None)
                    if i.op in TRANS:
                        trans_w[r] = pos
                    else:
                        trans_w.pop(r, None)
                    if i.op in DOTS:
                        dot_w[r] = pos
                    else:
                        dot_w.pop(r, None)
                else:
                    sgpr_w[r] = pos
                    if r == ("x", "exec"):
                        exec_valu_w = pos
        elif i.cls == "salu":
            for r in i.wr:
                sgpr_w.pop(r, None)
                if r == ("x", "m0"):
                    m0_w = pos
        elif i.cls == "vmem" and i.meta.get("store") and i.meta.get("wide"):
            for r in i.meta["data"]:
                store_d[r] = pos
        if i.cls in ("ds", "vmem"):
            for r in i.wr:
                mfma_w.pop(r, None)
                valu_w.pop(r, None)
        pos += i.meta["n"] if i.cls == "nop" else 1
    return out, nnop


def finalize(prog, verbose=None):
    ins, st = insert_waits(prog.ins)
    ins, nn = insert_nops(ins)
    if verbose:
        n = sum(1 for i in ins if i.cls not in ("label", "comment"))
        print(f"{verbose}: {n} instructions, waits vm={st['vm']} lgkm={st['lg']}, nop states={nn}")
    return "\n".join(i.text for i in ins)


KD = """
.section .rodata,"a"
.p2align 6
.amdhsa_kernel {name}
  .amdhsa_next_free_vgpr {vgpr}
  .amdhsa_next_free_sgpr 102
  .amdhsa_accum_offset {acc}
  .amdhsa_group_segment_fixed_size 0
  .amdhsa_kernarg_size 88
  .amdhsa_user_sgpr_count 2
  .amdhsa_user_sgpr_kernarg_segment_ptr 1
  .amdhsa_system_sgpr_workgroup_id_x 1
.end_amdhsa_kernel
"""


def kernel_text(name, body, vgpr=512, acc=256):
    return (f".text\n.globl {name}\n.p2align 8\n.type {name},@function\n{name}:\n" + body + "\n" +
            KD.format(name=name, vgpr=vgpr, acc=acc))
```

```python
from asmlib import V, A, S, Neg, Prog, mk
import layout as L

NAME = "parallel_sum__linear_kernel_hedgehog__glu_gated_reglu__prompt_kernel"
LDS_BYTES = 163840
SLOT = 20480
XSTG, XW = 40960, 28672
PTB = 155648
ZB = PTB + 3584
PKB, VB = 102400, 143360
WTS = 143360
LDS_T, LDS_Z2, LDS_R, RPITCH = 0, 7680, 16384, 336
LOG2E = 1.4426950408889634
OOB = 0x7FF00000
SPIN_MAX = 1 << 18

sW, sRB, sP, sROT = S(52), S(53), S(54), S(55)
sSRC, sT0, sT1, sT2, sT3 = S(56), S(57), S(58), S(59), S(60)
sMASK, sL2E, sMISC = S(61), S(62), S(63)
XS, WQ, WU, WS, PH, WD, DBG = (S(k, 4) for k in (24, 28, 32, 36, 40, 44, 48))
sROTQ, sROTU, sHB, sXP = S(20), S(21), S(22), S(23)
OUTP, WDP = S(94, 2), S(98, 2)
WREG = [S(96), S(97), S(3)]
sEX = S(100, 2)
lane, l16, l8, l4 = V(1), V(2), V(3), V(4)
RSTD, CEN = V(21), V(22)
XR = lambda s: V(96 + 4 * s, 4)
PKD = V(24, 48)
EP = V(72, 20)
TMP = [V(23), V(92), V(93), V(94), V(95)]
ACC_A, ACC_B, FB0, PHI0 = 0, 80, 160, 192

DEF = dict(rot=True, st=" sc1", ld=" sc1", q0=5, q1x=4, q1y=5, q2x=4, q2y=3, q3y=4, depth=6, d2=5, stamps=False,
           rot2=True)


def v_(op, *a, **k):
    return ("v", [mk(op, *a, **k)])


def n_(*ins):
    return ("n", list(ins))


def atomize(ins):
    out = []
    for i in ins:
        if i.cls == "valu":
            out.append(("v", [i]))
        elif i.cls in ("salu", "vmem") and out and out[-1][0] == "n" and out[-1][1][-1].cls == "salu":
            out[-1][1].append(i)
        else:
            out.append(("n", [i]))
    return out


def srd(p, k, base, nbytes):
    p.e("s_mov_b32", k[0], base[0])
    p.e("s_mov_b32", k[1], base[1])
    p.e("s_mov_b32", k[2], nbytes)
    p.e("s_mov_b32", k[3], 0x20000)


class Pass:
    def __init__(self, name, kind, nt, acc, pitch, cpr, ndata, srdreg, srcpitch, rot, voff, pat, col0):
        self.name, self.kind, self.nt, self.acc, self.pitch, self.cpr = name, kind, nt, acc, pitch, cpr
        self.ndata, self.srd, self.srcpitch, self.rot = ndata, srdreg, srcpitch, rot
        self.voff, self.pat, self.col0 = voff, pat, col0
        self.wreg = None
        self.ndma = len(voff)

    def reads(self, sl, t):
        P = self.pitch
        if self.kind == "U":
            return [(self.pat[rd], 16 * sl * P + 32 * t) for rd in range(2)]
        return [(self.pat[0], (16 * sl + 4 * rd) * P + 32 * t) for rd in range(2)]


def div_magic(n):
    return {20: 3277, 12: 5462, 10: 6554, 6: 10923}[n]


def setup_pass(p, ps, slot0, t, sc):
    e = p.e
    P = ps.pitch
    s0, s1, s2, s3 = sc
    if ps.kind == "U":
        e("s_lshr_b32", s0, sW, 1)
        e("s_mul_i32", s0, s0, 64 * P)
        e("s_and_b32", s1, sW, 1)
        e("s_mul_i32", s1, s1, 32 * P)
        e("s_add_u32", ps.wreg, s0, s1)
        e("s_lshr_b32", s2, sW, 1)
        e("s_lshl_b32", s2, s2, 2)
        e("s_and_b32", s1, sW, 1)
        e("s_lshl_b32", s1, s1, 5)
        e("s_mul_i32", s3, sP, 384)
        e("s_add_u32", s3, s3, 2 * ps.col0)
    else:
        e("s_mul_i32", ps.wreg, sW, 16 * P)
        e("s_lshl_b32", s1, sW, 4)
        e("s_mul_i32", s3, sP, 160)
    e("s_mov_b32", s0, slot0)
    for j in range(ps.ndma):
        q, row, c = t[0], t[1], t[2]
        e("v_add_u32", q, 64 * j, lane)
        e("v_mul_u32_u24", row, div_magic(ps.cpr), q)
        e("v_lshrrev_b32", row, 16, row)
        e("v_mul_u32_u24", c, ps.cpr, row)
        e("v_sub_u32", c, q, c)
        if ps.kind == "kv":
            seg = t[3]
            e("v_mul_u32_u24", seg, 52, c)
            e("v_lshrrev_b32", seg, 8, seg)
            e("v_mul_u32_u24", q, 5, seg)
            e("v_sub_u32", c, c, q)
            e("v_and_b32", q, 1, seg)
            e("v_mul_u32_u24", q, 1280, q)
            e("v_lshl_add_u32", c, c, 4, q)
            e("v_lshrrev_b32", seg, 1, seg)
            e("v_mul_u32_u24", seg, 80, seg)
            e("v_add3_u32", c, c, seg, s3)
            e("v_add_u32", c, 1280 - 1024 * (j % 4), c)
        elif ps.kind == "q":
            hf = t[3]
            e("v_mul_u32_u24", hf, 43, c)
            e("v_lshrrev_b32", hf, 8, hf)
            e("v_mul_u32_u24", q, 6, hf)
            e("v_sub_u32", c, c, q)
            e("v_min_u32", c, 4, c)
            e("v_lshlrev_b32", c, 4, c)
            e("v_mul_u32_u24", hf, 80, hf)
            e("v_add3_u32", c, c, hf, s3)
        else:
            if ps.ndata < ps.cpr:
                e("v_min_u32", c, ps.ndata - 1, c)
            e("v_lshl_add_u32", c, c, 4, s3)
            e("v_xor_b32", row, s2, row)
        e("v_add_u32", row, s1, row)
        e("v_mul_u32_u24", row, ps.srcpitch, row)
        comp = 1024 * (j % 4) if ps.kind != "kv" else 0
        if comp:
            e("v_add_u32", row, row, c)
            e("v_subrev_u32", ps.voff[j], comp, row)
        else:
            e("v_add_u32", ps.voff[j], row, c)
    G1, kh, rho, pp = t[0], t[1], t[2], t[3]
    e("v_bfe_u32", G1, lane, 4, 1)
    e("v_lshrrev_b32", kh, 5, lane)
    e("v_bfe_u32", rho, lane, 2, 2)
    e("v_and_b32", pp, 3, lane)
    e("v_lshl_add_u32", rho, kh, 3, rho)
    e("v_mul_u32_u24", rho, P, rho)
    if ps.kind == "U":
        e("v_lshl_add_u32", rho, pp, 3, rho)
        e("v_mul_u32_u24", kh, 68 * P, G1)
        e("v_add3_u32", ps.pat[0], rho, kh, s0)
        e("v_mul_u32_u24", kh, 60 * P, G1)
        e("v_add_u32", kh, 4 * P, kh)
        e("v_add3_u32", ps.pat[1], rho, kh, s0)
    else:
        half = 160 if ps.kind == "kv" else 96
        e("v_and_b32", kh, 1, pp)
        e("v_mul_u32_u24", kh, half, kh)
        e("v_add_u32", rho, rho, kh)
        e("v_lshrrev_b32", pp, 1, pp)
        e("v_lshl_add_u32", pp, G1, 1, pp)
        e("v_lshl_add_u32", rho, pp, 3, rho)
        e("v_add_u32", ps.pat[0], s0, rho)


def dma_atoms(ps, slot, first_of_pass, tag):
    out = []
    for j in range(ps.ndma):
        ins = []
        if j == 0 and first_of_pass:
            ins.append(mk("s_mov_b32", sSRC, ps.rot))
        ins.append(mk("s_add_u32", "m0", ps.wreg, slot * SLOT + (4096 if j == 4 else 0)))
        last = j == ps.ndma - 1
        ins.append(mk("buffer_load_dwordx4", ps.voff[j], ps.srd, sSRC, mods=f"offen offset:{1024 * (j % 4)} lds",
                      tag=tag if last else None))
        if last:
            step = 64 * ps.srcpitch
            ins.append(mk("s_add_u32", sSRC, sSRC, step))
            ins.append(mk("s_cmp_eq_u32", sSRC, 10 * step))
            ins.append(mk("s_cselect_b32", sSRC, 0, sSRC))
        out.append(ins)
    return out


def center_atoms(s, t0, t1):
    out = []
    for r in range(4):
        x = XR(s)[r]
        out += [v_("v_lshlrev_b32", t0, 16, x), v_("v_and_b32", t1, sMASK, x),
                v_("v_fma_f32", t0, t0, RSTD, CEN), v_("v_fma_f32", t1, t1, RSTD, CEN),
                v_("v_cvt_pk_bf16_f32", x, t0, t1)]
    return out


PHI_FRAGS = [(0, 0), (0, 1), (0, 2), (1, 0), (1, 1), (1, 2), (1, 3), (1, 4), (2, 2), (2, 3), (2, 4)]
PHI_CONST = {(0, 0): 0, (1, 0): 32, (1, 1): 792, (2, 1): 824}


def phi_addr_setup(p, regs, t):
    e = p.e
    kh, jj, par, b0 = t[0], t[1], t[2], t[3]
    e("v_lshrrev_b32", kh, 5, lane)
    e("v_bfe_u32", jj, lane, 4, 1)
    e("v_bfe_u32", par, lane, 1, 1)
    e("v_lshl_add_u32", jj, jj, 1, par)
    e("v_mul_u32_u24", b0, 1600, kh)
    e("v_bfe_u32", par, lane, 2, 2)
    e("v_mul_u32_u24", par, 40, par)
    e("v_add_u32", b0, b0, par)
    e("v_lshl_add_u32", b0, jj, 3, b0)
    e("v_add_u32", b0, PTB, b0)
    e("v_and_b32", par, 1, lane)
    e("v_mov_b32", regs[4], ZB)
    e("v_cmp_eq_u32", "vcc", par, kh)
    e("v_cndmask_b32", regs[0], regs[4], b0, "vcc")
    e("v_cmp_eq_u32", "vcc", 0, jj)
    e("v_cndmask_b32", regs[1], regs[4], regs[0], "vcc")
    e("v_cmp_le_u32", "vcc", 1, jj)
    e("v_cndmask_b32", regs[2], regs[4], regs[0], "vcc")
    e("v_cmp_ge_u32", "vcc", 1, jj)
    e("v_cndmask_b32", regs[3], regs[4], regs[0], "vcc")


def phi_read_atoms(regs):
    out = []
    sel = {(0, 0): regs[0], (1, 0): regs[1], (1, 1): regs[2], (2, 1): regs[3]}
    for idx, (tp, c) in enumerate(PHI_FRAGS):
        for rd in range(2):
            R0 = 8 * c + 4 * rd
            hl = 1 if R0 >= 20 else 0
            d0 = R0 - 20 * hl
            dst = A(PHI0 + 4 * idx + 2 * rd, 2)
            if (tp, hl) in sel:
                out.append(n_(mk("ds_read_b64_tr_b16", dst, sel[(tp, hl)], mods=f"offset:{PHI_CONST[(tp, hl)] + 40 * d0}")))
            else:
                out.append(n_(mk("ds_read_b64_tr_b16", dst, regs[4])))
    return out


def pack_atoms(acc, n, dst, t0, t1):
    out = []
    for u in range(n):
        a, b = (t0, t1) if u % 2 == 0 else (TMP[3], TMP[4])
        out += [v_("v_accvgpr_read_b32", a, A(acc + 2 * u)), v_("v_accvgpr_read_b32", b, A(acc + 2 * u + 1)),
                v_("v_cvt_pk_bf16_f32", dst[u], a, b)]
    return out


def feature_mfma_atoms(kp):
    out = []
    seen = set()
    for idx, (tp, c) in enumerate(PHI_FRAGS):
        d = PKD[16 * tp:16 * tp + 16]
        out.append(("m", [mk("v_mfma_f32_32x32x16_bf16", d, A(PHI0 + 4 * idx, 4), kp[4 * c:4 * c + 4], d if tp in seen else 0)]))
        seen.add(tp)
    return out


def softmax_atoms(hh):
    pv = [PKD[20 * hh + i] for i in range(20)]
    mx, mn, s0, s1 = TMP[0], TMP[1], TMP[2], TMP[3]
    out = [v_("v_max3_f32", mx, pv[0], pv[1], pv[2]), v_("v_min3_f32", mn, pv[0], pv[1], pv[2])]
    for i in range(3, 19, 2):
        out += [v_("v_max3_f32", mx, mx, pv[i], pv[i + 1]), v_("v_min3_f32", mn, mn, pv[i], pv[i + 1])]
    out += [v_("v_max_f32", mx, mx, pv[19]), v_("v_min_f32", mn, mn, pv[19])]
    out += [v_("v_mul_f32", mx, sL2E, mx), v_("v_mul_f32", mn, sL2E, mn)]
    for i in range(20):
        out.append(v_("v_fma_f32", EP[i], pv[i], sL2E, Neg(mx)))
        out.append(v_("v_fma_f32", pv[i], Neg(pv[i]), sL2E, mn))
    for i in range(20):
        out.append(("t", [mk("v_exp_f32", EP[i], EP[i])]))
        out.append(("t", [mk("v_exp_f32", pv[i], pv[i])]))
    out += [v_("v_add_f32", s0, EP[0], EP[1]), v_("v_add_f32", s1, pv[0], pv[1]),
            v_("v_add_f32", mx, EP[2], EP[3]), v_("v_add_f32", mn, pv[2], pv[3])]
    for i in range(4, 20, 2):
        out += [v_("v_add_f32", s0, s0, EP[i]), v_("v_add_f32", s1, s1, pv[i]),
                v_("v_add_f32", mx, mx, EP[i + 1]), v_("v_add_f32", mn, mn, pv[i + 1])]
    out += [v_("v_add_f32", s0, s0, mx), v_("v_add_f32", s1, s1, mn)]
    out += [("t", [mk("v_rcp_f32", s0, s0)]), ("t", [mk("v_rcp_f32", s1, s1)])]
    for i in range(20):
        out.append(v_("v_mul_f32", EP[i], s0, EP[i]))
    for i in range(20):
        out.append(v_("v_mul_f32", pv[i], s1, pv[i]))
    for u in range(10):
        out.append(v_("v_cvt_pk_bf16_f32", pv[u], pv[2 * u], pv[2 * u + 1]))
    for u in range(10):
        out.append(v_("v_cvt_pk_bf16_f32", pv[10 + u], EP[2 * u], EP[2 * u + 1]))
    return out


def glu_tile_atoms(acc, dst, G, U):
    out = []
    for i in range(8):
        out.append(v_("v_accvgpr_read_b32", G[i], A(acc + i)))
    for i in range(8):
        out.append(v_("v_accvgpr_read_b32", U[i], A(acc + 8 + i)))
    for i in range(8):
        out.append(v_("v_max_f32", G[i], 0, G[i]))
    for i in range(8):
        out.append(v_("v_mul_f32", U[i], G[i], U[i]))
    for q in range(4):
        out.append(v_("v_cvt_pk_bf16_f32", dst[q], U[2 * q], U[2 * q + 1]))
    return out


def h_store(data, blk, second, st, wide, tag=None):
    off = blk + (8 * 6144 if second else 0)
    ins = [mk("s_add_u32", sT0, sHB, off)]
    if wide:
        ins.append(mk("buffer_store_dwordx4", data, l16, WS, sT0, mods="offen" + st, tag=tag))
    else:
        ins.append(mk("buffer_store_dwordx2", data, l8, WS, sT0, mods="offen" + st, tag=tag))
    return n_(*ins)


def glu_atoms(acc, groups, st, regs, tag=None):
    G, U, PA, PB = regs
    out = []
    for n, (kind, t, blk) in enumerate(groups):
        tg = tag if n == len(groups) - 1 else None
        out += glu_tile_atoms(acc + 16 * t, PA, G, U)
        if kind == "pair":
            out += glu_tile_atoms(acc + 16 * (t + 1), PB, G, U)
            for q in range(4):
                out.append(v_("v_permlane16_swap_b32", PA[q], PB[q]))
            out.append(h_store(PA, blk, False, st, True))
            out.append(h_store(PB, blk, True, st, True, tg))
        else:
            out.append(v_("v_permlane16_swap_b32", PA[0], PA[2]))
            out.append(v_("v_permlane16_swap_b32", PA[1], PA[3]))
            out.append(h_store(PA[0:2], blk, False, st, False))
            out.append(h_store(PA[2:4], blk, True, st, False, tg))
    return out


def emit_atoms(p, atoms):
    for kind, ins in atoms:
        if kind == "blk":
            ins(p)
        else:
            for i in ins:
                p.add(i)


class Side:
    def __init__(self, p):
        self.p = p
        self.q = []

    def fill(self, quota, nmax=2):
        p = self.p
        n = 0
        while self.q and self.q[0][0] == "n" and n < nmax:
            for i in self.q.pop(0)[1]:
                p.add(i)
            n += 1
        n = 0
        while self.q and self.q[0][0] in ("v", "t"):
            cost = 2 if self.q[0][0] == "t" else 1
            if n + cost > quota and n > 0:
                break
            for i in self.q.pop(0)[1]:
                p.add(i)
            n += cost

    def mfmas(self, quota):
        p = self.p
        while self.q and self.q[0][0] in ("m", "blk"):
            kind, ins = self.q.pop(0)
            if kind == "blk":
                ins(p)
                continue
            for i in ins:
                p.add(i)
            self.fill(quota)

    def flush(self):
        emit_atoms(self.p, self.q)
        self.q = []


class Stream:
    def __init__(self, p, passes, ns, o):
        self.p, self.passes, self.ns, self.depth = p, passes, ns, o["depth"]
        self.frags = [(pi, s, t) for pi, ps in enumerate(passes) for s in range(40) for t in range(ps.nt)]
        self.nstage = 10 * len(passes)
        self.dmaq = []
        self.next_read = 0
        self.cur_stage = -1
        self.side = Side(p)
        self.dma_next = 0
        self.o = o

    def stage_of(self, f):
        pi, s, t = self.frags[f]
        return 10 * pi + s // 4

    def queue_stage(self):
        g = self.dma_next
        if g >= self.nstage:
            return
        ps = self.passes[g // 10]
        self.dmaq += dma_atoms(ps, g % self.ns, g % 10 == 0, f"W{g}")
        self.dma_next += 1

    def emit_dma_now(self):
        for ins in self.dmaq:
            for i in ins:
                self.p.add(i)
        self.dmaq = []

    def read_frag(self):
        f = self.next_read
        if f >= len(self.frags):
            return
        p = self.p
        pi, s, t = self.frags[f]
        ps = self.passes[pi]
        g = self.stage_of(f)
        if g != self.cur_stage:
            while self.dma_next <= g or any(i.tag == f"W{g}" for ins in self.dmaq for i in ins):
                if self.dmaq:
                    for i in self.dmaq.pop(0):
                        p.add(i)
                else:
                    self.queue_stage()
            p.wait_tag(f"W{g}")
            p.e("s_barrier")
            if g > 0 and g % 10 != 0:
                delta = ((g % self.ns) - ((g - 1) % self.ns)) * SLOT
                for r in ps.pat:
                    p.e("v_add_u32", r, delta, r)
            if g == 0:
                while self.dma_next < self.ns - 1:
                    self.queue_stage()
            else:
                self.queue_stage()
            self.cur_stage = g
        fb = FB0 + 4 * (f % 8)
        for rd, (reg, imm) in enumerate(ps.reads(s % 4, t)):
            p.e("ds_read_b64_tr_b16", A(fb + 2 * rd, 2), reg, mods=f"offset:{imm}")
        self.next_read += 1

    def prime(self):
        for _ in range(self.depth + 1):
            self.read_frag()

    def run_pass(self, pi, quota, deadline=None, hooks=None, stamp_at=()):
        p = self.p
        ps = self.passes[pi]
        idx = [f for f, fr in enumerate(self.frags) if fr[0] == pi]
        for n, f in enumerate(idx):
            _, s, t = self.frags[f]
            if hooks and n in hooks:
                hooks[n](self)
            if n in stamp_at:
                p.stamp(f"p{pi}g{n}")
            if t == 0 and deadline is not None:
                lim = deadline(s)
                while len(self.side.q) > lim:
                    emit_atoms(p, [self.side.q.pop(0)])
            d = A(ps.acc + 16 * t, 16)
            p.e("v_mfma_f32_32x32x16_bf16", d, A(FB0 + 4 * (f % 8), 4), XR(s), d if s else 0)
            crossing = self.next_read < len(self.frags) and self.stage_of(self.next_read) != self.cur_stage
            late = []
            if self.dmaq and not crossing and (n % self.o.get("dma_every", 1) == 0):
                ins = self.dmaq.pop(0)
                k = next(n_ for n_, i in enumerate(ins) if i.cls == "vmem")
                for i in ins[:k]:
                    p.add(i)
                late = ins[k:]
            self.read_frag()
            for i in late:
                p.add(i)
            if f % 2 == 0 and f + 2 < len(self.frags):
                p.touch(A(FB0 + 4 * ((f + 1) % 8), 4), A(FB0 + 4 * ((f + 2) % 8), 4))
            q = quota(n) if callable(quota) else quota
            self.side.fill(q)
            self.side.mfmas(q)


def poll_block(reg, addr, srdreg, soff, want, lab, mask=-1, imm=0):
    def blk(p):
        p.e("v_cmp_eq_u32", "vcc", want, reg)
        p.e("s_cmp_eq_u64", "vcc", mask)
        p.e("s_cbranch_scc1", lab + "_ok")
        p.region_begin()
        p.e("s_mov_b32", sT3, 0)
        p.label(lab + "_spin")
        p.e("s_add_u32", sT3, sT3, 1)
        p.e("s_cmp_ge_u32", sT3, SPIN_MAX)
        p.e("s_cbranch_scc1", lab + "_ok")
        p.e("s_sleep", 1)
        p.e("buffer_load_dword", reg, addr, srdreg, soff, mods=f"offen offset:{imm} sc1")
        p.wait_vm0()
        p.e("v_cmp_eq_u32", "vcc", want, reg)
        p.e("s_cmp_eq_u64", "vcc", mask)
        p.e("s_cbranch_scc0", lab + "_spin")
        p.label(lab + "_ok")
        p.region_end()
    return blk


def flag_store(p, vtmp, srdreg, soff, atomic=False):
    p.e("v_mov_b32", vtmp, 1)
    p.e("s_mov_b64", "exec", 1)
    if atomic:
        p.e("buffer_atomic_add", vtmp, "off", srdreg, soff, mods="sc1")
    else:
        p.e("buffer_store_dword", vtmp, "off", srdreg, soff, mods="sc1")
    p.e("s_mov_b64", "exec", -1)


def prologue_lane(p):
    e = p.e
    t = [V(23), V(24), V(25), V(26)]
    vx = [V(27 + j) for j in range(4)]
    e("v_lshrrev_b32", t[0], 3, lane)
    e("v_lshrrev_b32", t[1], 4, lane)
    e("v_and_b32", t[2], 7, lane)
    e("v_mul_u32_u24", t[0], 1280, t[0])
    for j in range(4):
        e("v_add_u32", t[3], 4 * j, t[1])
        e("v_and_b32", t[3], 7, t[3])
        e("v_xor_b32", t[3], t[3], t[2])
        e("v_lshl_add_u32", t[3], t[3], 4, t[0])
        e("v_add_u32", vx[j], 8 * 1280 * j - 1024 * j, t[3])
    return vx


def prologue(p, typ, passes, stream, o, vx):
    e = p.e
    st = o["st"]
    sXB, sXW, sPI = S(16), S(17), S(18)
    e("s_lshl_b32", sXB, sRB, 7)
    e("s_lshl_b32", sT1, sW, 5)
    e("s_add_u32", sXB, sXB, sT1)
    e("s_mul_i32", sXB, sXB, 1280)
    e("s_mul_i32", sXW, sW, XW)
    e("s_add_u32", sXW, sXW, XSTG)
    e("s_mov_b32", sPI, sROT)

    def x_piece(pi):
        e("s_add_u32", "m0", sXW, (pi % 7) * 4096)
        e("s_lshl_b32", sT2, sPI, 7)
        e("s_add_u32", sT2, sT2, sXB)
        for j in range(4):
            e("buffer_load_dwordx4", vx[j], XS, sT2, mods=f"offen offset:{1024 * j} lds", tag=f"X{pi}" if j == 3 else None)
        e("s_add_u32", sPI, sPI, 1)
        e("s_cmp_eq_u32", sPI, 10)
        e("s_cselect_b32", sPI, 0, sPI)

    NPF = o.get("xpf", 3)
    for pi in range(NPF):
        x_piece(pi)
    p.stamp("x_issued")

    q = Prog()
    f = q.e
    Z4 = V(32, 4)
    for r in range(4):
        f("v_mov_b32", Z4[r], 0)
    t = [V(42), V(43), V(44), V(45)]
    f("s_mul_i32", S(4), sP, 3200)
    f("s_mul_i32", S(5), sW, 800)
    f("s_add_u32", S(4), S(4), S(5))
    f("s_add_u32", "m0", S(5), PTB)
    q.add(mk("buffer_load_dwordx4", l16, PH, S(4), mods="offen lds", tag="PT"))
    f("v_add_u32", t[0], ZB, l16)
    f("ds_write_b128", t[0], Z4)
    f("ds_write_b128", t[0], Z4, mods="offset:1024")
    if typ == "X":
        f("s_cmp_eq_u32", sRB, 0)
        f("s_cselect_b32", S(4), 0, OOB)
        f("s_lshl_b32", S(5), sP, 2)
        f("s_add_u32", S(5), S(5), sW)
        f("s_mul_i32", S(6), S(5), L.KVS)
        f("s_add_u32", S(6), S(6), L.F_KV)
        f("s_add_u32", S(7), S(6), 4096)
        f("s_lshl_b32", S(5), S(5), 2)
        f("v_add_u32", V(36), S(4), l16)
        for k in range(6):
            f("buffer_store_dwordx4", Z4, V(36), WS, S(6) if k < 4 else S(7), mods=f"offen offset:{1024 * (k % 4)} sc1")
        f("v_add_u32", V(37), S(4), l4)
        q.add(mk("buffer_store_dword", Z4[0], V(37), WS, S(7), mods="offen offset:2048 sc1", tag="ZI"))
        f("v_mov_b32", V(37), S(5))
        f("v_add_u32", V(37), S(4), V(37))
    else:
        f("s_or_b32", S(4), sRB, sP)
        f("s_cmp_eq_u32", S(4), 0)
        f("s_cselect_b32", S(4), 0, OOB)
        f("s_mul_i32", S(6), sW, 3072)
        f("s_add_u32", S(6), S(6), L.F_FLH)
        f("s_lshl_b32", S(5), sW, 2)
        f("s_add_u32", S(5), S(5), 128)
        f("v_add_u32", V(36), S(4), l16)
        for k in range(3):
            q.add(mk("buffer_store_dwordx4", Z4, V(36), WS, S(6), mods=f"offen offset:{1024 * k} sc1", tag="ZI" if k == 2 else None))
        f("v_mov_b32", V(37), S(5))
        f("v_add_u32", V(37), S(4), V(37))
    for k, ps in enumerate(passes):
        ps.wreg = WREG[k]
    setup_pass(q, passes[0], 0, t, [S(8), S(9), S(10 + 2), S(13)])
    n_first = len(q.ins)
    for k, ps in list(enumerate(passes))[1:]:
        setup_pass(q, ps, ((10 * k) % stream.ns) * SLOT, t, [S(8), S(9), S(12), S(13)])
    phr = [V(46 + k) for k in range(5)]
    phi_addr_setup(q, phr, t)
    side = Side(p)
    first = atomize(q.ins[:n_first])
    rest = atomize(q.ins[n_first:])
    side.q = first + rest
    n_rest = len(rest)

    vr = [V(38 + k) for k in range(4)]
    tt = [V(23), V(24), V(25)]
    e("v_and_b32", tt[0], 31, lane)
    e("v_lshrrev_b32", tt[1], 5, lane)
    e("v_bfe_u32", tt[2], lane, 1, 3)
    e("v_xor_b32", tt[1], tt[1], tt[2])
    e("v_lshlrev_b32", tt[0], 7, tt[0])
    e("v_add_u32", tt[0], sXW, tt[0])
    for k in range(4):
        e("v_xor_b32", tt[2], 2 * k, tt[1])
        e("v_lshl_add_u32", vr[k], tt[2], 4, tt[0])
    ONES = V(52, 4)
    for r in range(4):
        e("v_mov_b32", ONES[r], 0x3F803F80)
    SUM, GRAM = A(ACC_B, 16), A(ACC_B + 16, 16)
    q0 = o["q0"]
    for _ in range(o.get("pre_fill", 12)):
        side.fill(q0)
    for pi in range(10):
        p.wait_tag(f"X{pi}")
        for k in range(4):
            e("ds_read_b128", XR(4 * pi + k), vr[k], mods=f"offset:{(pi % 7) * 4096}")
        if pi + NPF < 10:
            x_piece(pi + NPF)
        if pi + NPF == 10:
            while len(side.q) > n_rest:
                emit_atoms(p, [side.q.pop(0)])
            stream.queue_stage()
            stream.queue_stage()
            stream.emit_dma_now()
        for k in range(4):
            s = 4 * pi + k
            e("v_mfma_f32_32x32x16_bf16", SUM, ONES, XR(s), SUM if s else 0)
            side.fill(q0)
            e("v_mfma_f32_32x32x16_bf16", GRAM, XR(s), XR(s), GRAM if s else 0)
            side.fill(q0)
    p.stamp("x_done")
    side.flush()
    p.wait_tag("ZI")
    e("v_mov_b32", V(36), 1)
    e("s_mov_b64", "exec", 1)
    e("buffer_store_dword", V(36), V(37), DBG, 0, mods="offen sc1")
    e("s_mov_b64", "exec", -1)
    g = V(56, 16)
    for r in range(16):
        e("v_accvgpr_read_b32", g[r], A(ACC_B + 16 + r))
    mean, m = V(23), [S(4, 2), S(6, 2), S(8, 2), S(12, 2), S(14, 2)]
    e("v_accvgpr_read_b32", mean, A(ACC_B))
    for k, bit in enumerate((1, 2, 8, 16, 4)):
        e("v_and_b32", V(24), bit, lane)
        e("v_cmp_ne_u32", m[k], 0, V(24))
    for j in range(4):
        e("v_cndmask_b32", g[4 * j], g[4 * j], g[4 * j + 1], m[0])
        e("v_cndmask_b32", g[4 * j + 2], g[4 * j + 2], g[4 * j + 3], m[0])
    for j in range(4):
        e("v_cndmask_b32", g[4 * j], g[4 * j], g[4 * j + 2], m[1])
    e("v_cndmask_b32", g[0], g[0], g[4], m[2])
    e("v_cndmask_b32", g[8], g[8], g[12], m[2])
    e("v_cndmask_b32", g[0], g[0], g[8], m[3])
    e("v_mov_b32", g[1], g[0])
    e("v_mul_f32", mean, 1.0 / 640, mean)
    e("v_permlane32_swap_b32", g[0], g[1])
    e("v_cndmask_b32", g[0], g[0], g[1], m[4])
    e("v_mul_f32", g[0], 1.0 / 640, g[0])
    e("v_fma_f32", g[0], Neg(mean), mean, g[0])
    e("v_max_f32", g[0], 0, g[0])
    e("v_add_f32", g[0], 1e-5, g[0])
    e("v_rsq_f32", RSTD, g[0])
    e("v_mul_f32", CEN, mean, RSTD)
    e("v_sub_f32", CEN, 0, CEN)
    p.wait_tag("PT")
    p.wait_lgkm0()
    return phr


def run_first_pass(p, stream, quota, phr, extra, stamp_at=()):
    for s in (0, 1):
        emit_atoms(p, center_atoms(s, V(23), V(24)))
    stream.prime()
    p.stamp("primed")
    phi = phi_read_atoms(phr)
    groups = {}
    for s in range(2, 40):
        groups[s] = center_atoms(s, V(23 + 2 * (s & 1)), V(24 + 2 * (s & 1)))
        if s - 2 < len(phi):
            groups[s] = groups[s][:10] + [phi[s - 2]] + groups[s][10:]
    groups[30] = groups[30] + extra
    stream.side.q = [a for s in range(2, 40) for a in groups[s]]
    rest = lambda s: sum(len(groups[k]) for k in range(max(s, 1) + 1, 40))
    stream.run_pass(0, quota, deadline=rest, stamp_at=stamp_at)
    assert not stream.side.q


def guard_load():
    return [v_("v_and_b32", V(51), 3, lane), v_("v_lshlrev_b32", V(51), 2, V(51)),
            n_(mk("buffer_load_dword", V(52), V(51), DBG, 0, mods="offen offset:128 sc1"))]


def guard_check(lab):
    return ("blk", poll_block(V(52), V(51), DBG, 0, 1, lab, imm=128))


def kv_atoms(o):
    out = []
    pa, va, vb = V(5), V(6), V(7)
    t0, t1 = V(8), V(9)
    q = Prog()
    e = q.e
    e("v_lshrrev_b32", t0, 4, lane)
    e("v_bfe_u32", t1, lane, 2, 2)
    e("v_lshl_add_u32", t0, t0, 3, t1)
    e("v_and_b32", t1, 3, lane)
    e("v_lshlrev_b32", t1, 3, t1)
    e("v_mul_u32_u24", pa, 320, t0)
    e("v_mul_u32_u24", vb, 160, t0)
    e("s_mul_i32", S(4), sW, 80)
    e("s_add_u32", S(4), S(4), PKB)
    e("v_add3_u32", pa, pa, t1, S(4))
    e("s_mul_i32", S(5), sW, 40)
    e("s_add_u32", S(5), S(5), VB)
    e("v_add3_u32", va, vb, t1, S(5))
    e("v_add_u32", vb, S(5), vb)
    e("v_add_u32", vb, 32, vb)
    e("v_and_b32", t0, 15, lane)
    e("v_cmp_eq_u32", S(6, 2), 4, t0)
    e("v_mov_b32", t1, 0x3F803F80)
    addr = atomize(q.ins)
    KA = PKD[0:24]
    AF = [[PKD[24 + 4 * k:28 + 4 * k] for k in range(3)], [PKD[36 + 4 * k:40 + 4 * k] for k in range(3)]]
    BF = [[EP[4 * k:4 * k + 4] for k in range(2)], [EP[8 + 4 * k:12 + 4 * k] for k in range(2)]]

    def blk(p):
        e = p.e
        p.wait_lgkm0()
        e("s_barrier")

        def reads(ks):
            a, b = AF[ks % 2], BF[ks % 2]
            for rd in range(2):
                for ft in range(3):
                    e("ds_read_b64_tr_b16", a[ft][2 * rd:2 * rd + 2], pa, mods=f"offset:{(32 * ks + 4 * rd) * 320 + 32 * ft}")
                e("ds_read_b64_tr_b16", b[0][2 * rd:2 * rd + 2], va, mods=f"offset:{(32 * ks + 4 * rd) * 160}")
                e("ds_read_b64_tr_b16", b[1][2 * rd:2 * rd + 2], vb, mods=f"offset:{(32 * ks + 4 * rd) * 160}")
        reads(0)
        for ks in range(4):
            if ks < 3:
                reads(ks + 1)
            a, b = AF[ks % 2], BF[ks % 2]
            for r in range(4):
                e("v_cndmask_b32", b[1][r], b[1][r], t1, S(6, 2))
            for dt in range(2):
                for ft in range(3):
                    d = KA[(dt * 3 + ft) * 4:(dt * 3 + ft) * 4 + 4]
                    e("v_mfma_f32_16x16x32_bf16", d, a[ft], b[dt], d if ks else 0)
    sA, sB = S(8), S(9)
    post = [n_(mk("s_lshl_b32", sA, sP, 2), mk("s_add_u32", sA, sA, sW), mk("s_mul_i32", sA, sA, L.KVS),
               mk("s_add_u32", sA, sA, L.F_KV), mk("s_add_u32", sB, sA, 4096))]
    masks = {(0, 0): None, (1, 0): None, (2, 0): (0xFFFFFFFF, 0), (0, 1): (0x001F001F, 0x001F001F),
             (1, 1): (0x001F001F, 0x001F001F), (2, 1): (0x001F001F, 0)}
    last = None
    for (ft, dt), m in masks.items():
        for i in range(4):
            r = (dt * 3 + ft) * 4 + i
            off = r * 256
            ins = []
            if m:
                ins += [mk("s_mov_b32", sEX[0], m[0]), mk("s_mov_b32", sEX[1], m[1]), mk("s_mov_b64", "exec", sEX)]
            a = mk("buffer_atomic_add_f32", KA[r], l4, WS, sA if off < 4096 else sB, mods=f"offen offset:{off & 4095}")
            last = a
            ins.append(a)
            if m:
                ins.append(mk("s_mov_b64", "exec", -1))
            post.append(n_(*ins))
    last.tag = "KVA"
    return addr, blk, post, sB


def wt_round_atoms(rnd, st):
    su, sk, sc, sw_, sst, sM, sB, sC1 = S(4), S(5), S(6), S(7), S(8), S(9), S(12), S(13)
    sX, sY = S(14), S(15)
    a = []
    g = lambda *rows: a.append(n_(*[mk(*r) for r in rows]))
    g(("s_lshl_b32", su, sRB, 3), ("s_add_u32", su, su, sP), ("s_lshl_b32", su, su, 2), ("s_add_u32", su, su, sW))
    if rnd:
        g(("s_add_u32", su, su, 512), ("s_cmp_ge_u32", su, 680), ("s_cselect_b32", sX, 344, 0), ("s_sub_u32", su, su, sX))
    g(("s_mul_i32", sk, su, 52429), ("s_lshr_b32", sk, sk, 19),
      ("s_mul_i32", sX, sk, 10), ("s_sub_u32", sc, su, sX))
    g(("s_mul_i32", sw_, sk, 3856), ("s_lshr_b32", sw_, sw_, 16),
      ("s_mul_i32", sX, sw_, 17), ("s_sub_u32", sst, sk, sX))
    g(("s_mul_i32", sB, sw_, 12), ("s_add_u32", sB, sB, sst), ("s_lshl_b32", sB, sB, 5))
    g(("s_cmp_eq_u32", sst, 2), ("s_cselect_b32", sX, 1, 0), ("s_cmp_eq_u32", sst, 8), ("s_cselect_b32", sX, 1, sX))
    g(("s_cmp_eq_u32", sX, 1), ("s_cselect_b32", sM, 16, 8), ("s_cselect_b32", sC1, 8, 16))
    g(("s_sub_u32", sX, sst, 12), ("s_lshr_b32", sY, sX, 1), ("s_mul_i32", sY, sY, 80), ("s_and_b32", sX, sX, 1))
    g(("s_lshl_b32", sX, sX, 3), ("s_add_u32", sY, sY, sX), ("s_mul_i32", su, sw_, 160))
    g(("s_cmp_eq_u32", sst, 16), ("s_cselect_b32", sY, 16, sY), ("s_cselect_b32", sX, 80, 4), ("s_add_u32", sY, sY, su))
    g(("s_cmp_ge_u32", sst, 12), ("s_cselect_b32", sB, sY, sB), ("s_cselect_b32", sM, sX, sM),
      ("s_cselect_b32", sC1, 20, sC1), ("s_cselect_b32", sX, 40, 4),
      ("s_cselect_b32", WD[0], S(10), WDP[0]), ("s_cselect_b32", WD[1], S(11), WDP[1]))
    g(("s_cmp_ge_u32", sst, 12), ("s_mov_b32", WD[2], 1536 * 640 * 2), ("s_cselect_b32", WD[2], 640 * 640 * 2, WD[2]),
      ("s_mov_b32", WD[3], 0x20000))
    g(("s_mul_i32", su, sw_, 10), ("s_add_u32", su, su, sc), ("s_lshl_b32", su, su, 5), ("s_add_u32", su, su, sst))
    g(("s_lshl_b32", su, su, 2), ("s_add_u32", sst, su, L.F_FLW))
    t0, t1, vo = TMP[0], TMP[1], TMP[2]
    a.append(v_("v_lshrrev_b32", t0, 5, lane))
    a.append(v_("v_mul_u32_u24", t0, sM, t0))
    a.append(v_("v_bfe_u32", t1, lane, 3, 2))
    a.append(v_("v_add_u32", t0, t0, t1))
    a.append(v_("v_mul_u32_u24", t0, 1280, t0))
    a.append(v_("v_and_b32", t1, 7, lane))
    a.append(v_("v_lshl_add_u32", vo, t1, 4, t0))
    g(("s_lshl_b32", su, sc, 7), ("s_lshl_b32", sw_, sW, 12), ("s_add_u32", sw_, sw_, WTS))
    for j in range(4):
        ins = [mk("s_mov_b32", "m0", sw_), mk("s_mul_i32", sY, sC1, j & 1), mk("s_add_u32", sY, sY, sB)]
        if j >> 1:
            ins.append(mk("s_add_u32", sY, sY, sX))
        ins += [mk("s_mul_i32", sY, sY, 1280), mk("s_add_u32", sY, sY, su)]
        if j:
            ins.append(mk("s_sub_u32", sY, sY, 1024 * j))
        ins.append(mk("buffer_load_dwordx4", vo, WD, sY, mods=f"offen offset:{1024 * j} lds", tag=f"WT{rnd}" if j == 3 else None))
        a.append(n_(*ins))
    b = []
    ra = TMP[0]
    b.append(v_("v_lshrrev_b32", ra, 4, lane))
    b.append(v_("v_bfe_u32", t1, lane, 2, 2))
    b.append(v_("v_lshl_add_u32", ra, ra, 3, t1))
    b.append(v_("v_lshlrev_b32", ra, 7, ra))
    b.append(v_("v_and_b32", t1, 3, lane))
    b.append(v_("v_lshl_add_u32", ra, t1, 3, ra))
    b.append(n_(mk("s_lshl_b32", sY, sW, 12), mk("s_add_u32", sY, sY, WTS)))
    b.append(v_("v_add_u32", ra, sY, ra))
    b.append(("blk", lambda p: p.wait_tag(f"WT{rnd}")))
    FR = PKD[0:16]
    for nt in range(4):
        for rd in range(2):
            b.append(n_(mk("ds_read_b64_tr_b16", FR[4 * nt + 2 * rd:4 * nt + 2 * rd + 2], ra, mods=f"offset:{rd * 512 + 32 * nt}")))
    b.append(n_(mk("s_mul_i32", sY, sk, 40), mk("s_lshl_b32", su, sc, 2), mk("s_add_u32", sY, sY, su),
                mk("s_lshl_b32", sY, sY, 10), mk("s_add_u32", sY, sY, L.F_WT)))
    for nt in range(4):
        b.append(n_(mk("buffer_store_dwordx4", FR[4 * nt:4 * nt + 4], l16, WS, sY, mods=f"offen offset:{1024 * nt}" + st,
                       tag=f"WS{rnd}" if nt == 3 else None)))

    def flag(p):
        p.wait_tag(f"WS{rnd}")
        flag_store(p, TMP[1], WS, sst)
    return a, b, ("blk", flag), sst


def o_stage_atoms(o):
    st = o["st"]
    out = []
    KVR = V(96, 24)
    AB = [V(120 + 4 * i, 4) for i in range(8)]
    OA = V(152, 32)
    OP = [V(184, 10), V(194, 10)]
    t0, t1, ta, aa = V(204), V(205), V(206), V(207)
    Z4 = V(160, 4)
    sA, sB = S(80), S(81)
    POLL, PADDR = V(204), V(205)
    out += [v_("v_and_b32", PADDR, 3, lane), v_("v_mul_u32_u24", PADDR, L.KVS, PADDR),
            n_(mk("s_mul_i32", sA, sP, 4 * L.KVS), mk("s_add_u32", sA, sA, L.F_KV + 6144)),
            n_(mk("buffer_load_dword", POLL, PADDR, WS, sA, mods="offen sc1")),
            ("blk", poll_block(POLL, PADDR, WS, sA, 16, "Y_kc"))]
    out += [n_(mk("s_lshl_b32", sA, sP, 2), mk("s_add_u32", sA, sA, sW), mk("s_mul_i32", sA, sA, L.KVS),
               mk("s_add_u32", sA, sA, L.F_KV), mk("s_add_u32", sB, sA, 4096))]
    for r in range(24):
        off = r * 256
        out.append(n_(mk("buffer_load_dword", KVR[r], l4, WS, sA if off < 4096 else sB, mods=f"offen offset:{off & 4095} sc1")))
    for r in range(4):
        out.append(v_("v_mov_b32", Z4[r], 0))
    out.append(v_("v_add_u32", t0, LDS_Z2, l16))
    for k in range(4):
        out.append(n_(mk("ds_write_b128", t0, Z4, mods=f"offset:{1024 * k}")))
    out += [v_("v_and_b32", t0, 15, lane), v_("v_lshrrev_b32", t1, 4, lane), v_("v_mul_u32_u24", ta, 80, t0),
            v_("v_lshl_add_u32", ta, t1, 3, ta), n_(mk("s_mul_i32", sA, sW, 1920)), v_("v_add_u32", ta, sA, ta)]
    for dt in range(2):
        for ft in range(3):
            r0 = (dt * 3 + ft) * 4
            out.append(v_("v_cvt_pk_bf16_f32", KVR[r0], KVR[r0], KVR[r0 + 1]))
            out.append(v_("v_cvt_pk_bf16_f32", KVR[r0 + 1], KVR[r0 + 2], KVR[r0 + 3]))
    masks = {(0, 0): None, (1, 0): None, (2, 0): (0xFFFFFFFF, 0), (0, 1): (0x00FF00FF, 0x00FF00FF),
             (1, 1): (0x00FF00FF, 0x00FF00FF), (2, 1): (0x00FF00FF, 0)}
    for (ft, dt), m in masks.items():
        r0 = (dt * 3 + ft) * 4
        ins = []
        if m:
            ins += [mk("s_mov_b32", sEX[0], m[0]), mk("s_mov_b32", sEX[1], m[1]), mk("s_mov_b64", "exec", sEX)]
        ins.append(mk("ds_write_b64", ta, KVR[r0:r0 + 2], mods=f"offset:{LDS_T + dt * 16 * 80 + ft * 32}"))
        if m:
            ins.append(mk("s_mov_b64", "exec", -1))
        out.append(n_(*ins))
    out += [v_("v_lshrrev_b32", t0, 5, lane), v_("v_bfe_u32", t1, lane, 2, 1),
            v_("v_cmp_eq_u32", "vcc", t0, t1),
            v_("v_mul_u32_u24", t0, 2 * 1920, t0), v_("v_bfe_u32", t1, lane, 3, 2), v_("v_lshlrev_b32", t1, 2, t1),
            v_("v_and_b32", aa, 3, lane), v_("v_add_u32", t1, t1, aa), v_("v_mul_u32_u24", t1, 80, t1),
            v_("v_add_u32", t0, t0, t1), v_("v_mov_b32", t1, LDS_Z2), v_("v_cndmask_b32", aa, t1, t0, "vcc")]

    def bar(p):
        p.wait_lgkm0()
        p.e("s_barrier")
    out.append(("blk", bar))
    for hh in range(2):
        seq = [(u, c) for u in range(2) for c in range(5)]
        rd = lambda n: n_(mk("ds_read_b128", AB[n % 8], aa, mods=f"offset:{u_off(hh, seq[n])}"))
        for n in range(6):
            out.append(rd(n))
        for n, (u, c) in enumerate(seq):
            d = OA[16 * u:16 * u + 16]
            out.append(("m", [mk("v_mfma_f32_32x32x16_bf16", d, AB[n % 8], PKD[20 * hh + 4 * c:20 * hh + 4 * c + 4], d if c else 0)]))
            if n + 6 < len(seq):
                out.append(rd(n + 6))
        out += [v_("v_add_f32", t0, 1e-6, OA[20]), ("t", [mk("v_rcp_f32", t0, t0)])]
        for d in range(20):
            out.append(v_("v_mul_f32", OA[d], t0, OA[d]))
        for q in range(10):
            out.append(v_("v_cvt_pk_bf16_f32", OP[hh][q], OA[2 * q], OA[2 * q + 1]))
    for q in range(10):
        out.append(v_("v_permlane16_swap_b32", OP[0][q], OP[1][q]))
    out.append(n_(mk("s_lshl_b32", sA, sRB, 3), mk("s_lshl_b32", sB, sW, 1), mk("s_add_u32", sA, sA, sB),
                  mk("s_lshl_b32", sA, sA, 3), mk("s_add_u32", sA, sA, sP), mk("s_mul_i32", sA, sA, 2560),
                  mk("s_add_u32", sA, sA, L.F_OB), mk("s_add_u32", sB, sA, 8 * 2560)))
    for h, sx in ((0, sA), (1, sB)):
        d = OP[h]
        out.append(n_(mk("buffer_store_dwordx4", d[0:4], l16, WS, sx, mods="offen" + st)))
        out.append(n_(mk("buffer_store_dwordx4", d[4:8], l16, WS, sx, mods="offen offset:1024" + st)))
        out.append(n_(mk("buffer_store_dwordx2", d[8:10], l8, WS, sx, mods="offen offset:2048" + st, tag="OST" if h else None)))

    def flag(p):
        p.wait_tag("OST")
        p.e("s_lshl_b32", sA, sRB, 1)
        p.e("s_lshr_b32", sB, sW, 1)
        p.e("s_add_u32", sA, sA, sB)
        p.e("s_lshl_b32", sA, sA, 3)
        p.e("s_add_u32", sA, sA, sP)
        p.e("s_lshl_b32", sA, sA, 1)
        p.e("s_and_b32", sB, sW, 1)
        p.e("s_add_u32", sA, sA, sB)
        p.e("s_lshl_b32", sA, sA, 2)
        p.e("s_add_u32", sA, sA, L.F_FLO)
        flag_store(p, t0, WS, sA)
    return out, ("blk", flag)


def u_off(hh, uc):
    u, c = uc
    return LDS_T + hh * 1920 + u * 16 * 80 + c * 16


def h_flag(p, typ):
    e = p.e
    p.wait_tag("HST")
    e("s_lshl_b32", sT0, sRB, 1)
    e("s_lshr_b32", sT1, sW, 1)
    e("s_add_u32", sT0, sT0, sT1)
    e("s_lshl_b32", sT0, sT0, 3)
    e("s_add_u32", sT0, sT0, sP)
    e("s_lshl_b32", sT0, sT0, 2)
    e("s_and_b32", sT1, sW, 1)
    e("s_add_u32", sT0, sT0, sT1)
    if typ == "Y":
        e("s_add_u32", sT0, sT0, 2)
    e("s_lshl_b32", sT0, sT0, 2)
    e("s_add_u32", sT0, sT0, L.F_FLH)
    flag_store(p, TMP[0], WS, sT0)


def phase2(p, typ, o):
    e = p.e
    ld = o["ld"]
    D = o["d2"]
    srt, sct, sR = S(20), S(21), S(22)
    sH0, sO0, sW0, sFH, sFO, sFW = S(24), S(25), S(26), S(27), S(28), S(29)
    OUT, XS2 = S(32, 4), S(40, 4)
    sST = [S(4 + k) for k in range(12)]
    sOI = [S(16 + k) for k in range(4)]
    tmp_s = [S(82 + k) for k in range(8)]
    ti = [0]

    def ts():
        ti[0] += 1
        return tmp_s[ti[0] % len(tmp_s)]

    e("s_and_b32", sT0, S(2), 7)
    e("s_lshr_b32", sT1, S(2), 3)
    e("s_lshr_b32", srt, sT0, 1)
    e("s_lshl_b32", srt, srt, 3)
    e("s_and_b32", sT2, sT1, 7)
    e("s_add_u32", srt, srt, sT2)
    e("s_and_b32", sct, sT0, 1)
    e("s_lshl_b32", sct, sct, 2)
    e("s_lshr_b32", sT3, sT1, 3)
    e("s_add_u32", sct, sct, sT3)
    if o["rot2"]:
        e("s_mul_i32", sT3, sT3, 3)
        e("s_add_u32", sR, sT3, sT2)
        e("s_cmp_ge_u32", sR, 10)
        e("s_cselect_b32", sT3, 10, 0)
        e("s_sub_u32", sR, sR, sT3)
    else:
        e("s_mov_b32", sR, 0)
    e("s_mov_b32", XS2[0], XS[0])
    e("s_mov_b32", XS2[1], XS[1])
    e("s_mov_b32", XS2[2], 2048 * 640 * 2)
    e("s_mov_b32", XS2[3], 0x20000)
    srd(p, OUT, OUTP, 2048 * 640 * 2)
    pos_pair = [0, 1, 3, 4, 5, 6, 7, 9, 10, 11]
    e("s_mov_b32", sT0, sR)
    for n, pos in enumerate(pos_pair):
        e("s_cmp_ge_u32", sT0, 2)
        e("s_cselect_b32", sT1, 1, 0)
        e("s_add_u32", sT1, sT1, sT0)
        e("s_cmp_ge_u32", sT0, 7)
        e("s_cselect_b32", sT2, 1, 0)
        e("s_add_u32", sT1, sT1, sT2)
        e("s_lshl_b32", sST[pos], sT1, 10)
        if n < 9:
            e("s_add_u32", sT0, sT0, 1)
            e("s_cmp_eq_u32", sT0, 10)
            e("s_cselect_b32", sT0, 0, sT0)
    e("s_and_b32", sT0, sR, 1)
    e("s_mul_i32", sT1, sT0, 6 * 1024)
    e("s_add_u32", sST[2], sT1, 2048)
    e("s_sub_u32", sST[8], 2048 + 6 * 1024, sT1)
    for n in range(4):
        e("s_add_u32", sT0, sR, n)
        e("s_and_b32", sOI[n], sT0, 3)
    e("s_lshl_b32", sT0, srt, 5)
    e("s_lshl_b32", sT1, sW, 1)
    e("s_add_u32", sT0, sT0, sT1)
    e("s_mul_i32", sH0, sT0, 6144)
    if L.F_HB:
        e("s_add_u32", sH0, sH0, L.F_HB)
    e("s_mul_i32", sO0, sT0, 2560)
    e("s_add_u32", sO0, sO0, L.F_OB)
    e("s_mul_i32", sW0, sW, 17 * 40)
    e("s_mul_i32", sT1, sct, 5)
    e("s_add_u32", sW0, sW0, sT1)
    e("s_lshl_b32", sW0, sW0, 10)
    e("s_add_u32", sW0, sW0, L.F_WT)
    e("s_lshl_b32", sT0, srt, 3)
    e("s_lshl_b32", sT1, sW, 1)
    e("s_add_u32", sT0, sT0, sT1)
    e("s_lshl_b32", sFH, sT0, 4)
    e("s_add_u32", sFH, sFH, L.F_FLH)
    e("s_lshl_b32", sFO, sT0, 3)
    e("s_add_u32", sFO, sFO, L.F_FLO)
    e("s_mul_i32", sT0, sct, 80)
    e("s_lshr_b32", sT0, sT0, 6)
    e("s_mul_i32", sT1, sW, 10)
    e("s_add_u32", sT0, sT0, sT1)
    e("s_lshl_b32", sFW, sT0, 7)
    e("s_add_u32", sFW, sFW, L.F_FLW)
    vA = [V(5 + a) for a in range(4)]
    vL = [V(9 + a) for a in range(4)]
    vO = [V(13 + a) for a in range(4)]
    vR = [V(17 + a) for a in range(4)]
    vW4 = V(21)
    for a in range(4):
        e("v_add_u32", vA[a], 49152 * a, l16)
        e("v_add_u32", vL[a], 49152 * a, l8)
        e("v_add_u32", vO[a], 20480 * a, l16)
        e("v_add_u32", vR[a], 20480 * a, l8)
    e("v_add_u32", vW4, 4096, l16)
    POLL, PA_ = V(22), V(23)
    e("v_and_b32", PA_, 31, lane)
    e("v_min_u32", PA_, 16, PA_)
    e("v_lshrrev_b32", POLL, 5, lane)
    e("v_lshlrev_b32", POLL, 7, POLL)
    e("v_lshl_add_u32", PA_, PA_, 2, POLL)
    e("buffer_load_dword", POLL, PA_, WS, sFW, mods="offen sc1")
    poll_block(POLL, PA_, WS, sFW, 1, typ + "_fw")(p)
    p.stamp("p2_wflag")

    pool = [A(80 + 4 * i, 4) for i in range(44)] + [V(208 + 4 * i, 4) for i in range(12)]
    assert D * 9 <= len(pool)
    slot = lambda s_, i: pool[(s_ % D) * 9 + i]

    def w_loads(pos):
        s_ = ts()
        if pos < 12:
            if pos in (2, 8):
                pre = [mk("s_mul_i32", s_, sST[pos], 40), mk("s_add_u32", s_, s_, sW0)]
            else:
                pre = [mk("s_mul_i32", s_, sST[pos], 40), mk("s_add_u32", s_, s_, sW0)]
        elif pos < 16:
            pre = [mk("s_add_u32", s_, sOI[pos - 12], 12), mk("s_mul_i32", s_, s_, 40960), mk("s_add_u32", s_, s_, sW0)]
        else:
            pre = [mk("s_add_u32", s_, sW0, 16 * 40960)]
        out = []
        for nt in range(5):
            i = mk("buffer_load_dwordx4", slot(pos, 4 + nt), l16 if nt < 4 else vW4, WS, s_,
                   mods=f"offen offset:{1024 * (nt % 4)}" + ld)
            out.append((pre if nt == 0 else []) + [i])
        return out

    def a_loads(pos):
        s_ = ts()
        out = []
        if pos < 12:
            pre = [mk("s_add_u32", s_, sST[pos], sH0)]
            for a in range(4):
                q = slot(pos, a)
                if pos in (2, 8):
                    out.append((pre if a == 0 else []) + [mk("buffer_load_dwordx2", q[0:2], vL[a], WS, s_, mods="offen" + ld)])
                    out.append([mk("buffer_load_dwordx2", q[2:4], vL[a], WS, s_, mods="offen offset:512" + ld)])
                else:
                    out.append((pre if a == 0 else []) + [mk("buffer_load_dwordx4", q, vA[a], WS, s_, mods="offen" + ld)])
        elif pos < 16:
            s2 = ts()
            pre = [mk("s_lshr_b32", s_, sOI[pos - 12], 1), mk("s_mul_i32", s_, s_, 2560), mk("s_and_b32", s2, sOI[pos - 12], 1),
                   mk("s_lshl_b32", s2, s2, 10), mk("s_add_u32", s_, s_, s2), mk("s_add_u32", s_, s_, sO0)]
            for a in range(4):
                out.append((pre if a == 0 else []) + [mk("buffer_load_dwordx4", slot(pos, a), vO[a], WS, s_, mods="offen" + ld)])
        else:
            pre = [mk("s_add_u32", s_, sO0, 2048)]
            for a in range(4):
                q = slot(pos, a)
                out.append((pre if a == 0 else []) + [mk("buffer_load_dwordx2", q[0:2], vR[a], WS, s_, mods="offen" + ld)])
                out.append([mk("buffer_load_dwordx2", q[2:4], vR[a], WS, s_, mods="offen offset:2560" + ld)])
        return out

    def emit_groups(gs):
        for grp in gs:
            for i in grp:
                p.add(i)

    for pos in range(D):
        emit_groups(w_loads(pos))
    XRES = V(74, 10)
    xo = [V(64 + k) for k in range(5)]
    ro = [V(69 + k) for k in range(5)]
    e("s_lshl_b32", sT0, srt, 6)
    e("s_mul_i32", sT0, sT0, 1280)
    e("s_mul_i32", sT1, sct, 160)
    e("s_add_u32", sT0, sT0, sT1)
    e("s_mov_b32", sT1, 52429)
    for k in range(5):
        it, row, c4, tt = V(84), V(85), V(86), V(87)
        e("s_lshl_b32", sT2, sW, 6)
        e("s_add_u32", sT2, sT2, 256 * k)
        e("v_add_u32", it, sT2, lane)
        e("v_mul_lo_u32", row, it, sT1)
        e("v_lshrrev_b32", row, 20, row)
        e("v_mul_u32_u24", c4, 20, row)
        e("v_sub_u32", c4, it, c4)
        e("v_mul_u32_u24", tt, 1280, row)
        e("v_lshl_add_u32", tt, c4, 3, tt)
        e("v_add_u32", xo[k], sT0, tt)
        e("v_mul_u32_u24", tt, RPITCH, row)
        e("v_lshl_add_u32", tt, c4, 4, tt)
        e("v_add_u32", ro[k], LDS_R, tt)
        e("buffer_load_dwordx2", XRES[2 * k:2 * k + 2], xo[k], XS2, 0, mods="offen")
    e("v_and_b32", PA_, 7, lane)
    e("v_lshlrev_b32", PA_, 2, PA_)
    e("buffer_load_dword", POLL, PA_, WS, sFH, mods="offen sc1")
    poll_block(POLL, PA_, WS, sFH, 1, typ + "_fh")(p)
    p.stamp("p2_hflag")
    for pos in range(D):
        emit_groups(a_loads(pos))

    side = Side(p)
    oflag = None
    if typ == "Y":
        side.q, oflag = o_stage_atoms(o)
        side.q = side.q + [oflag]
    ACC = lambda a, nt: A((a * 5 + nt) * 4, 4)
    OCHK = o.get("ochk", 7)
    nxt = D
    for pos in range(17):
        pending = []
        if pos >= 1:
            want = min(17, pos + D)
            while nxt < want and (nxt < 12 or pos > OCHK):
                pending += w_loads(nxt) + a_loads(nxt)
                nxt += 1
        if pos == OCHK - 1:
            e("v_and_b32", PA_, 3, lane)
            e("v_lshlrev_b32", PA_, 2, PA_)
            e("buffer_load_dword", POLL, PA_, WS, sFO, mods="offen sc1")
        if pos in (0, 6, 12):
            p.stamp(f"p2_s{pos}")
        n = 0
        for nt in range(5):
            for a in range(4):
                d = ACC(a, nt)
                e("v_mfma_f32_16x16x32_bf16", d, slot(pos, 4 + nt), slot(pos, a), d if pos else 0)
                n += 1
                if pending and n % 2 == 0:
                    for i in pending.pop(0):
                        p.add(i)
                if side.q and n % 2 == 1:
                    side.fill(o.get("q4", 3), nmax=1)
                    side.mfmas(o.get("q4", 3))
        emit_groups(pending)
        if pos == OCHK:
            side.flush()
            poll_block(POLL, PA_, WS, sFO, 1, typ + "_fo")(p)
    p.stamp("p2_loop")

    g_, n16, wa = V(84), V(85), V(86)
    e("v_lshrrev_b32", g_, 4, lane)
    e("v_and_b32", n16, 15, lane)
    e("v_mul_u32_u24", wa, RPITCH, n16)
    e("v_lshl_add_u32", wa, g_, 4, wa)
    e("s_mul_i32", sT0, sW, 64 * RPITCH)
    e("s_add_u32", sT0, sT0, LDS_R)
    e("v_add_u32", wa, sT0, wa)
    for a in range(4):
        for nt in range(5):
            e("ds_write_b128", wa, ACC(a, nt), mods=f"offset:{a * 16 * RPITCH + nt * 64}")
    p.wait_lgkm0()
    e("s_barrier")
    RB = V(96, 80)
    for k in range(5):
        for w in range(4):
            e("ds_read_b128", RB[16 * k + 4 * w:16 * k + 4 * w + 4], ro[k], mods=f"offset:{w * 64 * RPITCH}")
    e("s_mov_b32", sT0, 0xFFFF0000)
    for k in range(5):
        b = 16 * k
        for i in range(4):
            e("v_add_f32", RB[b + i], RB[b + i], RB[b + 4 + i])
            e("v_add_f32", RB[b + 8 + i], RB[b + 8 + i], RB[b + 12 + i])
        e("v_lshlrev_b32", RB[b + 4], 16, XRES[2 * k])
        e("v_and_b32", RB[b + 5], sT0, XRES[2 * k])
        e("v_lshlrev_b32", RB[b + 6], 16, XRES[2 * k + 1])
        e("v_and_b32", RB[b + 7], sT0, XRES[2 * k + 1])
        for i in range(4):
            e("v_add_f32", RB[b + i], RB[b + i], RB[b + 8 + i])
        for i in range(4):
            e("v_add_f32", RB[b + i], RB[b + i], RB[b + 4 + i])
        e("v_cvt_pk_bf16_f32", RB[b], RB[b], RB[b + 1])
        e("v_cvt_pk_bf16_f32", RB[b + 1], RB[b + 2], RB[b + 3])
        e("buffer_store_dwordx2", RB[b:b + 2], xo[k], OUT, 0, mods="offen")
    p.stamp("end")


def body_x(p, o, vx):
    st = o["st"]
    kv = Pass("kv", "kv", 5, ACC_A, 320, 20, 20, WQ, 3840, sROTQ, [V(5 + j) for j in range(5)], [V(16)], 0)
    u80 = Pass("u80", "U", 5, ACC_B, 160, 10, 10, WU, 3072, sROTU, [V(10 + j) for j in range(5)], [V(17), V(18)], 0)
    stream = Stream(p, [kv, u80], 5, o)
    phr = prologue(p, "X", [kv, u80], stream, o, vx)
    run_first_pass(p, stream, o["q1x"], phr, guard_load(), o.get("sx0", ()))
    p.stamp("pass1")
    vPK, vV = V(19), V(20)
    side = [guard_check("X_g")]
    side += [v_("v_and_b32", TMP[0], 31, lane), n_(mk("s_lshl_b32", sT0, sW, 5)), v_("v_add_u32", TMP[0], sT0, TMP[0]),
             v_("v_lshrrev_b32", TMP[1], 5, lane), v_("v_mul_u32_u24", vPK, 320, TMP[0]), v_("v_mul_u32_u24", vV, 160, TMP[0]),
             v_("v_mul_u32_u24", TMP[2], 160, TMP[1]), v_("v_mul_u32_u24", TMP[1], 80, TMP[1]),
             v_("v_add_u32", vPK, vPK, TMP[2]), v_("v_add_u32", vV, vV, TMP[1]),
             v_("v_add_u32", vPK, PKB, vPK), v_("v_add_u32", vV, VB, vV)]
    side += pack_atoms(ACC_A, 20, EP, TMP[0], TMP[1])
    side += feature_mfma_atoms(EP)
    side += pack_atoms(ACC_A + 40, 20, EP, TMP[0], TMP[1])
    for c in range(5):
        side.append(n_(mk("ds_write_b128", vV, EP[4 * c:4 * c + 4], mods=f"offset:{16 * c}")))
    POLL, PADDR = V(51 - 46 + 10), V(51 - 46 + 11)
    side += [n_(mk("s_lshl_b32", sT0, sP, 2), mk("s_add_u32", sT0, sT0, sW), mk("s_lshl_b32", sMISC, sT0, 2)),
             v_("v_mov_b32", PADDR, 0),
             n_(mk("buffer_load_dword", POLL, PADDR, DBG, sMISC, mods="offen sc1"))]
    addr, kvblk, post, sB = kv_atoms(o)
    for hh in range(2):
        side += softmax_atoms(hh)
        if hh == 1:
            side += addr
        for c in range(5):
            side.append(n_(mk("ds_write_b128", vPK, PKD[20 * hh + 4 * c:20 * hh + 4 * c + 4], mods=f"offset:{80 * hh + 16 * c}")))
    side.append(("blk", lambda p_: p_.stamp("softmax_done")))
    side.append(("blk", poll_block(POLL, PADDR, DBG, sMISC, 1, "X_z")))
    side.append(("blk", kvblk))
    side += post
    side.append(("blk", lambda p_: p_.stamp("kv_done")))
    stream.side.q = side
    stream.run_pass(1, o["q2x"], stamp_at=o.get("sx1", ()))
    stream.side.flush()
    p.stamp("pass2")
    p.wait_lgkm0()
    p.e("s_barrier")
    G, U = EP[0:8], EP[8:16]
    PA, PB = PKD[40:44], PKD[44:48]
    atoms = glu_atoms(ACC_B, [("pair", 0, L.H_X01), ("pair", 2, L.H_X23), ("lone", 4, L.H_XL)], st, (G, U, PA, PB), tag="HST")
    emit_atoms(p, atoms)
    p.wait_tag("KVA")
    p.e("s_add_u32", sT0, sB, 2048)
    flag_store(p, TMP[0], WS, sT0, atomic=True)
    h_flag(p, "X")
    p.stamp("p1_end")
    phase2(p, "X", o)


def body_y(p, o, vx):
    st = o["st"]
    u64 = Pass("u64", "U", 4, ACC_A, 160, 10, 8, WU, 3072, sROTU, [V(5 + j) for j in range(5)], [V(16), V(17)], 128)
    q = Pass("q", "q", 3, ACC_B, 192, 12, 12, WQ, 3840, sROTQ, [V(10 + j) for j in range(3)], [V(18)], 0)
    u48 = Pass("u48", "U", 3, ACC_A, 96, 6, 6, WU, 3072, sROTU, [V(13 + j) for j in range(3)], [V(19), V(20)], 80)
    stream = Stream(p, [u64, q, u48], 7, o)
    phr = prologue(p, "Y", [u64, q, u48], stream, o, vx)
    run_first_pass(p, stream, o["q1y"], phr, guard_load(), o.get("sy0", ()))
    p.stamp("pass1")
    G, U = EP[0:8], EP[8:16]
    PA, PB = PKD[16:20], PKD[20:24]
    wa0, wb0, wf0, _ = wt_round_atoms(0, st)
    wa1, wb1, wf1, _ = wt_round_atoms(1, st)
    glu = glu_atoms(ACC_A, [("pair", 0, L.H_Y64A), ("pair", 2, L.H_Y64B)], st, (G, U, PA, PB))
    stream.side.q = [guard_check("Y_g")] + wa0 + glu + wb0
    stream.run_pass(1, o["q2y"], hooks={75: lambda s_: s_.side.q.extend([wf0] + wa1), 112: lambda s_: s_.side.q.extend(wb1)},
                    stamp_at=o.get("sy1", ()))
    stream.side.flush()
    p.stamp("pass2")
    side = pack_atoms(ACC_B, 20, EP, TMP[0], TMP[1])
    side += feature_mfma_atoms(EP)
    side.append(wf1)
    for hh in range(2):
        side += softmax_atoms(hh)
    stream.side.q = side
    stream.run_pass(2, o["q3y"], stamp_at=o.get("sy2", ()))
    stream.side.flush()
    p.stamp("pass3")
    p.wait_lgkm0()
    p.e("s_barrier")
    atoms = glu_atoms(ACC_A, [("lone", 0, L.H_YL), ("pair", 1, L.H_Y48)], st, (EP[0:8], EP[8:16], PKD[40:44], PKD[44:48]), tag="HST")
    emit_atoms(p, atoms)
    h_flag(p, "Y")
    p.stamp("p1_end")
    phase2(p, "Y", o)


def build(**kw):
    o = dict(DEF)
    o.update(kw)
    p = Prog()
    p.stamps_on = o["stamps"]
    p.lane_stamps = True
    e = p.e
    e("s_cmp_ge_u32", S(2), 256)
    e("s_cbranch_scc1", "F_end")
    p.stamp("start_rt", real=True)
    p.stamp("start")
    e("s_load_dwordx8", S(4, 8), S(0, 2), 0)
    e("s_load_dwordx4", S(12, 4), S(0, 2), 40)
    e("s_load_dwordx2", WDP, S(0, 2), 56)
    e("s_load_dwordx2", OUTP, S(0, 2), 64)
    e("s_load_dwordx4", S(16, 4), S(0, 2), 72)
    e("v_and_b32", lane, 63, V(0))
    e("v_lshrrev_b32", V(5), 6, V(0))
    e("v_lshlrev_b32", l16, 4, lane)
    e("v_readfirstlane_b32", sW, V(5))
    e("v_lshlrev_b32", l8, 3, lane)
    e("v_lshlrev_b32", l4, 2, lane)
    e("s_and_b32", sT0, S(2), 7)
    e("s_lshr_b32", sT1, S(2), 3)
    e("s_and_b32", sRB, sT0, 1)
    e("s_lshl_b32", sRB, sRB, 3)
    e("s_and_b32", sT2, sT1, 7)
    e("s_add_u32", sRB, sRB, sT2)
    e("s_lshr_b32", sT0, sT0, 1)
    e("s_lshl_b32", sT0, sT0, 2)
    e("s_lshr_b32", sT1, sT1, 3)
    e("s_add_u32", sT0, sT0, sT1)
    e("s_lshr_b32", sP, sT0, 1)
    e("s_and_b32", sMISC, sT0, 1)
    if o["rot"]:
        e("s_mul_i32", sT1, sT1, 3)
        e("s_add_u32", sROT, sT1, sT2)
        e("s_cmp_ge_u32", sROT, 10)
        e("s_cselect_b32", sT1, 10, 0)
        e("s_sub_u32", sROT, sROT, sT1)
    else:
        e("s_mov_b32", sROT, 0)
    e("s_mul_i32", sROTQ, sROT, 64 * 3840)
    e("s_mul_i32", sROTU, sROT, 64 * 3072)
    e("s_mov_b32", sMASK, 0xFFFF0000)
    e("s_mov_b32", sL2E, LOG2E)
    vx = prologue_lane(p)
    p.wait_smem()
    extra = 1024 * 256 if o["stamps"] else 0
    srd(p, XS, S(4, 2), 2048 * 640 * 2)
    srd(p, WQ, S(6, 2), 640 * 1920 * 2)
    srd(p, PH, S(8, 2), 32 * 400 * 2)
    srd(p, WS, S(18, 2), L.F_END + extra)
    srd(p, DBG, S(16, 2), 256)
    e("s_cmp_ge_u32", sW, 2)
    e("s_cselect_b32", WU[0], S(14), S(12))
    e("s_cselect_b32", WU[1], S(15), S(13))
    e("s_mov_b32", WU[2], 640 * 1536 * 2)
    e("s_mov_b32", WU[3], 0x20000)
    e("s_lshl_b32", sT0, sRB, 3)
    e("s_lshl_b32", sT1, sW, 1)
    e("s_add_u32", sT0, sT0, sT1)
    e("s_lshl_b32", sT0, sT0, 3)
    e("s_add_u32", sT0, sT0, sP)
    e("s_mul_i32", sHB, sT0, 6144)
    if L.F_HB:
        e("s_add_u32", sHB, sHB, L.F_HB)
    e("s_cmp_eq_u32", sMISC, 1)
    e("s_cbranch_scc1", "F_Y")
    p.fork_save()
    names0 = list(getattr(p, "stamp_names", []))

    def dump():
        if o["stamps"]:
            p.stamp("end_rt", real=True)
            e("s_lshl_b32", sT0, S(2), 2)
            e("s_add_u32", sT0, sT0, sW)
            e("s_lshl_b32", sT0, sT0, 8)
            e("s_add_u32", sT0, sT0, L.F_END)
            p.dump_stamps(WS, sT0, l4)
    body_x(p, o, vx)
    dump()
    p.names_x = list(getattr(p, "stamp_names", []))
    e("s_endpgm")
    p.label("F_Y")
    p.fork_restore()
    if o["stamps"]:
        p.stamp_names = list(names0)
    body_y(p, o, vx)
    dump()
    p.names_y = list(getattr(p, "stamp_names", []))
    p.label("F_end")
    e("s_endpgm")
    return p
```

```python
import numpy as np

S_, D_, H_, DH, F_ = 2048, 640, 32, 20, 1536

PHIQ = 0
HB = PHIQ + 64 * 8 * 10240
OB = HB + 128 * 8 * 6144
WT = OB + 128 * 8 * 2560
KV = WT + 68 * 40 * 1024
FL = KV + 32 * 6144
WS_END = FL + 32 * 128

F_HB = 0
F_OB = F_HB + 128 * 8 * 6144
F_WT = F_OB + 128 * 8 * 2560
F_KV = F_WT + 68 * 40 * 1024
KVS = 6400
F_FLH = F_KV + 32 * KVS
F_FLO = F_FLH + 4096
F_FLW = F_FLO + 2048
F_FLE = F_FLW + 5120
F_FLEND = F_FLH + 16384
F_END = F_FLEND
PERM = list(range(20, 40)) + list(range(20))

H_X01, H_X23, H_XL, H_YL, H_Y48, H_Y64A, H_Y64B = 0, 1024, 2048, 2560, 3072, 4096, 5120


def pair_f(F0, g, e):
    return F0 + 16 * (g & 1) + 8 * (e >> 2) + 4 * (g >> 1) + (e & 3)


def lone_f(f0, g, e4):
    return f0 + 8 * (g & 1) + 4 * (g >> 1) + e4


def krow(kappa, g, e):
    w, st = divmod(kappa, 17)
    if st < 12:
        base = 32 * (12 * w + st)
        if st % 6 == 2:
            return ("h", lone_f(base + 16 * (e >> 2), g, e & 3))
        return ("h", pair_f(base, g, e))
    if st < 16:
        ct = 2 * w + ((st - 12) >> 1)
        return ("o", 20 * (4 * ct + g) + 8 * ((st - 12) & 1) + e)
    ct = 2 * w + (e >> 2)
    return ("o", 20 * (4 * ct + g) + 16 + (e & 3))


def bf16_bits(x):
    u = np.ascontiguousarray(x, np.float32).view(np.uint32)
    return ((u + 0x7FFF + ((u >> 16) & 1)) >> 16).astype(np.uint16)


def bf16_val(b):
    return (np.ascontiguousarray(b).astype(np.uint32) << 16).view(np.float32)


def rbf(x):
    return bf16_val(bf16_bits(x))


def model(x, wqkv, wphi, wo, wg, wu, wd):
    x = x.astype(np.float32)
    mean = x.mean(-1, keepdims=True)
    var = (x * x).mean(-1, keepdims=True) - mean * mean
    rstd = 1.0 / np.sqrt(var + 1e-5)
    xn = rbf((x - mean) * rstd)
    qkv = xn @ wqkv
    q = rbf(qkv[:, :640]).reshape(S_, H_, DH)
    k = rbf(qkv[:, 640:1280]).reshape(S_, H_, DH)
    v = rbf(qkv[:, 1280:]).reshape(S_, H_, DH)
    pq = np.einsum("shd,hdf->shf", q, wphi)
    pk = np.einsum("shd,hdf->shf", k, wphi)

    def phi(p):
        a = np.exp(p - p.max(-1, keepdims=True))
        a /= a.sum(-1, keepdims=True)
        b = np.exp(-p - (-p).max(-1, keepdims=True))
        b /= b.sum(-1, keepdims=True)
        return rbf(np.concatenate([a, b], -1))

    phq, phk = phi(pq), phi(pk)
    kv = np.einsum("shf,shd->hfd", phk, v)
    z = phk.sum(0)
    kvb, zb = rbf(kv), rbf(z)
    num = np.einsum("shf,hfd->shd", phq, kvb)
    den = np.einsum("shf,hf->sh", phq, zb)[..., None] + 1e-6
    o = rbf(num / den).reshape(S_, D_)
    g = xn @ wg
    u = xn @ wu
    h = rbf(np.maximum(g, 0) * u)
    out = x + o @ wo + h @ wd
    return dict(xn=xn, phq=phq, phk=phk, v=v, kv=kv, z=z, o=o, h=h, out=out)


def pack_phiq(phq):
    b = bf16_bits(phq)
    img = np.zeros((64, 8, 10, 64, 8), np.uint16)
    for hf in range(2):
        for hh in range(2):
            for c in range(5):
                src = b.reshape(64, 32, 8, 4, 40)[:, :, :, 2 * hf + hh, 8 * c:8 * c + 8]
                img[:, :, 5 * hh + c, 32 * hf:32 * hf + 32, :] = src.transpose(0, 2, 1, 3)
    return img


def pack_h(h):
    b = bf16_bits(h).reshape(128, 16, F_)
    img = np.zeros((128, 8, 3072), np.uint16)
    lane = np.arange(64)
    g, r = lane >> 4, lane & 15
    for p in range(8):
        for off, F0 in ((H_X01, 0), (H_X23, 32), (H_Y48, 96), (H_Y64A, 128), (H_Y64B, 160)):
            for e in range(8):
                img[:, p, off // 2 + lane * 8 + e] = b[:, r, pair_f(192 * p + F0, g, e)]
        for off, f0 in ((H_XL, 64), (H_YL, 80)):
            for e in range(4):
                img[:, p, off // 2 + lane * 4 + e] = b[:, r, lone_f(192 * p + f0, g, e)]
    return img


def pack_o(o):
    b = bf16_bits(o).reshape(128, 16, D_)
    img = np.zeros((128, 8, 1280), np.uint16)
    lane = np.arange(64)
    g, r = lane >> 4, lane & 15
    for ct in range(8):
        for e in range(8):
            img[:, ct, lane * 8 + e] = b[:, r, 20 * (4 * ct + g) + e]
            img[:, ct, 512 + lane * 8 + e] = b[:, r, 20 * (4 * ct + g) + 8 + e]
        for e in range(4):
            img[:, ct, 1024 + lane * 4 + e] = b[:, r, 20 * (4 * ct + g) + 16 + e]
    return img


def pack_wt(wo, wd):
    wob, wdb = bf16_bits(wo), bf16_bits(wd)
    img = np.zeros((68, 40, 64, 8), np.uint16)
    lane = np.arange(64)
    for kappa in range(68):
        for g in range(4):
            for e in range(8):
                kind, row = krow(kappa, g, e)
                src = (wdb if kind == "h" else wob)[row].reshape(40, 16)
                img[kappa, :, 16 * g:16 * g + 16, e] = src
    return img


def pack_kv(kv, z):
    img = np.zeros((32, 24, 64), np.float32)
    for dt in range(2):
        for ft in range(3):
            for i in range(4):
                for g in range(4):
                    f = 16 * ft + 4 * g + i
                    if f >= 40:
                        continue
                    for n in range(16):
                        d = 16 * dt + n
                        if d < 20:
                            img[:, (dt * 3 + ft) * 4 + i, 16 * g + n] = kv[:, f, d]
                        elif d == 20:
                            img[:, (dt * 3 + ft) * 4 + i, 16 * g + n] = z[:, f]
    return img
```

```python
import sys
import asmlib as al, gen_f

TARGET = "parallel_sum__linear_kernel_hedgehog__glu_gated_reglu__prompt.s"
HEADER = """; out = x + hedgehog_linear_attention(LN(x)) @ wo + (relu(LN(x) Wg) * (LN(x) Wu)) @ Wd      (gfx950, one launch)
"""

def text(**kw):
    p = gen_f.build(**kw)
    s = HEADER + f"; @launch grid=(256,1,1) block=(256,1,1) lds={gen_f.LDS_BYTES}\n"
    s += '.amdgcn_target "amdgcn-amd-amdhsa--gfx950"\n'
    s += al.kernel_text(gen_f.NAME, al.finalize(p, "F"))
    return s

if __name__ == "__main__":
    out = sys.argv[1] if len(sys.argv) > 1 else TARGET
    kw = {}
    for a in sys.argv[2:]:
        k, v = a.split("="); kw[k] = eval(v)
    open(out, "w").write(text(**kw))
    print("wrote", out)
```

```python
from asmlib import V, A, S, Neg, Prog, mk
import layout as L

NAME = "parallel_sum__linear_kernel_hedgehog__glu_gated_reglu__prompt_kernel"
LDS_BYTES = 163840
SLOT = 20480
XSTG, XW = 40960, 28672
PTB = 155648
ZB = PTB + 3584
PKB, VB = 102400, 143360
WTS = 143360
LDS_T, LDS_Z2, LDS_R, RPITCH = 0, 7680, 16384, 336
LOG2E = 1.4426950408889634
OOB = 0x7FF00000
SPIN_MAX = 1 << 18

sW, sRB, sP, sROT = S(52), S(53), S(54), S(55)
sSRC, sT0, sT1, sT2, sT3 = S(56), S(57), S(58), S(59), S(60)
sMASK, sL2E, sMISC = S(61), S(62), S(63)
XS, WQ, WU, WS, PH, WD, DBG = (S(k, 4) for k in (24, 28, 32, 36, 40, 44, 48))
sROTQ, sROTU, sHB, sXP = S(20), S(21), S(22), S(23)
OUTP, WDP = S(94, 2), S(98, 2)
WREG = [S(96), S(97), S(3)]
sEX = S(100, 2)
lane, l16, l8, l4 = V(1), V(2), V(3), V(4)
RSTD, CEN = V(21), V(22)
XR = lambda s: V(96 + 4 * s, 4)
PKD = V(24, 48)
EP = V(72, 20)
TMP = [V(23), V(92), V(93), V(94), V(95)]
ACC_A, ACC_B, FB0, PHI0 = 0, 80, 160, 192

DEF = dict(rot=True, st=" sc1", ld=" sc1", q0=5, q1x=4, q1y=5, q2x=4, q2y=3, q3y=4, depth=6, d2=5, stamps=False,
           rot2=True)


def v_(op, *a, **k):
    return ("v", [mk(op, *a, **k)])


def n_(*ins):
    return ("n", list(ins))


def atomize(ins):
    out = []
    for i in ins:
        if i.cls == "valu":
            out.append(("v", [i]))
        elif i.cls in ("salu", "vmem") and out and out[-1][0] == "n" and out[-1][1][-1].cls == "salu":
            out[-1][1].append(i)
        else:
            out.append(("n", [i]))
    return out


def atomize_scalar(ins):
    out = []
    for i in ins:
        if out and (i.op.startswith("s_cselect") or out[-1][1][-1].op.startswith("s_cmp")):
            out[-1][1].append(i)
        else:
            out.append(("n", [i]))
    return out


def interleave(main, extra, start=0):
    if not extra:
        return list(main)
    out = list(main[:start])
    rest = main[start:]
    step = max(1.0, len(rest) / (len(extra) + 1.0))
    k = 0
    for n, a in enumerate(rest):
        out.append(a)
        while k < len(extra) and (n + 1) >= (k + 1) * step:
            out.append(extra[k])
            k += 1
    return out + extra[k:]


def srd(p, k, base, nbytes):
    p.e("s_mov_b32", k[0], base[0])
    p.e("s_mov_b32", k[1], base[1])
    p.e("s_mov_b32", k[2], nbytes)
    p.e("s_mov_b32", k[3], 0x20000)


class Pass:
    def __init__(self, name, kind, nt, acc, pitch, cpr, ndata, srdreg, srcpitch, rot, voff, pat, col0):
        self.name, self.kind, self.nt, self.acc, self.pitch, self.cpr = name, kind, nt, acc, pitch, cpr
        self.ndata, self.srd, self.srcpitch, self.rot = ndata, srdreg, srcpitch, rot
        self.voff, self.pat, self.col0 = voff, pat, col0
        self.wreg = None
        self.ndma = len(voff)

    def reads(self, sl, t):
        P = self.pitch
        if self.kind == "U":
            return [(self.pat[rd], 16 * sl * P + 32 * t) for rd in range(2)]
        return [(self.pat[0], (16 * sl + 4 * rd) * P + 32 * t) for rd in range(2)]


def div_magic(n):
    return {20: 3277, 12: 5462, 10: 6554, 6: 10923}[n]


def setup_pass(p, ps, slot0, t, sc):
    e = p.e
    P = ps.pitch
    s0, s1, s2, s3 = sc
    if ps.kind == "U":
        e("s_lshr_b32", s0, sW, 1)
        e("s_mul_i32", s0, s0, 64 * P)
        e("s_and_b32", s1, sW, 1)
        e("s_mul_i32", s1, s1, 32 * P)
        e("s_add_u32", ps.wreg, s0, s1)
        e("s_lshr_b32", s2, sW, 1)
        e("s_lshl_b32", s2, s2, 2)
        e("s_and_b32", s1, sW, 1)
        e("s_lshl_b32", s1, s1, 5)
        e("s_mul_i32", s3, sP, 384)
        e("s_add_u32", s3, s3, 2 * ps.col0)
    else:
        e("s_mul_i32", ps.wreg, sW, 16 * P)
        e("s_lshl_b32", s1, sW, 4)
        e("s_mul_i32", s3, sP, 160)
    e("s_mov_b32", s0, slot0)
    for j in range(ps.ndma):
        q, row, c = t[0], t[1], t[2]
        e("v_add_u32", q, 64 * j, lane)
        e("v_mul_u32_u24", row, div_magic(ps.cpr), q)
        e("v_lshrrev_b32", row, 16, row)
        e("v_mul_u32_u24", c, ps.cpr, row)
        e("v_sub_u32", c, q, c)
        if ps.kind == "kv":
            seg = t[3]
            e("v_mul_u32_u24", seg, 52, c)
            e("v_lshrrev_b32", seg, 8, seg)
            e("v_mul_u32_u24", q, 5, seg)
            e("v_sub_u32", c, c, q)
            e("v_and_b32", q, 1, seg)
            e("v_mul_u32_u24", q, 1280, q)
            e("v_lshl_add_u32", c, c, 4, q)
            e("v_lshrrev_b32", seg, 1, seg)
            e("v_mul_u32_u24", seg, 80, seg)
            e("v_add3_u32", c, c, seg, s3)
            e("v_add_u32", c, 1280 - 1024 * (j % 4), c)
        elif ps.kind == "q":
            hf = t[3]
            e("v_mul_u32_u24", hf, 43, c)
            e("v_lshrrev_b32", hf, 8, hf)
            e("v_mul_u32_u24", q, 6, hf)
            e("v_sub_u32", c, c, q)
            e("v_min_u32", c, 4, c)
            e("v_lshlrev_b32", c, 4, c)
            e("v_mul_u32_u24", hf, 80, hf)
            e("v_add3_u32", c, c, hf, s3)
        else:
            if ps.ndata < ps.cpr:
                e("v_min_u32", c, ps.ndata - 1, c)
            e("v_lshl_add_u32", c, c, 4, s3)
            e("v_xor_b32", row, s2, row)
        e("v_add_u32", row, s1, row)
        e("v_mul_u32_u24", row, ps.srcpitch, row)
        comp = 1024 * (j % 4) if ps.kind != "kv" else 0
        if comp:
            e("v_add_u32", row, row, c)
            e("v_subrev_u32", ps.voff[j], comp, row)
        else:
            e("v_add_u32", ps.voff[j], row, c)
    G1, kh, rho, pp = t[0], t[1], t[2], t[3]
    e("v_bfe_u32", G1, lane, 4, 1)
    e("v_lshrrev_b32", kh, 5, lane)
    e("v_bfe_u32", rho, lane, 2, 2)
    e("v_and_b32", pp, 3, lane)
    e("v_lshl_add_u32", rho, kh, 3, rho)
    e("v_mul_u32_u24", rho, P, rho)
    if ps.kind == "U":
        e("v_lshl_add_u32", rho, pp, 3, rho)
        e("v_mul_u32_u24", kh, 68 * P, G1)
        e("v_add3_u32", ps.pat[0], rho, kh, s0)
        e("v_mul_u32_u24", kh, 60 * P, G1)
        e("v_add_u32", kh, 4 * P, kh)
        e("v_add3_u32", ps.pat[1], rho, kh, s0)
    else:
        half = 160 if ps.kind == "kv" else 96
        e("v_and_b32", kh, 1, pp)
        e("v_mul_u32_u24", kh, half, kh)
        e("v_add_u32", rho, rho, kh)
        e("v_lshrrev_b32", pp, 1, pp)
        e("v_lshl_add_u32", pp, G1, 1, pp)
        e("v_lshl_add_u32", rho, pp, 3, rho)
        e("v_add_u32", ps.pat[0], s0, rho)


def dma_atoms(ps, slot, first_of_pass, tag, m0_each=True):
    out = []
    for j in range(ps.ndma):
        ins = []
        if j == 0 and first_of_pass:
            ins.append(mk("s_mov_b32", sSRC, ps.rot))
        if m0_each or j in (0, 4):
            ins.append(mk("s_add_u32", "m0", ps.wreg, slot * SLOT + (4096 if j == 4 else 0)))
        last = j == ps.ndma - 1
        ins.append(mk("buffer_load_dwordx4", ps.voff[j], ps.srd, sSRC, mods=f"offen offset:{1024 * (j % 4)} lds",
                      tag=tag if last else None))
        if last:
            step = 64 * ps.srcpitch
            ins.append(mk("s_add_u32", sSRC, sSRC, step))
            ins.append(mk("s_cmp_eq_u32", sSRC, 10 * step))
            ins.append(mk("s_cselect_b32", sSRC, 0, sSRC))
        out.append(ins)
    return out


def center_atoms(s, t0, t1):
    out = []
    for r in range(4):
        x = XR(s)[r]
        out += [v_("v_lshlrev_b32", t0, 16, x), v_("v_and_b32", t1, sMASK, x),
                v_("v_fma_f32", t0, t0, RSTD, CEN), v_("v_fma_f32", t1, t1, RSTD, CEN),
                v_("v_cvt_pk_bf16_f32", x, t0, t1)]
    return out


PHI_FRAGS = [(0, 0), (0, 1), (0, 2), (1, 0), (1, 1), (1, 2), (1, 3), (1, 4), (2, 2), (2, 3), (2, 4)]
PHI_CONST = {(0, 0): 0, (1, 0): 32, (1, 1): 792, (2, 1): 824}


def phi_addr_setup(p, regs, t):
    e = p.e
    kh, jj, par, b0 = t[0], t[1], t[2], t[3]
    e("v_lshrrev_b32", kh, 5, lane)
    e("v_bfe_u32", jj, lane, 4, 1)
    e("v_bfe_u32", par, lane, 1, 1)
    e("v_lshl_add_u32", jj, jj, 1, par)
    e("v_mul_u32_u24", b0, 1600, kh)
    e("v_bfe_u32", par, lane, 2, 2)
    e("v_mul_u32_u24", par, 40, par)
    e("v_add_u32", b0, b0, par)
    e("v_lshl_add_u32", b0, jj, 3, b0)
    e("v_add_u32", b0, PTB, b0)
    e("v_and_b32", par, 1, lane)
    e("v_mov_b32", regs[4], ZB)
    e("v_cmp_eq_u32", "vcc", par, kh)
    e("v_cndmask_b32", regs[0], regs[4], b0, "vcc")
    e("v_cmp_eq_u32", "vcc", 0, jj)
    e("v_cndmask_b32", regs[1], regs[4], regs[0], "vcc")
    e("v_cmp_le_u32", "vcc", 1, jj)
    e("v_cndmask_b32", regs[2], regs[4], regs[0], "vcc")
    e("v_cmp_ge_u32", "vcc", 1, jj)
    e("v_cndmask_b32", regs[3], regs[4], regs[0], "vcc")


def phi_read_atoms(regs):
    out = []
    sel = {(0, 0): regs[0], (1, 0): regs[1], (1, 1): regs[2], (2, 1): regs[3]}
    for idx, (tp, c) in enumerate(PHI_FRAGS):
        for rd in range(2):
            R0 = 8 * c + 4 * rd
            hl = 1 if R0 >= 20 else 0
            d0 = R0 - 20 * hl
            dst = A(PHI0 + 4 * idx + 2 * rd, 2)
            if (tp, hl) in sel:
                out.append(n_(mk("ds_read_b64_tr_b16", dst, sel[(tp, hl)], mods=f"offset:{PHI_CONST[(tp, hl)] + 40 * d0}")))
            else:
                out.append(n_(mk("ds_read_b64_tr_b16", dst, regs[4])))
    return out


def pack_atoms(acc, n, dst, t0, t1):
    out = []
    for u in range(n):
        a, b = (t0, t1) if u % 2 == 0 else (TMP[3], TMP[4])
        out += [v_("v_accvgpr_read_b32", a, A(acc + 2 * u)), v_("v_accvgpr_read_b32", b, A(acc + 2 * u + 1)),
                v_("v_cvt_pk_bf16_f32", dst[u], a, b)]
    return out


def feature_mfma_atoms(kp):
    out = []
    seen = set()
    for idx, (tp, c) in enumerate(PHI_FRAGS):
        d = PKD[16 * tp:16 * tp + 16]
        out.append(("m", [mk("v_mfma_f32_32x32x16_bf16", d, A(PHI0 + 4 * idx, 4), kp[4 * c:4 * c + 4], d if tp in seen else 0)]))
        seen.add(tp)
    return out


def softmax_atoms(hh):
    pv = [PKD[20 * hh + i] for i in range(20)]
    mx, mn, s0, s1 = TMP[0], TMP[1], TMP[2], TMP[3]
    out = [v_("v_max3_f32", mx, pv[0], pv[1], pv[2]), v_("v_min3_f32", mn, pv[0], pv[1], pv[2])]
    for i in range(3, 19, 2):
        out += [v_("v_max3_f32", mx, mx, pv[i], pv[i + 1]), v_("v_min3_f32", mn, mn, pv[i], pv[i + 1])]
    out += [v_("v_max_f32", mx, mx, pv[19]), v_("v_min_f32", mn, mn, pv[19])]
    out += [v_("v_mul_f32", mx, sL2E, mx), v_("v_mul_f32", mn, sL2E, mn)]
    for i in range(20):
        out.append(v_("v_fma_f32", EP[i], pv[i], sL2E, Neg(mx)))
        out.append(v_("v_fma_f32", pv[i], Neg(pv[i]), sL2E, mn))
    for i in range(20):
        out.append(("t", [mk("v_exp_f32", EP[i], EP[i])]))
        out.append(("t", [mk("v_exp_f32", pv[i], pv[i])]))
    out += [v_("v_add_f32", s0, EP[0], EP[1]), v_("v_add_f32", s1, pv[0], pv[1]),
            v_("v_add_f32", mx, EP[2], EP[3]), v_("v_add_f32", mn, pv[2], pv[3])]
    for i in range(4, 20, 2):
        out += [v_("v_add_f32", s0, s0, EP[i]), v_("v_add_f32", s1, s1, pv[i]),
                v_("v_add_f32", mx, mx, EP[i + 1]), v_("v_add_f32", mn, mn, pv[i + 1])]
    out += [v_("v_add_f32", s0, s0, mx), v_("v_add_f32", s1, s1, mn)]
    out += [("t", [mk("v_rcp_f32", s0, s0)]), ("t", [mk("v_rcp_f32", s1, s1)])]
    for i in range(20):
        out.append(v_("v_mul_f32", EP[i], s0, EP[i]))
    for i in range(20):
        out.append(v_("v_mul_f32", pv[i], s1, pv[i]))
    for u in range(10):
        out.append(v_("v_cvt_pk_bf16_f32", pv[u], pv[2 * u], pv[2 * u + 1]))
    for u in range(10):
        out.append(v_("v_cvt_pk_bf16_f32", pv[10 + u], EP[2 * u], EP[2 * u + 1]))
    return out


def glu_tile_atoms(acc, dst, G, U):
    out = []
    for i in range(8):
        out.append(v_("v_accvgpr_read_b32", G[i], A(acc + i)))
    for i in range(8):
        out.append(v_("v_accvgpr_read_b32", U[i], A(acc + 8 + i)))
    for i in range(8):
        out.append(v_("v_max_f32", G[i], 0, G[i]))
    for i in range(8):
        out.append(v_("v_mul_f32", U[i], G[i], U[i]))
    for q in range(4):
        out.append(v_("v_cvt_pk_bf16_f32", dst[q], U[2 * q], U[2 * q + 1]))
    return out


def h_store(data, blk, second, st, wide, tag=None):
    off = blk + (8 * 6144 if second else 0)
    ins = [mk("s_add_u32", sT0, sHB, off)]
    if wide:
        ins.append(mk("buffer_store_dwordx4", data, l16, WS, sT0, mods="offen" + st, tag=tag))
    else:
        ins.append(mk("buffer_store_dwordx2", data, l8, WS, sT0, mods="offen" + st, tag=tag))
    return n_(*ins)


def glu_atoms(acc, groups, st, regs, tag=None):
    G, U, PA, PB = regs
    out = []
    for n, (kind, t, blk) in enumerate(groups):
        tg = tag if n == len(groups) - 1 else None
        out += glu_tile_atoms(acc + 16 * t, PA, G, U)
        if kind == "pair":
            out += glu_tile_atoms(acc + 16 * (t + 1), PB, G, U)
            for q in range(4):
                out.append(v_("v_permlane16_swap_b32", PA[q], PB[q]))
            out.append(h_store(PA, blk, False, st, True))
            out.append(h_store(PB, blk, True, st, True, tg))
        else:
            out.append(v_("v_permlane16_swap_b32", PA[0], PA[2]))
            out.append(v_("v_permlane16_swap_b32", PA[1], PA[3]))
            out.append(h_store(PA[0:2], blk, False, st, False))
            out.append(h_store(PA[2:4], blk, True, st, False, tg))
    return out


def emit_atoms(p, atoms):
    for kind, ins in atoms:
        if kind == "d":
            continue
        if kind == "blk":
            ins(p)
        else:
            for i in ins:
                p.add(i)


class Side:
    def __init__(self, p):
        self.p = p
        self.q = []

    def fill(self, quota, nmax=2):
        p = self.p
        if self.q and self.q[0][0] == "d":
            if self.q[0][1] > 1:
                self.q[0] = ("d", self.q[0][1] - 1)
            else:
                self.q.pop(0)
            return
        n = 0
        while self.q and self.q[0][0] == "n" and n < nmax:
            for i in self.q.pop(0)[1]:
                p.add(i)
            n += 1
        n = 0
        while self.q and self.q[0][0] in ("v", "t"):
            cost = 2 if self.q[0][0] == "t" else 1
            if n + cost > quota and n > 0:
                break
            for i in self.q.pop(0)[1]:
                p.add(i)
            n += cost

    def mfmas(self, quota):
        p = self.p
        while self.q and self.q[0][0] in ("m", "blk"):
            kind, ins = self.q.pop(0)
            if kind == "blk":
                ins(p)
                continue
            for i in ins:
                p.add(i)
            self.fill(quota)

    def flush(self):
        emit_atoms(self.p, self.q)
        self.q = []


class Stream:
    def __init__(self, p, passes, ns, o):
        self.p, self.passes, self.ns, self.depth = p, passes, ns, o["depth"]
        self.frags = [(pi, s, t) for pi, ps in enumerate(passes) for s in range(40) for t in range(ps.nt)]
        self.nstage = 10 * len(passes)
        self.dmaq = []
        self.next_read = 0
        self.cur_stage = -1
        self.side = Side(p)
        self.dma_next = 0
        self.m0_each = True
        self.since_dma = 99
        self.o = o

    def stage_of(self, f):
        pi, s, t = self.frags[f]
        return 10 * pi + s // 4

    def queue_stage(self):
        g = self.dma_next
        if g >= self.nstage:
            return
        ps = self.passes[g // 10]
        self.dmaq += dma_atoms(ps, g % self.ns, g % 10 == 0, f"W{g}", self.m0_each)
        self.dma_next += 1

    def emit_dma_now(self):
        for ins in self.dmaq:
            for i in ins:
                self.p.add(i)
        self.dmaq = []

    def read_frag(self):
        f = self.next_read
        if f >= len(self.frags):
            return
        p = self.p
        pi, s, t = self.frags[f]
        ps = self.passes[pi]
        g = self.stage_of(f)
        if g != self.cur_stage:
            while self.dma_next <= g or any(i.tag == f"W{g}" for ins in self.dmaq for i in ins):
                if self.dmaq:
                    for i in self.dmaq.pop(0):
                        p.add(i)
                else:
                    self.queue_stage()
            p.wait_tag(f"W{g}")
            p.e("s_barrier")
            if g > 0 and g % 10 != 0:
                delta = ((g % self.ns) - ((g - 1) % self.ns)) * SLOT
                for r in ps.pat:
                    p.e("v_add_u32", r, delta, r)
            if g == 0:
                while self.dma_next < self.ns - 1:
                    self.queue_stage()
            else:
                self.queue_stage()
            self.cur_stage = g
        fb = FB0 + 4 * (f % 8)
        for rd, (reg, imm) in enumerate(ps.reads(s % 4, t)):
            p.e("ds_read_b64_tr_b16", A(fb + 2 * rd, 2), reg, mods=f"offset:{imm}")
        self.next_read += 1

    def prime(self):
        for _ in range(self.depth + 1):
            self.read_frag()

    def run_pass(self, pi, quota, deadline=None, hooks=None, stamp_at=()):
        p = self.p
        ps = self.passes[pi]
        idx = [f for f, fr in enumerate(self.frags) if fr[0] == pi]
        for n, f in enumerate(idx):
            _, s, t = self.frags[f]
            if hooks and n in hooks:
                hooks[n](self)
            if n in stamp_at:
                p.stamp(f"p{pi}g{n}")
            if t == 0 and deadline is not None:
                lim = deadline(s)
                while len(self.side.q) > lim:
                    emit_atoms(p, [self.side.q.pop(0)])
            d = A(ps.acc + 16 * t, 16)
            p.e("v_mfma_f32_32x32x16_bf16", d, A(FB0 + 4 * (f % 8), 4), XR(s), d if s else 0)
            crossing = self.next_read < len(self.frags) and self.stage_of(self.next_read) != self.cur_stage
            late = []
            every = max(1, (4 * ps.nt) // self.passes[min(len(self.passes) - 1, self.dma_next // 10)].ndma)
            if len(self.dmaq) > 6 or not self.o.get("pace", True):
                every = 1
            self.since_dma += 1
            if self.dmaq and not crossing and self.since_dma >= every:
                self.since_dma = 0
                ins = self.dmaq.pop(0)
                k = next(n_ for n_, i in enumerate(ins) if i.cls == "vmem")
                for i in ins[:k]:
                    p.add(i)
                late = ins[k:]
            self.read_frag()
            for i in late:
                p.add(i)
            te = self.o.get("touch_every", 2)
            if f % te == 0:
                p.touch(*[A(FB0 + 4 * ((f + k) % 8), 4) for k in range(1, te + 1) if f + k < len(self.frags)])
            q = quota(n) if callable(quota) else quota
            self.side.fill(q)
            self.side.mfmas(q)


def poll_block(reg, addr, srdreg, soff, want, lab, mask=-1, imm=0):
    def blk(p):
        p.e("v_cmp_eq_u32", "vcc", want, reg)
        p.e("s_cmp_eq_u64", "vcc", mask)
        p.e("s_cbranch_scc1", lab + "_ok")
        p.region_begin()
        p.e("s_mov_b32", sT3, 0)
        p.label(lab + "_spin")
        p.e("s_add_u32", sT3, sT3, 1)
        p.e("s_cmp_ge_u32", sT3, SPIN_MAX)
        p.e("s_cbranch_scc1", lab + "_ok")
        p.e("s_sleep", 1)
        p.e("buffer_load_dword", reg, addr, srdreg, soff, mods=f"offen offset:{imm} sc1")
        p.wait_vm0()
        p.e("v_cmp_eq_u32", "vcc", want, reg)
        p.e("s_cmp_eq_u64", "vcc", mask)
        p.e("s_cbranch_scc0", lab + "_spin")
        p.label(lab + "_ok")
        p.region_end()
    return blk


def flag_store(p, vtmp, srdreg, soff, atomic=False):
    p.e("v_mov_b32", vtmp, 1)
    p.e("s_mov_b64", "exec", 1)
    if atomic:
        p.e("buffer_atomic_add", vtmp, "off", srdreg, soff, mods="sc1")
    else:
        p.e("buffer_store_dword", vtmp, "off", srdreg, soff, mods="sc1")
    p.e("s_mov_b64", "exec", -1)


def prologue_lane(p):
    e = p.e
    t = [V(23), V(24), V(25), V(26)]
    vx = [V(27 + j) for j in range(4)]
    e("v_lshrrev_b32", t[0], 3, lane)
    e("v_lshrrev_b32", t[1], 4, lane)
    e("v_and_b32", t[2], 7, lane)
    e("v_mul_u32_u24", t[0], 1280, t[0])
    for j in range(4):
        e("v_add_u32", t[3], 4 * j, t[1])
        e("v_and_b32", t[3], 7, t[3])
        e("v_xor_b32", t[3], t[3], t[2])
        e("v_lshl_add_u32", t[3], t[3], 4, t[0])
        e("v_add_u32", vx[j], 8 * 1280 * j - 1024 * j, t[3])
    return vx


def prologue(p, typ, passes, stream, o, vx):
    e = p.e
    sXB, sXW, sPI = S(16), S(17), S(18)
    e("s_lshl_b32", sXB, sRB, 7)
    e("s_lshl_b32", sT1, sW, 5)
    e("s_add_u32", sXB, sXB, sT1)
    e("s_mul_i32", sXB, sXB, 1280)
    e("s_mul_i32", sXW, sW, XW)
    e("s_add_u32", sXW, sXW, XSTG)
    e("s_mov_b32", sPI, sROT)

    def x_piece(pi):
        e("s_add_u32", "m0", sXW, (pi % 7) * 4096)
        e("s_lshl_b32", sT2, sPI, 7)
        e("s_add_u32", sT2, sT2, sXB)
        for j in range(4):
            e("buffer_load_dwordx4", vx[j], XS, sT2, mods=f"offen offset:{1024 * j} lds", tag=f"X{pi}" if j == 3 else None)
        e("s_add_u32", sPI, sPI, 1)
        e("s_cmp_eq_u32", sPI, 10)
        e("s_cselect_b32", sPI, 0, sPI)

    x_piece(0)
    Z4 = V(32, 4)
    for r in range(4):
        e("v_mov_b32", Z4[r], 0)
    e("s_mul_i32", S(4), sP, 3200)
    e("s_mul_i32", S(5), sW, 800)
    e("s_add_u32", S(4), S(4), S(5))
    e("s_add_u32", "m0", S(5), PTB)
    e("buffer_load_dwordx4", l16, PH, S(4), mods="offen lds", tag="PT")
    if typ == "X":
        e("s_cmp_eq_u32", sRB, 0)
        e("s_cselect_b32", S(4), 0, OOB)
        e("s_lshl_b32", S(5), sP, 2)
        e("s_add_u32", S(5), S(5), sW)
        e("s_mul_i32", S(6), S(5), L.KVS)
        e("s_add_u32", S(6), S(6), L.F_KV)
        e("s_add_u32", S(7), S(6), 4096)
        e("s_lshl_b32", S(5), S(5), 2)
        e("v_add_u32", V(36), S(4), l16)
        for k in range(6):
            e("buffer_store_dwordx4", Z4, V(36), WS, S(6) if k < 4 else S(7), mods=f"offen offset:{1024 * (k % 4)} sc1")
        e("v_add_u32", V(37), S(4), l4)
        e("buffer_store_dword", Z4[0], V(37), WS, S(7), mods="offen offset:2048 sc1", tag="ZI")
    else:
        e("s_or_b32", S(4), sRB, sP)
        e("s_cmp_eq_u32", S(4), 0)
        e("s_cselect_b32", S(4), 0, OOB)
        e("s_lshl_b32", S(6), sW, 12)
        e("s_add_u32", S(6), S(6), L.F_FLH)
        e("s_lshl_b32", S(5), sW, 2)
        e("s_add_u32", S(5), S(5), 128)
        e("v_add_u32", V(36), S(4), l16)
        for k in range(4):
            e("buffer_store_dwordx4", Z4, V(36), WS, S(6), mods=f"offen offset:{1024 * k} sc1", tag="ZI" if k == 3 else None)
    x_piece(1)
    p.stamp("x_issued")
    e("v_mov_b32", V(37), S(5))
    e("v_add_u32", V(37), S(4), V(37))

    q = Prog()
    f = q.e
    t = [V(42), V(43), V(44), V(45)]
    f("v_add_u32", t[0], ZB, l16)
    f("ds_write_b128", t[0], Z4)
    f("ds_write_b128", t[0], Z4, mods="offset:1024")
    vr = [V(38 + k) for k in range(4)]
    f("v_and_b32", t[0], 31, lane)
    f("v_lshrrev_b32", t[1], 5, lane)
    f("v_bfe_u32", t[2], lane, 1, 3)
    f("v_xor_b32", t[1], t[1], t[2])
    f("v_lshlrev_b32", t[0], 7, t[0])
    f("v_add_u32", t[0], sXW, t[0])
    for k in range(4):
        f("v_xor_b32", t[2], 2 * k, t[1])
        f("v_lshl_add_u32", vr[k], t[2], 4, t[0])
    for k, ps in enumerate(passes):
        ps.wreg = WREG[k]
    setup_pass(q, passes[0], 0, t, [S(8), S(9), S(12), S(13)])
    n_first = len(q.ins)
    for k, ps in list(enumerate(passes))[1:]:
        setup_pass(q, ps, ((10 * k) % stream.ns) * SLOT, t, [S(8), S(9), S(12), S(13)])
    phr = [V(46 + k) for k in range(5)]
    phi_addr_setup(q, phr, t)
    first = q.ins[:n_first]
    rest = atomize(q.ins[n_first:])
    half = len(first) // 2
    for i in first[:half]:
        p.add(i)
    x_piece(2)
    for i in first[half:]:
        p.add(i)
    x_piece(3)
    NPF = 4
    side = Side(p)
    side.q = rest
    npre = o.get("pre_atoms", 60)
    emit_atoms(p, side.q[:npre])
    side.q = side.q[npre:]
    acc = [V(51), V(52), V(53), V(54)]
    for r in acc:
        e("v_mov_b32", r, 0)
    sONE = S(19)
    e("s_mov_b32", sONE, 0x3F803F80)
    p.stamp("setup")

    def x_reads(pi):
        p.wait_tag(f"X{pi}")
        for k in range(4):
            e("ds_read_b128", XR(4 * pi + k), vr[k], mods=f"offset:{(pi % 7) * 4096}")
    x_reads(0)
    per = -(-len(side.q) // 9)
    for pi in range(10):
        if o.get("pstamp") and pi in (0, 1, 2, 4, 6, 8):
            p.stamp(f"pc{pi}")
        if pi + NPF < 10:
            x_piece(pi + NPF)
        if pi + NPF == 10:
            stream.queue_stage()
            stream.queue_stage()
            stream.emit_dma_now()
        emit_atoms(p, side.q[:per])
        side.q = side.q[per:]
        if pi + 1 < 10:
            x_reads(pi + 1)
        for k in range(4):
            for r in range(4):
                x = XR(4 * pi + k)[r]
                e("v_dot2c_f32_bf16", acc[r & 1], sONE, x)
                e("v_dot2c_f32_bf16", acc[2 + (r & 1)], x, x)
    p.stamp("x_done")
    side.flush()
    p.wait_tag("ZI")
    e("v_mov_b32", V(36), 1)
    e("s_mov_b64", "exec", 1)
    e("buffer_store_dword", V(36), V(37), DBG, 0, mods="offen sc1")
    e("s_mov_b64", "exec", -1)
    e("v_add_f32", acc[0], acc[0], acc[1])
    e("v_add_f32", acc[2], acc[2], acc[3])
    e("v_mov_b32", acc[1], acc[0])
    e("v_mov_b32", acc[3], acc[2])
    e("v_permlane32_swap_b32", acc[0], acc[1])
    e("v_permlane32_swap_b32", acc[2], acc[3])
    e("v_add_f32", acc[0], acc[0], acc[1])
    e("v_add_f32", acc[2], acc[2], acc[3])
    e("v_mul_f32", acc[0], 1.0 / 640, acc[0])
    e("v_mul_f32", acc[2], 1.0 / 640, acc[2])
    e("v_fma_f32", acc[2], Neg(acc[0]), acc[0], acc[2])
    e("v_max_f32", acc[2], 0, acc[2])
    e("v_add_f32", acc[2], 1e-5, acc[2])
    e("v_rsq_f32", RSTD, acc[2])
    e("v_mul_f32", CEN, acc[0], RSTD)
    e("v_sub_f32", CEN, 0, CEN)
    p.wait_tag("PT")
    p.wait_lgkm0()
    return phr


def run_first_pass(p, stream, quota, phr, extra, stamp_at=()):
    for s in (0, 1):
        emit_atoms(p, center_atoms(s, V(23), V(24)))
    stream.prime()
    p.stamp("primed")
    phi = phi_read_atoms(phr)
    groups = {}
    for s in range(2, 40):
        groups[s] = center_atoms(s, V(23 + 2 * (s & 1)), V(24 + 2 * (s & 1)))
        if s - 2 < len(phi):
            groups[s] = groups[s][:10] + [phi[s - 2]] + groups[s][10:]
    groups[30] = groups[30] + extra
    stream.side.q = [a for s in range(2, 40) for a in groups[s]]
    rest = lambda s: sum(len(groups[k]) for k in range(max(s, 1) + 1, 40))
    stream.run_pass(0, quota, deadline=rest, stamp_at=stamp_at)
    assert not stream.side.q


def guard_load():
    return [v_("v_and_b32", V(51), 3, lane), v_("v_lshlrev_b32", V(51), 2, V(51)),
            n_(mk("buffer_load_dword", V(52), V(51), DBG, 0, mods="offen offset:128 sc1"))]


def guard_check(lab):
    return ("blk", poll_block(V(52), V(51), DBG, 0, 1, lab, imm=128))


def kv_atoms(o):
    out = []
    pa, va, vb = V(5), V(6), V(7)
    t0, t1 = V(8), V(9)
    q = Prog()
    e = q.e
    e("v_lshrrev_b32", t0, 4, lane)
    e("v_bfe_u32", t1, lane, 2, 2)
    e("v_lshl_add_u32", t0, t0, 3, t1)
    e("v_and_b32", t1, 3, lane)
    e("v_lshlrev_b32", t1, 3, t1)
    e("v_mul_u32_u24", vb, 80, t0)
    e("s_mul_i32", S(4), sW, 10240)
    e("s_add_u32", S(4), S(4), PKB)
    e("v_add3_u32", pa, vb, t1, S(4))
    e("s_lshr_b32", S(5), sW, 1)
    e("s_mul_i32", S(5), S(5), 10240)
    e("s_and_b32", S(4), sW, 1)
    e("s_mul_i32", S(4), S(4), 40)
    e("s_add_u32", S(5), S(5), S(4))
    e("s_add_u32", S(5), S(5), VB)
    e("v_add3_u32", va, vb, t1, S(5))
    e("v_add_u32", vb, S(5), vb)
    e("v_add_u32", vb, 32, vb)
    e("v_and_b32", t0, 15, lane)
    e("v_cmp_eq_u32", S(6, 2), 4, t0)
    e("v_mov_b32", t1, 0x3F803F80)
    addr = atomize(q.ins)
    KA = PKD[0:24]
    AF = [[PKD[24 + 4 * k:28 + 4 * k] for k in range(3)], [PKD[36 + 4 * k:40 + 4 * k] for k in range(3)]]
    BF = [[EP[4 * k:4 * k + 4] for k in range(2)], [EP[8 + 4 * k:12 + 4 * k] for k in range(2)]]

    def blk(p):
        e = p.e
        p.wait_lgkm0()
        e("s_barrier")

        def reads(ks):
            a, b = AF[ks % 2], BF[ks % 2]
            for rd in range(2):
                for ft in range(3):
                    e("ds_read_b64_tr_b16", a[ft][2 * rd:2 * rd + 2], pa, mods=f"offset:{(32 * ks + 4 * rd) * 80 + 32 * ft}")
                e("ds_read_b64_tr_b16", b[0][2 * rd:2 * rd + 2], va, mods=f"offset:{(32 * ks + 4 * rd) * 80}")
                e("ds_read_b64_tr_b16", b[1][2 * rd:2 * rd + 2], vb, mods=f"offset:{(32 * ks + 4 * rd) * 80}")
        reads(0)
        for ks in range(4):
            if ks < 3:
                reads(ks + 1)
            a, b = AF[ks % 2], BF[ks % 2]
            for r in range(4):
                e("v_cndmask_b32", b[1][r], b[1][r], t1, S(6, 2))
            for dt in range(2):
                for ft in range(3):
                    d = KA[(dt * 3 + ft) * 4:(dt * 3 + ft) * 4 + 4]
                    e("v_mfma_f32_16x16x32_bf16", d, a[ft], b[dt], d if ks else 0)
    sA, sB = S(8), S(9)
    post = [n_(mk("s_lshl_b32", sA, sP, 2), mk("s_add_u32", sA, sA, sW), mk("s_mul_i32", sA, sA, L.KVS),
               mk("s_add_u32", sA, sA, L.F_KV), mk("s_add_u32", sB, sA, 4096))]
    masks = {(0, 0): None, (1, 0): None, (2, 0): (0xFFFFFFFF, 0), (0, 1): (0x001F001F, 0x001F001F),
             (1, 1): (0x001F001F, 0x001F001F), (2, 1): (0x001F001F, 0)}
    last = None
    for (ft, dt), m in masks.items():
        for i in range(4):
            r = (dt * 3 + ft) * 4 + i
            off = r * 256
            ins = []
            if m:
                ins += [mk("s_mov_b32", sEX[0], m[0]), mk("s_mov_b32", sEX[1], m[1]), mk("s_mov_b64", "exec", sEX)]
            a = mk("buffer_atomic_add_f32", KA[r], l4, WS, sA if off < 4096 else sB, mods=f"offen offset:{off & 4095}")
            last = a
            ins.append(a)
            if m:
                ins.append(mk("s_mov_b64", "exec", -1))
            post.append(n_(*ins))
    last.tag = "KVA"
    return addr, blk, post, sB


def wt_round_atoms(rnd, st):
    su, sk, sc, sw_, sst, sM, sB, sC1 = S(4), S(5), S(6), S(7), S(8), S(9), S(12), S(13)
    sX, sY = S(14), S(15)
    a = []
    g = lambda *rows: a.append(n_(*[mk(*r) for r in rows]))
    g(("s_lshl_b32", su, sRB, 3), ("s_add_u32", su, su, sP), ("s_lshl_b32", su, su, 2), ("s_add_u32", su, su, sW))
    if rnd:
        g(("s_add_u32", su, su, 512), ("s_cmp_ge_u32", su, 680), ("s_cselect_b32", sX, 344, 0), ("s_sub_u32", su, su, sX))
    g(("s_mul_i32", sk, su, 52429), ("s_lshr_b32", sk, sk, 19),
      ("s_mul_i32", sX, sk, 10), ("s_sub_u32", sc, su, sX))
    g(("s_mul_i32", sw_, sk, 3856), ("s_lshr_b32", sw_, sw_, 16),
      ("s_mul_i32", sX, sw_, 17), ("s_sub_u32", sst, sk, sX))
    g(("s_mul_i32", sB, sw_, 12), ("s_add_u32", sB, sB, sst), ("s_lshl_b32", sB, sB, 5))
    g(("s_cmp_eq_u32", sst, 2), ("s_cselect_b32", sX, 1, 0), ("s_cmp_eq_u32", sst, 8), ("s_cselect_b32", sX, 1, sX))
    g(("s_cmp_eq_u32", sX, 1), ("s_cselect_b32", sM, 16, 8), ("s_cselect_b32", sC1, 8, 16))
    g(("s_sub_u32", sX, sst, 12), ("s_lshr_b32", sY, sX, 1), ("s_mul_i32", sY, sY, 80), ("s_and_b32", sX, sX, 1))
    g(("s_lshl_b32", sX, sX, 3), ("s_add_u32", sY, sY, sX), ("s_mul_i32", su, sw_, 160))
    g(("s_cmp_eq_u32", sst, 16), ("s_cselect_b32", sY, 16, sY), ("s_cselect_b32", sX, 80, 4), ("s_add_u32", sY, sY, su))
    g(("s_cmp_ge_u32", sst, 12), ("s_cselect_b32", sB, sY, sB), ("s_cselect_b32", sM, sX, sM),
      ("s_cselect_b32", sC1, 20, sC1), ("s_cselect_b32", sX, 40, 4),
      ("s_cselect_b32", WD[0], S(10), WDP[0]), ("s_cselect_b32", WD[1], S(11), WDP[1]))
    g(("s_cmp_ge_u32", sst, 12), ("s_mov_b32", WD[2], 1536 * 640 * 2), ("s_cselect_b32", WD[2], 640 * 640 * 2, WD[2]),
      ("s_mov_b32", WD[3], 0x20000))
    g(("s_mul_i32", su, sw_, 10), ("s_add_u32", su, su, sc), ("s_lshl_b32", su, su, 5), ("s_add_u32", su, su, sst))
    g(("s_lshl_b32", su, su, 2), ("s_add_u32", sst, su, L.F_FLW))
    t0, t1, vo = TMP[0], TMP[1], TMP[2]
    a.append(v_("v_lshrrev_b32", t0, 5, lane))
    a.append(v_("v_mul_u32_u24", t0, sM, t0))
    a.append(v_("v_bfe_u32", t1, lane, 3, 2))
    a.append(v_("v_add_u32", t0, t0, t1))
    a.append(v_("v_mul_u32_u24", t0, 1280, t0))
    a.append(v_("v_and_b32", t1, 7, lane))
    a.append(v_("v_lshl_add_u32", vo, t1, 4, t0))
    g(("s_lshl_b32", su, sc, 7), ("s_lshl_b32", sw_, sW, 12), ("s_add_u32", sw_, sw_, WTS))
    for j in range(4):
        ins = [mk("s_mov_b32", "m0", sw_), mk("s_mul_i32", sY, sC1, j & 1), mk("s_add_u32", sY, sY, sB)]
        if j >> 1:
            ins.append(mk("s_add_u32", sY, sY, sX))
        ins += [mk("s_mul_i32", sY, sY, 1280), mk("s_add_u32", sY, sY, su)]
        if j:
            ins.append(mk("s_sub_u32", sY, sY, 1024 * j))
        ins.append(mk("buffer_load_dwordx4", vo, WD, sY, mods=f"offen offset:{1024 * j} lds", tag=f"WT{rnd}" if j == 3 else None))
        a.append(n_(*ins))
    b = []
    ra = TMP[0]
    b.append(v_("v_lshrrev_b32", ra, 4, lane))
    b.append(v_("v_bfe_u32", t1, lane, 2, 2))
    b.append(v_("v_lshl_add_u32", ra, ra, 3, t1))
    b.append(v_("v_lshlrev_b32", ra, 7, ra))
    b.append(v_("v_and_b32", t1, 3, lane))
    b.append(v_("v_lshl_add_u32", ra, t1, 3, ra))
    b.append(n_(mk("s_lshl_b32", sY, sW, 12), mk("s_add_u32", sY, sY, WTS)))
    b.append(v_("v_add_u32", ra, sY, ra))
    b.append(("blk", lambda p: p.wait_tag(f"WT{rnd}")))
    FR = PKD[0:16]
    for nt in range(4):
        for rd in range(2):
            b.append(n_(mk("ds_read_b64_tr_b16", FR[4 * nt + 2 * rd:4 * nt + 2 * rd + 2], ra, mods=f"offset:{rd * 512 + 32 * nt}")))
    b.append(n_(mk("s_mul_i32", sY, sk, 40), mk("s_lshl_b32", su, sc, 2), mk("s_add_u32", sY, sY, su),
                mk("s_lshl_b32", sY, sY, 10), mk("s_add_u32", sY, sY, L.F_WT)))
    for nt in range(4):
        b.append(n_(mk("buffer_store_dwordx4", FR[4 * nt:4 * nt + 4], l16, WS, sY, mods=f"offen offset:{1024 * nt}" + st,
                       tag=f"WS{rnd}" if nt == 3 else None)))

    def flag(p):
        p.wait_tag(f"WS{rnd}")
        flag_store(p, TMP[1], WS, sst)
    return a, b, ("blk", flag), sst


def o_stage_parts(o):
    st = o["st"]
    KVR = V(96, 24)
    AB = [V(120 + 4 * i, 4) for i in range(8)]
    OA = V(152, 32)
    OP = [V(184, 10), V(194, 10)]
    t0, t1, ta, aa = V(204), V(205), V(206), V(207)
    Z4 = V(160, 4)
    sA, sB = S(16), S(17)
    POLL, PADDR = V(204), V(205)
    cnt_load = [v_("v_and_b32", PADDR, 3, lane), v_("v_mul_u32_u24", PADDR, L.KVS, PADDR),
                n_(mk("s_mul_i32", sA, sP, 4 * L.KVS), mk("s_add_u32", sA, sA, L.F_KV + 6144)),
                n_(mk("buffer_load_dword", POLL, PADDR, WS, sA, mods="offen sc1"))]
    cnt_check = ("blk", poll_block(POLL, PADDR, WS, sA, 16, "Y_kc"))
    kvl = [n_(mk("s_lshl_b32", sA, sP, 2), mk("s_add_u32", sA, sA, sW), mk("s_mul_i32", sA, sA, L.KVS),
              mk("s_add_u32", sA, sA, L.F_KV), mk("s_add_u32", sB, sA, 4096))]
    for r in range(24):
        off = r * 256
        kvl.append(n_(mk("buffer_load_dword", KVR[r], l4, WS, sA if off < 4096 else sB, mods=f"offen offset:{off & 4095} sc1")))
    out = []
    for r in range(4):
        out.append(v_("v_mov_b32", Z4[r], 0))
    out.append(v_("v_add_u32", t0, LDS_Z2, l16))
    for k in range(4):
        out.append(n_(mk("ds_write_b128", t0, Z4, mods=f"offset:{1024 * k}")))
    out += [v_("v_and_b32", t0, 15, lane), v_("v_lshrrev_b32", t1, 4, lane), v_("v_mul_u32_u24", ta, 80, t0),
            v_("v_lshl_add_u32", ta, t1, 3, ta), n_(mk("s_mul_i32", sA, sW, 1920)), v_("v_add_u32", ta, sA, ta)]
    out += [v_("v_lshrrev_b32", t0, 5, lane), v_("v_bfe_u32", t1, lane, 2, 1),
            v_("v_cmp_eq_u32", "vcc", t0, t1),
            v_("v_mul_u32_u24", t0, 2 * 1920, t0), v_("v_bfe_u32", t1, lane, 3, 2), v_("v_lshlrev_b32", t1, 2, t1),
            v_("v_and_b32", aa, 3, lane), v_("v_add_u32", t1, t1, aa), v_("v_mul_u32_u24", t1, 80, t1),
            v_("v_add_u32", t0, t0, t1), v_("v_mov_b32", t1, LDS_Z2), v_("v_cndmask_b32", aa, t1, t0, "vcc")]
    for dt in range(2):
        for ft in range(3):
            r0 = (dt * 3 + ft) * 4
            out.append(v_("v_cvt_pk_bf16_f32", KVR[r0], KVR[r0], KVR[r0 + 1]))
            out.append(v_("v_cvt_pk_bf16_f32", KVR[r0 + 1], KVR[r0 + 2], KVR[r0 + 3]))
    masks = {(0, 0): None, (1, 0): None, (2, 0): (0xFFFFFFFF, 0), (0, 1): (0x00FF00FF, 0x00FF00FF),
             (1, 1): (0x00FF00FF, 0x00FF00FF), (2, 1): (0x00FF00FF, 0)}
    for (ft, dt), m in masks.items():
        r0 = (dt * 3 + ft) * 4
        ins = []
        if m:
            ins += [mk("s_mov_b32", sEX[0], m[0]), mk("s_mov_b32", sEX[1], m[1]), mk("s_mov_b64", "exec", sEX)]
        ins.append(mk("ds_write_b64", ta, KVR[r0:r0 + 2], mods=f"offset:{LDS_T + dt * 16 * 80 + ft * 32}"))
        if m:
            ins.append(mk("s_mov_b64", "exec", -1))
        out.append(n_(*ins))

    def bar(p):
        p.wait_lgkm0()
        p.e("s_barrier")
    out.append(("blk", bar))
    for hh in range(2):
        seq = [(u, c) for u in range(2) for c in range(5)]
        rd = lambda n: n_(mk("ds_read_b128", AB[n % 8], aa, mods=f"offset:{LDS_T + hh * 1920 + seq[n][0] * 1280 + seq[n][1] * 16}"))
        for n in range(6):
            out.append(rd(n))
        for n, (u, c) in enumerate(seq):
            d = OA[16 * u:16 * u + 16]
            out.append(("m", [mk("v_mfma_f32_32x32x16_bf16", d, AB[n % 8], PKD[20 * hh + 4 * c:20 * hh + 4 * c + 4], d if c else 0)]))
            if n + 6 < len(seq):
                out.append(rd(n + 6))
        out += [v_("v_add_f32", t0, 1e-6, OA[20]), ("t", [mk("v_rcp_f32", t0, t0)])]
        for d in range(20):
            out.append(v_("v_mul_f32", OA[d], t0, OA[d]))
        for q in range(10):
            out.append(v_("v_cvt_pk_bf16_f32", OP[hh][q], OA[2 * q], OA[2 * q + 1]))
    for q in range(10):
        out.append(v_("v_permlane16_swap_b32", OP[0][q], OP[1][q]))
    out.append(n_(mk("s_lshl_b32", sA, sRB, 3), mk("s_lshl_b32", sB, sW, 1), mk("s_add_u32", sA, sA, sB),
                  mk("s_lshl_b32", sA, sA, 3), mk("s_add_u32", sA, sA, sP), mk("s_mul_i32", sA, sA, 2560),
                  mk("s_add_u32", sA, sA, L.F_OB), mk("s_add_u32", sB, sA, 8 * 2560)))
    for h, sx in ((0, sA), (1, sB)):
        d = OP[h]
        out.append(n_(mk("buffer_store_dwordx4", d[0:4], l16, WS, sx, mods="offen" + st)))
        out.append(n_(mk("buffer_store_dwordx4", d[4:8], l16, WS, sx, mods="offen offset:1024" + st)))
        out.append(n_(mk("buffer_store_dwordx2", d[8:10], l8, WS, sx, mods="offen offset:2048" + st, tag="OST" if h else None)))

    def flag(p):
        p.wait_tag("OST")
        pair_flag(p, L.F_FLO, t0, sA, sB)
    return cnt_load, cnt_check, kvl, out, flag


def pair_flag(p, base, vtmp, sA, sB):
    p.e("s_lshl_b32", sA, sRB, 1)
    p.e("s_lshr_b32", sB, sW, 1)
    p.e("s_add_u32", sA, sA, sB)
    p.e("s_lshl_b32", sA, sA, 3)
    p.e("s_add_u32", sA, sA, sP)
    p.e("s_lshl_b32", sA, sA, 1)
    p.e("s_and_b32", sB, sW, 1)
    p.e("s_add_u32", sA, sA, sB)
    p.e("s_lshl_b32", sA, sA, 2)
    p.e("s_add_u32", sA, sA, base)
    flag_store(p, vtmp, WS, sA)


def h_flag(p, typ):
    e = p.e
    p.wait_tag("HST")
    e("s_lshl_b32", sT0, sRB, 1)
    e("s_lshr_b32", sT1, sW, 1)
    e("s_add_u32", sT0, sT0, sT1)
    e("s_lshl_b32", sT0, sT0, 3)
    e("s_add_u32", sT0, sT0, sP)
    e("s_lshl_b32", sT0, sT0, 2)
    e("s_and_b32", sT1, sW, 1)
    e("s_add_u32", sT0, sT0, sT1)
    if typ == "Y":
        e("s_add_u32", sT0, sT0, 2)
    e("s_lshl_b32", sT0, sT0, 2)
    e("s_add_u32", sT0, sT0, L.F_FLH)
    flag_store(p, V(90), WS, sT0)


srt, sct = S(43), S(23)
sH0, sO0, sW0, sFH, sFO, sFW, sFE = S(28), S(29), S(30), S(31), S(40), S(41), S(42)
OUT = S(44, 4)
sST = [S(64 + k) for k in range(12)]
sOI = [S(76 + k) for k in range(4)]
LONE = (6, 10)


def phase2_scalars(o):
    q = Prog()
    e = q.e
    sR, t0, t1, t2, t3 = S(84), S(85), S(86), S(87), S(88)
    e("s_and_b32", t0, S(2), 7)
    e("s_lshr_b32", t1, S(2), 3)
    e("s_lshr_b32", srt, t0, 1)
    e("s_lshl_b32", srt, srt, 3)
    e("s_and_b32", t2, t1, 7)
    e("s_add_u32", srt, srt, t2)
    e("s_and_b32", sct, t0, 1)
    e("s_lshl_b32", sct, sct, 2)
    e("s_lshr_b32", t3, t1, 3)
    e("s_add_u32", sct, sct, t3)
    if o["rot2"]:
        e("s_mul_i32", t3, t3, 3)
        e("s_add_u32", sR, t3, t2)
    else:
        e("s_mov_b32", sR, 0)
    srd(q, OUT, OUTP, 2048 * 640 * 2)
    for n in range(4):
        e("s_add_u32", t0, sR, n)
        e("s_and_b32", sOI[n], t0, 3)
        e("s_lshr_b32", t1, sOI[n], 1)
        e("s_mul_i32", t1, t1, 6)
        e("s_and_b32", t2, sOI[n], 1)
        e("s_add_u32", t1, t1, t2)
        e("s_add_u32", t1, t1, 4)
        e("s_lshl_b32", sST[n], t1, 10)
    pos_pair = [4, 5, 7, 8, 9, 11]
    e("s_mul_i32", t0, sR, 43)
    e("s_lshr_b32", t0, t0, 8)
    e("s_mul_i32", t0, t0, 6)
    e("s_sub_u32", t0, sR, t0)
    for n, pos in enumerate(pos_pair):
        e("s_cmp_ge_u32", t0, 3)
        e("s_cselect_b32", t1, 3, 0)
        e("s_sub_u32", t2, t0, t1)
        e("s_lshl_b32", t1, t1, 1)
        e("s_add_u32", t1, t1, t2)
        e("s_cmp_ge_u32", t2, 2)
        e("s_cselect_b32", t2, 1, 0)
        e("s_add_u32", t1, t1, t2)
        e("s_lshl_b32", sST[pos], t1, 10)
        if n < 5:
            e("s_add_u32", t0, t0, 1)
            e("s_cmp_eq_u32", t0, 6)
            e("s_cselect_b32", t0, 0, t0)
    e("s_and_b32", t0, sR, 1)
    e("s_mul_i32", t1, t0, 6 * 1024)
    e("s_add_u32", sST[LONE[0]], t1, 2048)
    e("s_sub_u32", sST[LONE[1]], 2048 + 6 * 1024, t1)
    e("s_lshl_b32", t0, srt, 5)
    e("s_lshl_b32", t1, sW, 1)
    e("s_add_u32", t0, t0, t1)
    e("s_mul_i32", sH0, t0, 6144)
    if L.F_HB:
        e("s_add_u32", sH0, sH0, L.F_HB)
    e("s_mul_i32", sO0, t0, 2560)
    e("s_add_u32", sO0, sO0, L.F_OB)
    e("s_mul_i32", sW0, sW, 17 * 40)
    e("s_mul_i32", t1, sct, 5)
    e("s_add_u32", sW0, sW0, t1)
    e("s_lshl_b32", sW0, sW0, 10)
    e("s_add_u32", sW0, sW0, L.F_WT)
    e("s_lshl_b32", t0, srt, 3)
    e("s_lshl_b32", t1, sW, 1)
    e("s_add_u32", t0, t0, t1)
    e("s_lshl_b32", sFH, t0, 4)
    e("s_add_u32", sFH, sFH, L.F_FLH)
    e("s_lshl_b32", sFO, t0, 3)
    e("s_add_u32", sFE, sFO, L.F_FLE)
    e("s_add_u32", sFO, sFO, L.F_FLO)
    e("s_mul_i32", t0, sct, 80)
    e("s_lshr_b32", t0, t0, 6)
    e("s_mul_i32", t1, sW, 10)
    e("s_add_u32", t0, t0, t1)
    e("s_lshl_b32", sFW, t0, 7)
    e("s_add_u32", sFW, sFW, L.F_FLW)
    return atomize_scalar(q.ins)


def phase2(p, typ, o):
    e = p.e
    ld = o["ld"]
    D = o["d2"]
    tmp_s = [S(82 + k) for k in range(8)]
    ti = [0]

    def ts():
        ti[0] += 1
        return tmp_s[ti[0] % len(tmp_s)]

    PW, AW, PE, AE = V(22), V(23), V(88), V(89)
    e("v_and_b32", AW, 31, lane)
    e("v_min_u32", AW, 16, AW)
    e("v_lshrrev_b32", PW, 5, lane)
    e("v_lshlrev_b32", PW, 7, PW)
    e("v_lshl_add_u32", AW, AW, 2, PW)
    e("buffer_load_dword", PW, AW, WS, sFW, mods="offen sc1")
    e("v_and_b32", AE, 3, lane)
    e("v_lshlrev_b32", AE, 2, AE)
    e("buffer_load_dword", PE, AE, WS, sFE, mods="offen sc1")
    vA = [V(5 + a) for a in range(4)]
    vL = [V(9 + a) for a in range(4)]
    vO = [V(13 + a) for a in range(4)]
    vR = [V(17 + a) for a in range(4)]
    vW4 = V(21)
    for a in range(4):
        e("v_add_u32", vA[a], 49152 * a, l16)
        e("v_add_u32", vL[a], 49152 * a, l8)
        e("v_add_u32", vO[a], 20480 * a, l16)
        e("v_add_u32", vR[a], 20480 * a, l8)
    e("v_add_u32", vW4, 4096, l16)
    XRES = V(74, 10)
    xo = [V(64 + k) for k in range(5)]
    ro = [V(69 + k) for k in range(5)]
    rq = Prog()
    f = rq.e
    f("s_lshl_b32", S(80), srt, 6)
    f("s_mul_i32", S(80), S(80), 1280)
    f("s_mul_i32", S(81), sct, 160)
    f("s_add_u32", S(80), S(80), S(81))
    for k in range(5):
        it, row, c4, tt = V(84), V(85), V(86), V(87)
        f("s_lshl_b32", S(81), sW, 6)
        f("s_add_u32", S(81), S(81), 256 * k)
        f("v_add_u32", it, S(81), lane)
        f("v_mul_u32_u24", row, 3277, it)
        f("v_lshrrev_b32", row, 16, row)
        f("v_mul_u32_u24", c4, 20, row)
        f("v_sub_u32", c4, it, c4)
        f("v_mul_u32_u24", tt, 1280, row)
        f("v_lshl_add_u32", tt, c4, 3, tt)
        f("v_add_u32", xo[k], S(80), tt)
        f("v_mul_u32_u24", tt, RPITCH, row)
        f("v_lshl_add_u32", tt, c4, 4, tt)
        f("v_add_u32", ro[k], LDS_R, tt)
        f("buffer_load_dwordx2", XRES[2 * k:2 * k + 2], xo[k], XS, 0, mods="offen")
    res_atoms = atomize(rq.ins)
    h_flag(p, typ)
    p.stamp("p1_end")

    if typ == "Y":
        D = o.get("d2y", 6)
        pool = [A(80 + 4 * i, 4) for i in range(44)] + [V(208 + 4 * i, 4) for i in range(12)]
    else:
        D = o.get("d2x", 8)
        pool = [A(80 + 4 * i, 4) for i in range(44)] + [V(96 + 4 * i, 4) for i in range(40)]
    assert D * 9 <= len(pool)
    slot = lambda s_, i: pool[(s_ % D) * 9 + i]

    def w_loads(pos):
        s_ = ts()
        if pos < 12:
            pre = [mk("s_mul_i32", s_, sST[pos], 40), mk("s_add_u32", s_, s_, sW0)]
        elif pos < 16:
            pre = [mk("s_add_u32", s_, sOI[pos - 12], 12), mk("s_mul_i32", s_, s_, 40960), mk("s_add_u32", s_, s_, sW0)]
        else:
            pre = [mk("s_add_u32", s_, sW0, 16 * 40960)]
        out = []
        for nt in range(5):
            i = mk("buffer_load_dwordx4", slot(pos, 4 + nt), l16 if nt < 4 else vW4, WS, s_,
                   mods=f"offen offset:{1024 * (nt % 4)}" + ld)
            out.append((pre if nt == 0 else []) + [i])
        return out

    def a_loads(pos):
        s_ = ts()
        out = []
        if pos < 12:
            pre = [mk("s_add_u32", s_, sST[pos], sH0)]
            for a in range(4):
                q = slot(pos, a)
                if pos in LONE:
                    out.append((pre if a == 0 else []) + [mk("buffer_load_dwordx2", q[0:2], vL[a], WS, s_, mods="offen" + ld)])
                    out.append([mk("buffer_load_dwordx2", q[2:4], vL[a], WS, s_, mods="offen offset:512" + ld)])
                else:
                    out.append((pre if a == 0 else []) + [mk("buffer_load_dwordx4", q, vA[a], WS, s_, mods="offen" + ld)])
        elif pos < 16:
            s2 = ts()
            pre = [mk("s_lshr_b32", s_, sOI[pos - 12], 1), mk("s_mul_i32", s_, s_, 2560), mk("s_and_b32", s2, sOI[pos - 12], 1),
                   mk("s_lshl_b32", s2, s2, 10), mk("s_add_u32", s_, s_, s2), mk("s_add_u32", s_, s_, sO0)]
            for a in range(4):
                out.append((pre if a == 0 else []) + [mk("buffer_load_dwordx4", slot(pos, a), vO[a], WS, s_, mods="offen" + ld)])
        else:
            pre = [mk("s_add_u32", s_, sO0, 2048)]
            for a in range(4):
                q = slot(pos, a)
                out.append((pre if a == 0 else []) + [mk("buffer_load_dwordx2", q[0:2], vR[a], WS, s_, mods="offen" + ld)])
                out.append([mk("buffer_load_dwordx2", q[2:4], vR[a], WS, s_, mods="offen offset:2560" + ld)])
        return out

    def emit_groups(gs):
        for grp in gs:
            for i in grp:
                p.add(i)

    def loads(pos):
        return a_loads(pos) + w_loads(pos)

    poll_block(PW, AW, WS, sFW, 1, typ + "_fw")(p)
    poll_block(PE, AE, WS, sFE, 1, typ + "_fe")(p)
    p.stamp("p2_flags")
    for pos in range(4):
        emit_groups(a_loads(pos) + w_loads(pos))
    for pos in range(4, o.get("wpre", 5)):
        emit_groups(w_loads(pos))
    OPOS = o.get("opos", 1)
    if typ == "Y":
        cnt_load, cnt_check, kvl, ocomp, oflag = o_stage_parts(o)
    side = Side(p)

    ACC = lambda a, nt: A((a * 5 + nt) * 4, 4)
    LCHK, OCHK = o.get("lchk", 1), o.get("ochk", 8)
    POLL, PA_ = V(22), V(23)
    nA, nW = 4, max(4, o.get("wpre", 5))
    for pos in range(17):
        pending = []
        want = min(17, pos + D)
        while nA < want and ((nA < 12 and pos > LCHK) or pos > OCHK):
            pending += a_loads(nA)
            nA += 1
        wl = []
        while nW < want and len(wl) < 5 * o.get("wper", 2):
            wl += w_loads(nW)
            nW += 1
        pending += wl
        if pos == LCHK:
            e("v_and_b32", PA_, 7, lane)
            e("v_lshlrev_b32", PA_, 2, PA_)
            e("buffer_load_dword", POLL, PA_, WS, sFH, mods="offen sc1")
        if pos == OCHK:
            e("v_and_b32", PA_, 3, lane)
            e("v_lshlrev_b32", PA_, 2, PA_)
            e("buffer_load_dword", POLL, PA_, WS, sFO, mods="offen sc1")
        if typ == "Y" and pos == OPOS - 1:
            emit_atoms(p, cnt_load)
        if typ == "Y" and pos == OPOS:
            emit_atoms(p, [cnt_check])
            emit_atoms(p, kvl)
            every = max(1, len(ocomp) // (len(pending) + 1))
            for n, a in enumerate(ocomp):
                emit_atoms(p, [a])
                if pending and n % every == every - 1:
                    emit_groups([pending.pop(0)])
            emit_groups(pending)
            pending = []
            p.stamp("p2_o")
        if pos == (OPOS + 2 if typ == "Y" else 3):
            side.q = list(res_atoms)
        if pos in (0, 2, 4, 8, 12):
            p.stamp(f"p2_s{pos}")
        n = 0
        for nt in range(5):
            for a in range(4):
                d = ACC(a, nt)
                e("v_mfma_f32_16x16x32_bf16", d, slot(pos, 4 + nt), slot(pos, a), d if pos else 0)
                n += 1
                if pending and (n % 2 == 0 or len(pending) > 20 - n):
                    for i in pending.pop(0):
                        p.add(i)
                elif side.q:
                    side.fill(2, nmax=1)
        emit_groups(pending)
        if typ == "Y" and pos == OPOS + 1:
            oflag(p)
        if pos == LCHK:
            poll_block(POLL, PA_, WS, sFH, 1, typ + "_fh")(p)
            p.stamp("p2_late")
        if pos == OCHK:
            poll_block(POLL, PA_, WS, sFO, 1, typ + "_fo")(p)
            p.stamp("p2_ochk")
    side.flush()
    p.stamp("p2_loop")

    g_, n16, wa = V(84), V(85), V(86)
    e("v_lshrrev_b32", g_, 4, lane)
    e("v_and_b32", n16, 15, lane)
    e("v_mul_u32_u24", wa, RPITCH, n16)
    e("v_lshl_add_u32", wa, g_, 4, wa)
    e("s_mul_i32", sT0, sW, 64 * RPITCH)
    e("s_add_u32", sT0, sT0, LDS_R)
    e("v_add_u32", wa, sT0, wa)
    for a in range(4):
        for nt in range(5):
            e("ds_write_b128", wa, ACC(a, nt), mods=f"offset:{a * 16 * RPITCH + nt * 64}")
    p.wait_lgkm0()
    e("s_barrier")
    p.stamp("p2_red")
    RB = V(96, 80)
    for k in range(5):
        for w in range(4):
            e("ds_read_b128", RB[16 * k + 4 * w:16 * k + 4 * w + 4], ro[k], mods=f"offset:{w * 64 * RPITCH}")
    e("s_mov_b32", sT0, 0xFFFF0000)
    for k in range(5):
        b = 16 * k
        for i in range(4):
            e("v_add_f32", RB[b + i], RB[b + i], RB[b + 4 + i])
            e("v_add_f32", RB[b + 8 + i], RB[b + 8 + i], RB[b + 12 + i])
        e("v_lshlrev_b32", RB[b + 4], 16, XRES[2 * k])
        e("v_and_b32", RB[b + 5], sT0, XRES[2 * k])
        e("v_lshlrev_b32", RB[b + 6], 16, XRES[2 * k + 1])
        e("v_and_b32", RB[b + 7], sT0, XRES[2 * k + 1])
        for i in range(4):
            e("v_add_f32", RB[b + i], RB[b + i], RB[b + 8 + i])
        for i in range(4):
            e("v_add_f32", RB[b + i], RB[b + i], RB[b + 4 + i])
        e("v_cvt_pk_bf16_f32", RB[b], RB[b], RB[b + 1])
        e("v_cvt_pk_bf16_f32", RB[b + 1], RB[b + 2], RB[b + 3])
        e("buffer_store_dwordx2", RB[b:b + 2], xo[k], OUT, 0, mods="offen")
    p.stamp("end")


def body_x(p, o, vx):
    st = o["st"]
    kv = Pass("kv", "kv", 5, ACC_A, 320, 20, 20, WQ, 3840, sROTQ, [V(5 + j) for j in range(5)], [V(16)], 0)
    u80 = Pass("u80", "U", 5, ACC_B, 160, 10, 10, WU, 3072, sROTU, [V(10 + j) for j in range(5)], [V(17), V(18)], 0)
    stream = Stream(p, [kv, u80], 5, o)
    stream.m0_each = False
    phr = prologue(p, "X", [kv, u80], stream, o, vx)
    run_first_pass(p, stream, o["q1x"], phr, guard_load(), o.get("sx0", ()))
    p.stamp("pass1")
    vPK, vV = V(19), V(20)
    side = [guard_check("X_g")]
    side += [v_("v_and_b32", TMP[0], 31, lane), n_(mk("s_lshl_b32", sT0, sW, 5)), v_("v_add_u32", TMP[0], sT0, TMP[0]),
             v_("v_lshrrev_b32", TMP[1], 5, lane), v_("v_mul_u32_u24", TMP[0], 80, TMP[0]),
             v_("v_mul_u32_u24", TMP[2], 20480, TMP[1]), v_("v_mul_u32_u24", TMP[1], 10240, TMP[1]),
             v_("v_add_u32", vPK, TMP[0], TMP[2]), v_("v_add_u32", vV, TMP[0], TMP[1]),
             v_("v_add_u32", vPK, PKB, vPK), v_("v_add_u32", vV, VB, vV)]
    side += pack_atoms(ACC_A, 20, EP, TMP[0], TMP[1])
    side += feature_mfma_atoms(EP)
    side += pack_atoms(ACC_A + 40, 20, EP, TMP[0], TMP[1])
    for c in range(5):
        side.append(n_(mk("ds_write_b128", vV, EP[4 * c:4 * c + 4], mods=f"offset:{16 * c}")))
    POLL, PADDR = V(51 - 46 + 10), V(51 - 46 + 11)
    side += [n_(mk("s_lshl_b32", sT0, sP, 2), mk("s_add_u32", sT0, sT0, sW), mk("s_lshl_b32", sMISC, sT0, 2)),
             v_("v_mov_b32", PADDR, 0),
             n_(mk("buffer_load_dword", POLL, PADDR, DBG, sMISC, mods="offen sc1"))]
    addr, kvblk, post, sB = kv_atoms(o)
    for hh in range(2):
        side += softmax_atoms(hh)
        if hh == 1:
            side += addr
        for c in range(5):
            side.append(n_(mk("ds_write_b128", vPK, PKD[20 * hh + 4 * c:20 * hh + 4 * c + 4], mods=f"offset:{10240 * hh + 16 * c}")))
    side.append(("blk", lambda p_: p_.stamp("softmax_done")))
    side.append(("blk", poll_block(POLL, PADDR, DBG, sMISC, 1, "X_z")))
    side.append(("blk", kvblk))
    side += post
    side.append(("blk", lambda p_: p_.stamp("kv_done")))
    stream.side.q = interleave(side, phase2_scalars(o), start=150)
    stream.run_pass(1, o["q2x"], stamp_at=o.get("sx1", ()))
    stream.side.flush()
    p.stamp("pass2")
    p.wait_lgkm0()
    p.e("s_barrier")
    G, U = EP[0:8], EP[8:16]
    PA, PB = PKD[40:44], PKD[44:48]
    atoms = glu_atoms(ACC_B, [("pair", 0, L.H_X01), ("pair", 2, L.H_X23), ("lone", 4, L.H_XL)], st, (G, U, PA, PB), tag="HST")
    emit_atoms(p, atoms)
    p.wait_tag("KVA")
    p.e("s_add_u32", sT0, sB, 2048)
    flag_store(p, TMP[0], WS, sT0, atomic=True)
    phase2(p, "X", o)


def body_y(p, o, vx):
    st = o["st"]
    u64 = Pass("u64", "U", 4, ACC_A, 160, 10, 8, WU, 3072, sROTU, [V(5 + j) for j in range(5)], [V(16), V(17)], 128)
    q = Pass("q", "q", 3, ACC_B, 192, 12, 12, WQ, 3840, sROTQ, [V(10 + j) for j in range(3)], [V(18)], 0)
    u48 = Pass("u48", "U", 3, ACC_A, 96, 6, 6, WU, 3072, sROTU, [V(13 + j) for j in range(3)], [V(19), V(20)], 80)
    stream = Stream(p, [u64, q, u48], 7, o)
    phr = prologue(p, "Y", [u64, q, u48], stream, o, vx)
    run_first_pass(p, stream, o["q1y"], phr, guard_load(), o.get("sy0", ()))
    p.stamp("pass1")
    G, U = EP[0:8], EP[8:16]
    PA, PB = PKD[16:20], PKD[20:24]
    wa0, wb0, wf0, _ = wt_round_atoms(0, st)
    wa1, wb1, wf1, _ = wt_round_atoms(1, st)
    glu = glu_atoms(ACC_A, [("pair", 0, L.H_Y64A), ("pair", 2, L.H_Y64B)], st, (G, U, PA, PB), tag="HE")

    def early_flag(p_):
        p_.wait_tag("HE")
        pair_flag(p_, L.F_FLE, TMP[1], S(16), S(17))
    stream.side.q = [guard_check("Y_g")] + wa0 + glu + wb0
    stream.run_pass(1, o["q2y"], hooks={75: lambda s_: s_.side.q.extend([wf0, ("blk", early_flag)] + wa1), 112: lambda s_: s_.side.q.extend(wb1)},
                    stamp_at=o.get("sy1", ()))
    stream.side.flush()
    p.stamp("pass2")
    side = pack_atoms(ACC_B, 20, EP, TMP[0], TMP[1])
    side += feature_mfma_atoms(EP)
    side.append(wf1)
    for hh in range(2):
        side += softmax_atoms(hh)
    stream.side.q = interleave(side, phase2_scalars(o), start=90)
    stream.run_pass(2, o["q3y"], stamp_at=o.get("sy2", ()))
    stream.side.flush()
    p.stamp("pass3")
    p.wait_lgkm0()
    p.e("s_barrier")
    atoms = glu_atoms(ACC_A, [("lone", 0, L.H_YL), ("pair", 1, L.H_Y48)], st, (EP[0:8], EP[8:16], PKD[40:44], PKD[44:48]), tag="HST")
    emit_atoms(p, atoms)
    phase2(p, "Y", o)


def build(**kw):
    o = dict(DEF)
    o.update(kw)
    p = Prog()
    p.stamps_on = o["stamps"]
    p.lane_stamps = True
    e = p.e
    e("s_cmp_ge_u32", S(2), 256)
    e("s_cbranch_scc1", "F_end")
    p.stamp("start_rt", real=True)
    p.stamp("start")
    e("s_load_dwordx8", S(4, 8), S(0, 2), 0)
    e("s_load_dwordx4", S(12, 4), S(0, 2), 40)
    e("s_load_dwordx2", WDP, S(0, 2), 56)
    e("s_load_dwordx2", OUTP, S(0, 2), 64)
    e("s_load_dwordx4", S(16, 4), S(0, 2), 72)
    e("v_and_b32", lane, 63, V(0))
    e("v_lshrrev_b32", V(5), 6, V(0))
    e("v_lshlrev_b32", l16, 4, lane)
    e("v_readfirstlane_b32", sW, V(5))
    e("v_lshlrev_b32", l8, 3, lane)
    e("v_lshlrev_b32", l4, 2, lane)
    e("s_and_b32", sT0, S(2), 7)
    e("s_lshr_b32", sT1, S(2), 3)
    e("s_and_b32", sRB, sT0, 1)
    e("s_lshl_b32", sRB, sRB, 3)
    e("s_and_b32", sT2, sT1, 7)
    e("s_add_u32", sRB, sRB, sT2)
    e("s_lshr_b32", sT0, sT0, 1)
    e("s_lshl_b32", sT0, sT0, 2)
    e("s_lshr_b32", sT1, sT1, 3)
    e("s_add_u32", sT0, sT0, sT1)
    e("s_lshr_b32", sP, sT0, 1)
    e("s_and_b32", sMISC, sT0, 1)
    if o["rot"]:
        e("s_mul_i32", sT1, sT1, 3)
        e("s_add_u32", sROT, sT1, sT2)
        e("s_cmp_ge_u32", sROT, 10)
        e("s_cselect_b32", sT1, 10, 0)
        e("s_sub_u32", sROT, sROT, sT1)
    else:
        e("s_mov_b32", sROT, 0)
    e("s_mul_i32", sROTQ, sROT, 64 * 3840)
    e("s_mul_i32", sROTU, sROT, 64 * 3072)
    e("s_mov_b32", sMASK, 0xFFFF0000)
    e("s_mov_b32", sL2E, LOG2E)
    vx = prologue_lane(p)
    p.wait_smem()
    extra = 1024 * 256 if o["stamps"] else 0
    srd(p, XS, S(4, 2), 2048 * 640 * 2)
    srd(p, WQ, S(6, 2), 640 * 1920 * 2)
    srd(p, PH, S(8, 2), 32 * 400 * 2)
    srd(p, WS, S(18, 2), L.F_END + extra)
    srd(p, DBG, S(16, 2), 256)
    e("s_cmp_ge_u32", sW, 2)
    e("s_cselect_b32", WU[0], S(14), S(12))
    e("s_cselect_b32", WU[1], S(15), S(13))
    e("s_mov_b32", WU[2], 640 * 1536 * 2)
    e("s_mov_b32", WU[3], 0x20000)
    e("s_lshl_b32", sT0, sRB, 3)
    e("s_lshl_b32", sT1, sW, 1)
    e("s_add_u32", sT0, sT0, sT1)
    e("s_lshl_b32", sT0, sT0, 3)
    e("s_add_u32", sT0, sT0, sP)
    e("s_mul_i32", sHB, sT0, 6144)
    if L.F_HB:
        e("s_add_u32", sHB, sHB, L.F_HB)
    e("s_cmp_eq_u32", sMISC, 1)
    e("s_cbranch_scc1", "F_Y")
    p.fork_save()
    names0 = list(getattr(p, "stamp_names", []))

    def dump():
        if o["stamps"]:
            p.stamp("end_rt", real=True)
            e("s_lshl_b32", sT0, S(2), 2)
            e("s_add_u32", sT0, sT0, sW)
            e("s_lshl_b32", sT0, sT0, 8)
            e("s_add_u32", sT0, sT0, L.F_END)
            p.dump_stamps(WS, sT0, l4)
    body_x(p, o, vx)
    dump()
    p.names_x = list(getattr(p, "stamp_names", []))
    e("s_endpgm")
    p.label("F_Y")
    p.fork_restore()
    if o["stamps"]:
        p.stamp_names = list(names0)
    body_y(p, o, vx)
    dump()
    p.names_y = list(getattr(p, "stamp_names", []))
    p.label("F_end")
    e("s_endpgm")
    return p
```

```python
from asmlib import V, A, S, Neg, Prog, mk
import layout as L

NAME = "parallel_sum__linear_kernel_hedgehog__glu_gated_reglu__prompt_kernel"
LDS_BYTES = 163840
SLOT = 20480
XSTG, XW = 40960, 28672
PTB = 155648
ZB = PTB + 3584
PKB, VB = 102400, 143360
WTS = 143360
LDS_T, LDS_Z2, LDS_R, RPITCH = 0, 7680, 16384, 336
LOG2E = 1.4426950408889634
OOB = 0x7FF00000
SPIN_MAX = 1 << 18
DBG_Z, DBG_G = 128, 64

sW, sRB, sP, sROT = S(52), S(53), S(54), S(55)
sSRC, sT0, sT1, sT2, sT3 = S(56), S(57), S(58), S(59), S(60)
sMASK, sL2E, sMISC = S(61), S(62), S(63)
XS, WQ, WU, WS, PH, WD, DBG = (S(k, 4) for k in (24, 28, 32, 36, 40, 44, 48))
sROTQ, sROTU, sHB, sXP = S(20), S(21), S(22), S(23)
OUTP, WDP = S(94, 2), S(98, 2)
WREG = [S(96), S(97), S(3)]
sEX = S(100, 2)
lane, l16, l8, l4 = V(1), V(2), V(3), V(4)
RSTD, CEN = V(21), V(22)
XR = lambda s: V(96 + 4 * s, 4)
PKD = V(24, 48)
EP = V(72, 20)
TMP = [V(23), V(92), V(93), V(94), V(95)]
ACC_A, ACC_B, FB0, PHI0 = 0, 80, 160, 192

DEF = dict(rot=True, st=" sc1", ld=" sc1", q0=5, q1x=4, q1y=5, q2x=4, q2y=3, q3y=4, depth=6, d2=5, stamps=False,
           rot2=True)


def v_(op, *a, **k):
    return ("v", [mk(op, *a, **k)])


def n_(*ins):
    return ("n", list(ins))


def atomize(ins):
    out = []
    for i in ins:
        if i.cls == "valu":
            out.append(("v", [i]))
        elif i.cls in ("salu", "vmem") and out and out[-1][0] == "n" and out[-1][1][-1].cls == "salu":
            out[-1][1].append(i)
        else:
            out.append(("n", [i]))
    return out


def atomize_scalar(ins):
    out = []
    for i in ins:
        if out and (i.op.startswith("s_cselect") or out[-1][1][-1].op.startswith("s_cmp")):
            out[-1][1].append(i)
        else:
            out.append(("n", [i]))
    return out


def interleave(main, extra, start=0):
    if not extra:
        return list(main)
    out = list(main[:start])
    rest = main[start:]
    step = max(1.0, len(rest) / (len(extra) + 1.0))
    k = 0
    for n, a in enumerate(rest):
        out.append(a)
        while k < len(extra) and (n + 1) >= (k + 1) * step:
            out.append(extra[k])
            k += 1
    return out + extra[k:]


def srd(p, k, base, nbytes):
    p.e("s_mov_b32", k[0], base[0])
    p.e("s_mov_b32", k[1], base[1])
    p.e("s_mov_b32", k[2], nbytes)
    p.e("s_mov_b32", k[3], 0x20000)


class Pass:
    def __init__(self, name, kind, nt, acc, pitch, cpr, ndata, srdreg, srcpitch, rot, voff, pat, col0):
        self.name, self.kind, self.nt, self.acc, self.pitch, self.cpr = name, kind, nt, acc, pitch, cpr
        self.ndata, self.srd, self.srcpitch, self.rot = ndata, srdreg, srcpitch, rot
        self.voff, self.pat, self.col0 = voff, pat, col0
        self.wreg = None
        self.ndma = len(voff)

    def reads(self, sl, t):
        P = self.pitch
        if self.kind == "U":
            return [(self.pat[rd], 16 * sl * P + 32 * t) for rd in range(2)]
        return [(self.pat[0], (16 * sl + 4 * rd) * P + 32 * t) for rd in range(2)]


def div_magic(n):
    return {20: 3277, 12: 5462, 10: 6554, 6: 10923}[n]


def setup_pass(p, ps, slot0, t, sc):
    e = p.e
    P = ps.pitch
    s0, s1, s2, s3 = sc
    if ps.kind == "U":
        e("s_lshr_b32", s0, sW, 1)
        e("s_mul_i32", s0, s0, 64 * P)
        e("s_and_b32", s1, sW, 1)
        e("s_mul_i32", s1, s1, 32 * P)
        e("s_add_u32", ps.wreg, s0, s1)
        e("s_lshr_b32", s2, sW, 1)
        e("s_lshl_b32", s2, s2, 2)
        e("s_and_b32", s1, sW, 1)
        e("s_lshl_b32", s1, s1, 5)
        e("s_mul_i32", s3, sP, 384)
        e("s_add_u32", s3, s3, 2 * ps.col0)
    else:
        e("s_mul_i32", ps.wreg, sW, 16 * P)
        e("s_lshl_b32", s1, sW, 4)
        e("s_mul_i32", s3, sP, 160)
    e("s_mov_b32", s0, slot0)
    for j in range(ps.ndma):
        q, row, c = t[0], t[1], t[2]
        e("v_add_u32", q, 64 * j, lane)
        e("v_mul_u32_u24", row, div_magic(ps.cpr), q)
        e("v_lshrrev_b32", row, 16, row)
        e("v_mul_u32_u24", c, ps.cpr, row)
        e("v_sub_u32", c, q, c)
        if ps.kind == "kv":
            seg = t[3]
            e("v_mul_u32_u24", seg, 52, c)
            e("v_lshrrev_b32", seg, 8, seg)
            e("v_mul_u32_u24", q, 5, seg)
            e("v_sub_u32", c, c, q)
            e("v_and_b32", q, 1, seg)
            e("v_mul_u32_u24", q, 1280, q)
            e("v_lshl_add_u32", c, c, 4, q)
            e("v_lshrrev_b32", seg, 1, seg)
            e("v_mul_u32_u24", seg, 80, seg)
            e("v_add3_u32", c, c, seg, s3)
            e("v_add_u32", c, 1280 - 1024 * (j % 4), c)
        elif ps.kind == "q":
            hf = t[3]
            e("v_mul_u32_u24", hf, 43, c)
            e("v_lshrrev_b32", hf, 8, hf)
            e("v_mul_u32_u24", q, 6, hf)
            e("v_sub_u32", c, c, q)
            e("v_min_u32", c, 4, c)
            e("v_lshlrev_b32", c, 4, c)
            e("v_mul_u32_u24", hf, 80, hf)
            e("v_add3_u32", c, c, hf, s3)
        else:
            if ps.ndata < ps.cpr:
                e("v_min_u32", c, ps.ndata - 1, c)
            e("v_lshl_add_u32", c, c, 4, s3)
            e("v_xor_b32", row, s2, row)
        e("v_add_u32", row, s1, row)
        e("v_mul_u32_u24", row, ps.srcpitch, row)
        comp = 1024 * (j % 4) if ps.kind != "kv" else 0
        if comp:
            e("v_add_u32", row, row, c)
            e("v_subrev_u32", ps.voff[j], comp, row)
        else:
            e("v_add_u32", ps.voff[j], row, c)
    G1, kh, rho, pp = t[0], t[1], t[2], t[3]
    e("v_bfe_u32", G1, lane, 4, 1)
    e("v_lshrrev_b32", kh, 5, lane)
    e("v_bfe_u32", rho, lane, 2, 2)
    e("v_and_b32", pp, 3, lane)
    e("v_lshl_add_u32", rho, kh, 3, rho)
    e("v_mul_u32_u24", rho, P, rho)
    if ps.kind == "U":
        e("v_lshl_add_u32", rho, pp, 3, rho)
        e("v_mul_u32_u24", kh, 68 * P, G1)
        e("v_add3_u32", ps.pat[0], rho, kh, s0)
        e("v_mul_u32_u24", kh, 60 * P, G1)
        e("v_add_u32", kh, 4 * P, kh)
        e("v_add3_u32", ps.pat[1], rho, kh, s0)
    else:
        half = 160 if ps.kind == "kv" else 96
        e("v_and_b32", kh, 1, pp)
        e("v_mul_u32_u24", kh, half, kh)
        e("v_add_u32", rho, rho, kh)
        e("v_lshrrev_b32", pp, 1, pp)
        e("v_lshl_add_u32", pp, G1, 1, pp)
        e("v_lshl_add_u32", rho, pp, 3, rho)
        e("v_add_u32", ps.pat[0], s0, rho)


def dma_atoms(ps, slot, first_of_pass, tag, m0_each=True):
    out = []
    for j in range(ps.ndma):
        ins = []
        if j == 0 and first_of_pass:
            ins.append(mk("s_mov_b32", sSRC, ps.rot))
        if m0_each or j in (0, 4):
            ins.append(mk("s_add_u32", "m0", ps.wreg, slot * SLOT + (4096 if j == 4 else 0)))
        last = j == ps.ndma - 1
        ins.append(mk("buffer_load_dwordx4", ps.voff[j], ps.srd, sSRC, mods=f"offen offset:{1024 * (j % 4)} lds",
                      tag=tag if last else None))
        if last:
            step = 64 * ps.srcpitch
            ins.append(mk("s_add_u32", sSRC, sSRC, step))
            ins.append(mk("s_cmp_eq_u32", sSRC, 10 * step))
            ins.append(mk("s_cselect_b32", sSRC, 0, sSRC))
        out.append(ins)
    return out


def center_atoms(s, t0, t1):
    out = []
    for r in range(4):
        x = XR(s)[r]
        out += [v_("v_lshlrev_b32", t0, 16, x), v_("v_and_b32", t1, sMASK, x),
                v_("v_fma_f32", t0, t0, RSTD, CEN), v_("v_fma_f32", t1, t1, RSTD, CEN),
                v_("v_cvt_pk_bf16_f32", x, t0, t1)]
    return out


PHI_FRAGS = [(0, 0), (0, 1), (0, 2), (1, 0), (1, 1), (1, 2), (1, 3), (1, 4), (2, 2), (2, 3), (2, 4)]
PHI_CONST = {(0, 0): 0, (1, 0): 32, (1, 1): 792, (2, 1): 824}


def phi_addr_setup(p, regs, t):
    e = p.e
    kh, jj, par, b0 = t[0], t[1], t[2], t[3]
    e("v_lshrrev_b32", kh, 5, lane)
    e("v_bfe_u32", jj, lane, 4, 1)
    e("v_bfe_u32", par, lane, 1, 1)
    e("v_lshl_add_u32", jj, jj, 1, par)
    e("v_mul_u32_u24", b0, 1600, kh)
    e("v_bfe_u32", par, lane, 2, 2)
    e("v_mul_u32_u24", par, 40, par)
    e("v_add_u32", b0, b0, par)
    e("v_lshl_add_u32", b0, jj, 3, b0)
    e("v_add_u32", b0, PTB, b0)
    e("v_and_b32", par, 1, lane)
    e("v_mov_b32", regs[4], ZB)
    e("v_cmp_eq_u32", "vcc", par, kh)
    e("v_cndmask_b32", regs[0], regs[4], b0, "vcc")
    e("v_cmp_eq_u32", "vcc", 0, jj)
    e("v_cndmask_b32", regs[1], regs[4], regs[0], "vcc")
    e("v_cmp_le_u32", "vcc", 1, jj)
    e("v_cndmask_b32", regs[2], regs[4], regs[0], "vcc")
    e("v_cmp_ge_u32", "vcc", 1, jj)
    e("v_cndmask_b32", regs[3], regs[4], regs[0], "vcc")


def phi_read_atoms(regs):
    out = []
    sel = {(0, 0): regs[0], (1, 0): regs[1], (1, 1): regs[2], (2, 1): regs[3]}
    for idx, (tp, c) in enumerate(PHI_FRAGS):
        for rd in range(2):
            R0 = 8 * c + 4 * rd
            hl = 1 if R0 >= 20 else 0
            d0 = R0 - 20 * hl
            dst = A(PHI0 + 4 * idx + 2 * rd, 2)
            if (tp, hl) in sel:
                out.append(n_(mk("ds_read_b64_tr_b16", dst, sel[(tp, hl)], mods=f"offset:{PHI_CONST[(tp, hl)] + 40 * d0}")))
            else:
                out.append(n_(mk("ds_read_b64_tr_b16", dst, regs[4])))
    return out


def pack_atoms(acc, n, dst, t0, t1):
    out = []
    for u in range(n):
        a, b = (t0, t1) if u % 2 == 0 else (TMP[3], TMP[4])
        out += [v_("v_accvgpr_read_b32", a, A(acc + 2 * u)), v_("v_accvgpr_read_b32", b, A(acc + 2 * u + 1)),
                v_("v_cvt_pk_bf16_f32", dst[u], a, b)]
    return out


def feature_mfma_atoms(kp):
    out = []
    seen = set()
    for idx, (tp, c) in enumerate(PHI_FRAGS):
        d = PKD[16 * tp:16 * tp + 16]
        out.append(("m", [mk("v_mfma_f32_32x32x16_bf16", d, A(PHI0 + 4 * idx, 4), kp[4 * c:4 * c + 4], d if tp in seen else 0)]))
        seen.add(tp)
    return out


def softmax_atoms(hh):
    pv = [PKD[20 * hh + i] for i in range(20)]
    mx, mn, s0, s1 = TMP[0], TMP[1], TMP[2], TMP[3]
    out = [v_("v_max3_f32", mx, pv[0], pv[1], pv[2]), v_("v_min3_f32", mn, pv[0], pv[1], pv[2])]
    for i in range(3, 19, 2):
        out += [v_("v_max3_f32", mx, mx, pv[i], pv[i + 1]), v_("v_min3_f32", mn, mn, pv[i], pv[i + 1])]
    out += [v_("v_max_f32", mx, mx, pv[19]), v_("v_min_f32", mn, mn, pv[19])]
    out += [v_("v_mul_f32", mx, sL2E, mx), v_("v_mul_f32", mn, sL2E, mn)]
    for i in range(20):
        out.append(v_("v_fma_f32", EP[i], pv[i], sL2E, Neg(mx)))
        out.append(v_("v_fma_f32", pv[i], Neg(pv[i]), sL2E, mn))
    for i in range(20):
        out.append(("t", [mk("v_exp_f32", EP[i], EP[i])]))
        out.append(("t", [mk("v_exp_f32", pv[i], pv[i])]))
    out += [v_("v_add_f32", s0, EP[0], EP[1]), v_("v_add_f32", s1, pv[0], pv[1]),
            v_("v_add_f32", mx, EP[2], EP[3]), v_("v_add_f32", mn, pv[2], pv[3])]
    for i in range(4, 20, 2):
        out += [v_("v_add_f32", s0, s0, EP[i]), v_("v_add_f32", s1, s1, pv[i]),
                v_("v_add_f32", mx, mx, EP[i + 1]), v_("v_add_f32", mn, mn, pv[i + 1])]
    out += [v_("v_add_f32", s0, s0, mx), v_("v_add_f32", s1, s1, mn)]
    out += [("t", [mk("v_rcp_f32", s0, s0)]), ("t", [mk("v_rcp_f32", s1, s1)])]
    for i in range(20):
        out.append(v_("v_mul_f32", EP[i], s0, EP[i]))
    for i in range(20):
        out.append(v_("v_mul_f32", pv[i], s1, pv[i]))
    for u in range(10):
        out.append(v_("v_cvt_pk_bf16_f32", pv[u], pv[2 * u], pv[2 * u + 1]))
    for u in range(10):
        out.append(v_("v_cvt_pk_bf16_f32", pv[10 + u], EP[2 * u], EP[2 * u + 1]))
    return out


def glu_tile_atoms(acc, dst, G, U):
    out = []
    for i in range(8):
        out.append(v_("v_accvgpr_read_b32", G[i], A(acc + i)))
    for i in range(8):
        out.append(v_("v_accvgpr_read_b32", U[i], A(acc + 8 + i)))
    for i in range(8):
        out.append(v_("v_max_f32", G[i], 0, G[i]))
    for i in range(8):
        out.append(v_("v_mul_f32", U[i], G[i], U[i]))
    for q in range(4):
        out.append(v_("v_cvt_pk_bf16_f32", dst[q], U[2 * q], U[2 * q + 1]))
    return out


def h_store(data, blk, second, st, wide, tag=None):
    off = blk + (8 * 6144 if second else 0)
    ins = [mk("s_add_u32", sT0, sHB, off)]
    if wide:
        ins.append(mk("buffer_store_dwordx4", data, l16, WS, sT0, mods="offen" + st, tag=tag))
    else:
        ins.append(mk("buffer_store_dwordx2", data, l8, WS, sT0, mods="offen" + st, tag=tag))
    return n_(*ins)


def glu_atoms(acc, groups, st, regs, tag=None):
    G, U, PA, PB = regs
    out = []
    for n, (kind, t, blk) in enumerate(groups):
        tg = tag if n == len(groups) - 1 else None
        out += glu_tile_atoms(acc + 16 * t, PA, G, U)
        if kind == "pair":
            out += glu_tile_atoms(acc + 16 * (t + 1), PB, G, U)
            for q in range(4):
                out.append(v_("v_permlane16_swap_b32", PA[q], PB[q]))
            out.append(h_store(PA, blk, False, st, True))
            out.append(h_store(PB, blk, True, st, True, tg))
        else:
            out.append(v_("v_permlane16_swap_b32", PA[0], PA[2]))
            out.append(v_("v_permlane16_swap_b32", PA[1], PA[3]))
            out.append(h_store(PA[0:2], blk, False, st, False))
            out.append(h_store(PA[2:4], blk, True, st, False, tg))
    return out


def emit_atoms(p, atoms):
    for kind, ins in atoms:
        if kind == "d":
            continue
        if kind == "blk":
            ins(p)
        else:
            for i in ins:
                p.add(i)


class Side:
    def __init__(self, p):
        self.p = p
        self.q = []

    def fill(self, quota, nmax=2):
        p = self.p
        if self.q and self.q[0][0] == "d":
            if self.q[0][1] > 1:
                self.q[0] = ("d", self.q[0][1] - 1)
            else:
                self.q.pop(0)
            return
        n = 0
        while self.q and self.q[0][0] == "n" and n < nmax:
            for i in self.q.pop(0)[1]:
                p.add(i)
            n += 1
        n = 0
        while self.q and self.q[0][0] in ("v", "t"):
            cost = 2 if self.q[0][0] == "t" else 1
            if n + cost > quota and n > 0:
                break
            for i in self.q.pop(0)[1]:
                p.add(i)
            n += cost

    def mfmas(self, quota):
        p = self.p
        while self.q and self.q[0][0] in ("m", "blk"):
            kind, ins = self.q.pop(0)
            if kind == "blk":
                ins(p)
                continue
            for i in ins:
                p.add(i)
            self.fill(quota)

    def flush(self):
        emit_atoms(self.p, self.q)
        self.q = []


class Stream:
    def __init__(self, p, passes, ns, o):
        self.p, self.passes, self.ns, self.depth = p, passes, ns, o["depth"]
        self.frags = [(pi, s, t) for pi, ps in enumerate(passes) for s in range(40) for t in range(ps.nt)]
        self.nstage = 10 * len(passes)
        self.dmaq = []
        self.next_read = 0
        self.cur_stage = -1
        self.side = Side(p)
        self.dma_next = 0
        self.m0_each = True
        self.since_dma = 99
        self.o = o

    def stage_of(self, f):
        pi, s, t = self.frags[f]
        return 10 * pi + s // 4

    def queue_stage(self):
        g = self.dma_next
        if g >= self.nstage:
            return
        ps = self.passes[g // 10]
        self.dmaq += dma_atoms(ps, g % self.ns, g % 10 == 0, f"W{g}", self.m0_each)
        self.dma_next += 1

    def emit_dma_now(self):
        for ins in self.dmaq:
            for i in ins:
                self.p.add(i)
        self.dmaq = []

    def read_frag(self):
        f = self.next_read
        if f >= len(self.frags):
            return
        p = self.p
        pi, s, t = self.frags[f]
        ps = self.passes[pi]
        g = self.stage_of(f)
        if g != self.cur_stage:
            while self.dma_next <= g or any(i.tag == f"W{g}" for ins in self.dmaq for i in ins):
                if self.dmaq:
                    for i in self.dmaq.pop(0):
                        p.add(i)
                else:
                    self.queue_stage()
            p.wait_tag(f"W{g}")
            p.e("s_barrier")
            if g > 0 and g % 10 != 0:
                delta = ((g % self.ns) - ((g - 1) % self.ns)) * SLOT
                for r in ps.pat:
                    p.e("v_add_u32", r, delta, r)
            if g == 0:
                while self.dma_next < self.ns - 1:
                    self.queue_stage()
            else:
                self.queue_stage()
            self.cur_stage = g
        fb = FB0 + 4 * (f % 8)
        for rd, (reg, imm) in enumerate(ps.reads(s % 4, t)):
            p.e("ds_read_b64_tr_b16", A(fb + 2 * rd, 2), reg, mods=f"offset:{imm}")
        self.next_read += 1

    def prime(self):
        for _ in range(self.depth + 1):
            self.read_frag()

    def run_pass(self, pi, quota, deadline=None, hooks=None, stamp_at=()):
        p = self.p
        ps = self.passes[pi]
        idx = [f for f, fr in enumerate(self.frags) if fr[0] == pi]
        for n, f in enumerate(idx):
            _, s, t = self.frags[f]
            if hooks and n in hooks:
                hooks[n](self)
            if n in stamp_at:
                p.stamp(f"p{pi}g{n}")
            if t == 0 and deadline is not None:
                lim = deadline(s)
                while len(self.side.q) > lim:
                    emit_atoms(p, [self.side.q.pop(0)])
            d = A(ps.acc + 16 * t, 16)
            p.e("v_mfma_f32_32x32x16_bf16", d, A(FB0 + 4 * (f % 8), 4), XR(s), d if s else 0)
            crossing = self.next_read < len(self.frags) and self.stage_of(self.next_read) != self.cur_stage
            late = []
            every = max(1, (4 * ps.nt) // self.passes[min(len(self.passes) - 1, self.dma_next // 10)].ndma)
            if len(self.dmaq) > 6 or not self.o.get("pace", True):
                every = 1
            self.since_dma += 1
            if self.dmaq and not crossing and self.since_dma >= every:
                self.since_dma = 0
                ins = self.dmaq.pop(0)
                k = next(n_ for n_, i in enumerate(ins) if i.cls == "vmem")
                for i in ins[:k]:
                    p.add(i)
                late = ins[k:]
            self.read_frag()
            for i in late:
                p.add(i)
            te = self.o.get("touch_every", 2)
            if f % te == 0:
                p.touch(*[A(FB0 + 4 * ((f + k) % 8), 4) for k in range(1, te + 1) if f + k < len(self.frags)])
            q = quota(n) if callable(quota) else quota
            self.side.fill(q)
            self.side.mfmas(q)


def poll_block(reg, addr, srdreg, soff, want, lab, mask=-1, imm=0):
    def blk(p):
        p.e("v_cmp_eq_u32", "vcc", want, reg)
        p.e("s_cmp_eq_u64", "vcc", mask)
        p.e("s_cbranch_scc1", lab + "_ok")
        p.region_begin()
        p.e("s_mov_b32", sT3, 0)
        p.label(lab + "_spin")
        p.e("s_add_u32", sT3, sT3, 1)
        p.e("s_cmp_ge_u32", sT3, SPIN_MAX)
        p.e("s_cbranch_scc1", lab + "_ok")
        p.e("s_sleep", 1)
        p.e("buffer_load_dword", reg, addr, srdreg, soff, mods=f"offen offset:{imm} sc1")
        p.wait_vm0()
        p.e("v_cmp_eq_u32", "vcc", want, reg)
        p.e("s_cmp_eq_u64", "vcc", mask)
        p.e("s_cbranch_scc0", lab + "_spin")
        p.label(lab + "_ok")
        p.region_end()
    return blk


def flag_store(p, vtmp, srdreg, soff, atomic=False):
    p.e("v_mov_b32", vtmp, 1)
    p.e("s_mov_b64", "exec", 1)
    if atomic:
        p.e("buffer_atomic_add", vtmp, "off", srdreg, soff, mods="sc1")
    else:
        p.e("buffer_store_dword", vtmp, "off", srdreg, soff, mods="sc1")
    p.e("s_mov_b64", "exec", -1)


def prologue_lane(p):
    e = p.e
    t = [V(23), V(24), V(25), V(26)]
    vx = [V(27 + j) for j in range(4)]
    e("v_lshrrev_b32", t[0], 3, lane)
    e("v_lshrrev_b32", t[1], 4, lane)
    e("v_and_b32", t[2], 7, lane)
    e("v_mul_u32_u24", t[0], 1280, t[0])
    for j in range(4):
        e("v_add_u32", t[3], 4 * j, t[1])
        e("v_and_b32", t[3], 7, t[3])
        e("v_xor_b32", t[3], t[3], t[2])
        e("v_lshl_add_u32", t[3], t[3], 4, t[0])
        e("v_add_u32", vx[j], 8 * 1280 * j - 1024 * j, t[3])
    return vx


def prologue(p, typ, passes, stream, o, vx):
    e = p.e
    sXB, sXW, sPI = S(16), S(17), S(18)
    e("s_lshl_b32", sXB, sRB, 7)
    e("s_lshl_b32", sT1, sW, 5)
    e("s_add_u32", sXB, sXB, sT1)
    e("s_mul_i32", sXB, sXB, 1280)
    e("s_mul_i32", sXW, sW, XW)
    e("s_add_u32", sXW, sXW, XSTG)
    e("s_mov_b32", sPI, sROT)

    def x_piece(pi):
        e("s_add_u32", "m0", sXW, (pi % 7) * 4096)
        e("s_lshl_b32", sT2, sPI, 7)
        e("s_add_u32", sT2, sT2, sXB)
        for j in range(4):
            e("buffer_load_dwordx4", vx[j], XS, sT2, mods=f"offen offset:{1024 * j} lds", tag=f"X{pi}" if j == 3 else None)
        e("s_add_u32", sPI, sPI, 1)
        e("s_cmp_eq_u32", sPI, 10)
        e("s_cselect_b32", sPI, 0, sPI)

    x_piece(0)
    Z4 = V(32, 4)
    for r in range(4):
        e("v_mov_b32", Z4[r], 0)
    e("s_mul_i32", S(4), sP, 3200)
    e("s_mul_i32", S(5), sW, 800)
    e("s_add_u32", S(4), S(4), S(5))
    e("s_add_u32", "m0", S(5), PTB)
    e("buffer_load_dwordx4", l16, PH, S(4), mods="offen lds", tag="PT")
    if typ == "X":
        e("s_cmp_eq_u32", sRB, 0)
        e("s_cselect_b32", S(4), 0, OOB)
        e("s_lshl_b32", S(5), sP, 2)
        e("s_add_u32", S(5), S(5), sW)
        e("s_mul_i32", S(6), S(5), L.KVS)
        e("s_add_u32", S(6), S(6), L.F_KV)
        e("s_add_u32", S(7), S(6), 4096)
        e("s_lshl_b32", S(5), S(5), 2)
        e("s_add_u32", S(5), S(5), DBG_Z)
        e("v_add_u32", V(36), S(4), l16)
        for k in range(6):
            e("buffer_store_dwordx4", Z4, V(36), WS, S(6) if k < 4 else S(7), mods=f"offen offset:{1024 * (k % 4)} sc1")
        e("v_add_u32", V(37), S(4), l4)
        e("buffer_store_dword", Z4[0], V(37), WS, S(7), mods="offen offset:2048 sc1", tag="ZI")
    else:
        e("s_or_b32", S(4), sRB, sP)
        e("s_cmp_eq_u32", S(4), 0)
        e("s_cselect_b32", S(4), 0, OOB)
        e("s_lshl_b32", S(6), sW, 12)
        e("s_add_u32", S(6), S(6), L.F_FLH)
        e("s_lshl_b32", S(5), sW, 2)
        e("s_add_u32", S(5), S(5), DBG_G)
        e("v_add_u32", V(36), S(4), l16)
        for k in range(4):
            e("buffer_store_dwordx4", Z4, V(36), WS, S(6), mods=f"offen offset:{1024 * k} sc1", tag="ZI" if k == 3 else None)
    x_piece(1)
    p.stamp("x_issued")
    e("v_mov_b32", V(37), S(5))
    e("v_add_u32", V(37), S(4), V(37))

    q = Prog()
    f = q.e
    t = [V(42), V(43), V(44), V(45)]
    f("v_add_u32", t[0], ZB, l16)
    f("ds_write_b128", t[0], Z4)
    f("ds_write_b128", t[0], Z4, mods="offset:1024")
    vr = [V(38 + k) for k in range(4)]
    f("v_and_b32", t[0], 31, lane)
    f("v_lshrrev_b32", t[1], 5, lane)
    f("v_bfe_u32", t[2], lane, 1, 3)
    f("v_xor_b32", t[1], t[1], t[2])
    f("v_lshlrev_b32", t[0], 7, t[0])
    f("v_add_u32", t[0], sXW, t[0])
    for k in range(4):
        f("v_xor_b32", t[2], 2 * k, t[1])
        f("v_lshl_add_u32", vr[k], t[2], 4, t[0])
    for k, ps in enumerate(passes):
        ps.wreg = WREG[k]
    setup_pass(q, passes[0], 0, t, [S(8), S(9), S(12), S(13)])
    n_first = len(q.ins)
    for k, ps in list(enumerate(passes))[1:]:
        setup_pass(q, ps, ((10 * k) % stream.ns) * SLOT, t, [S(8), S(9), S(12), S(13)])
    phr = [V(46 + k) for k in range(5)]
    phi_addr_setup(q, phr, t)
    first = q.ins[:n_first]
    rest = atomize(q.ins[n_first:])
    half = len(first) // 2
    for i in first[:half]:
        p.add(i)
    x_piece(2)
    for i in first[half:]:
        p.add(i)
    x_piece(3)
    NPF = 4
    side = Side(p)
    side.q = rest
    npre = o.get("pre_atoms", 60)
    emit_atoms(p, side.q[:npre])
    side.q = side.q[npre:]
    acc = [V(51), V(52), V(53), V(54)]
    for r in acc:
        e("v_mov_b32", r, 0)
    sONE = S(19)
    e("s_mov_b32", sONE, 0x3F803F80)
    p.stamp("setup")

    def x_reads(pi):
        p.wait_tag(f"X{pi}")
        for k in range(4):
            e("ds_read_b128", XR(4 * pi + k), vr[k], mods=f"offset:{(pi % 7) * 4096}")
    x_reads(0)
    per = -(-len(side.q) // 9)
    for pi in range(10):
        if o.get("pstamp") and pi in (0, 1, 2, 4, 6, 8):
            p.stamp(f"pc{pi}")
        if pi + NPF < 10:
            x_piece(pi + NPF)
        if pi + NPF == 10:
            stream.queue_stage()
            stream.queue_stage()
            stream.emit_dma_now()
        emit_atoms(p, side.q[:per])
        side.q = side.q[per:]
        if pi + 1 < 10:
            x_reads(pi + 1)
        for k in range(4):
            for r in range(4):
                x = XR(4 * pi + k)[r]
                e("v_dot2c_f32_bf16", acc[r & 1], sONE, x)
                e("v_dot2c_f32_bf16", acc[2 + (r & 1)], x, x)
    p.stamp("x_done")
    side.flush()
    p.wait_tag("ZI")
    e("v_mov_b32", V(36), 1)
    e("s_mov_b64", "exec", 1)
    e("buffer_store_dword", V(36), V(37), DBG, 0, mods="offen sc1")
    e("s_mov_b64", "exec", -1)
    e("v_add_f32", acc[0], acc[0], acc[1])
    e("v_add_f32", acc[2], acc[2], acc[3])
    e("v_mov_b32", acc[1], acc[0])
    e("v_mov_b32", acc[3], acc[2])
    e("v_permlane32_swap_b32", acc[0], acc[1])
    e("v_permlane32_swap_b32", acc[2], acc[3])
    e("v_add_f32", acc[0], acc[0], acc[1])
    e("v_add_f32", acc[2], acc[2], acc[3])
    e("v_mul_f32", acc[0], 1.0 / 640, acc[0])
    e("v_mul_f32", acc[2], 1.0 / 640, acc[2])
    e("v_fma_f32", acc[2], Neg(acc[0]), acc[0], acc[2])
    e("v_max_f32", acc[2], 0, acc[2])
    e("v_add_f32", acc[2], 1e-5, acc[2])
    e("v_rsq_f32", RSTD, acc[2])
    e("v_mul_f32", CEN, acc[0], RSTD)
    e("v_sub_f32", CEN, 0, CEN)
    p.wait_tag("PT")
    p.wait_lgkm0()
    return phr


def run_first_pass(p, stream, quota, phr, extra, stamp_at=()):
    for s in (0, 1):
        emit_atoms(p, center_atoms(s, V(23), V(24)))
    stream.prime()
    p.stamp("primed")
    phi = phi_read_atoms(phr)
    groups = {}
    for s in range(2, 40):
        groups[s] = center_atoms(s, V(23 + 2 * (s & 1)), V(24 + 2 * (s & 1)))
        if s - 2 < len(phi):
            groups[s] = groups[s][:10] + [phi[s - 2]] + groups[s][10:]
    groups[30] = groups[30] + extra
    stream.side.q = [a for s in range(2, 40) for a in groups[s]]
    rest = lambda s: sum(len(groups[k]) for k in range(max(s, 1) + 1, 40))
    stream.run_pass(0, quota, deadline=rest, stamp_at=stamp_at)
    assert not stream.side.q


def guard_load():
    return [v_("v_and_b32", V(51), 3, lane), v_("v_lshlrev_b32", V(51), 2, V(51)),
            n_(mk("buffer_load_dword", V(52), V(51), DBG, 0, mods=f"offen offset:{DBG_G} sc1"))]


def guard_check(lab):
    return ("blk", poll_block(V(52), V(51), DBG, 0, 1, lab, imm=DBG_G))


def kv_atoms(o):
    out = []
    pa, va, vb = V(5), V(6), V(7)
    t0, t1 = V(8), V(9)
    q = Prog()
    e = q.e
    e("v_lshrrev_b32", t0, 4, lane)
    e("v_bfe_u32", t1, lane, 2, 2)
    e("v_lshl_add_u32", t0, t0, 3, t1)
    e("v_and_b32", t1, 3, lane)
    e("v_lshlrev_b32", t1, 3, t1)
    e("v_mul_u32_u24", vb, 80, t0)
    e("s_mul_i32", S(4), sW, 10240)
    e("s_add_u32", S(4), S(4), PKB)
    e("v_add3_u32", pa, vb, t1, S(4))
    e("s_lshr_b32", S(5), sW, 1)
    e("s_mul_i32", S(5), S(5), 10240)
    e("s_and_b32", S(4), sW, 1)
    e("s_mul_i32", S(4), S(4), 40)
    e("s_add_u32", S(5), S(5), S(4))
    e("s_add_u32", S(5), S(5), VB)
    e("v_add3_u32", va, vb, t1, S(5))
    e("v_add_u32", vb, S(5), vb)
    e("v_add_u32", vb, 32, vb)
    e("v_and_b32", t0, 15, lane)
    e("v_cmp_eq_u32", S(6, 2), 4, t0)
    e("v_mov_b32", t1, 0x3F803F80)
    addr = atomize(q.ins)
    KA = PKD[0:24]
    AF = [[PKD[24 + 4 * k:28 + 4 * k] for k in range(3)], [PKD[36 + 4 * k:40 + 4 * k] for k in range(3)]]
    BF = [[EP[4 * k:4 * k + 4] for k in range(2)], [EP[8 + 4 * k:12 + 4 * k] for k in range(2)]]

    def blk(p):
        e = p.e
        p.wait_lgkm0()
        e("s_barrier")

        def reads(ks):
            a, b = AF[ks % 2], BF[ks % 2]
            for rd in range(2):
                for ft in range(3):
                    e("ds_read_b64_tr_b16", a[ft][2 * rd:2 * rd + 2], pa, mods=f"offset:{(32 * ks + 4 * rd) * 80 + 32 * ft}")
                e("ds_read_b64_tr_b16", b[0][2 * rd:2 * rd + 2], va, mods=f"offset:{(32 * ks + 4 * rd) * 80}")
                e("ds_read_b64_tr_b16", b[1][2 * rd:2 * rd + 2], vb, mods=f"offset:{(32 * ks + 4 * rd) * 80}")
        reads(0)
        for ks in range(4):
            if ks < 3:
                reads(ks + 1)
            a, b = AF[ks % 2], BF[ks % 2]
            for r in range(4):
                e("v_cndmask_b32", b[1][r], b[1][r], t1, S(6, 2))
            for dt in range(2):
                for ft in range(3):
                    d = KA[(dt * 3 + ft) * 4:(dt * 3 + ft) * 4 + 4]
                    e("v_mfma_f32_16x16x32_bf16", d, a[ft], b[dt], d if ks else 0)
    sA, sB = S(8), S(9)
    post = [n_(mk("s_lshl_b32", sA, sP, 2), mk("s_add_u32", sA, sA, sW), mk("s_mul_i32", sA, sA, L.KVS),
               mk("s_add_u32", sA, sA, L.F_KV), mk("s_add_u32", sB, sA, 4096))]
    masks = {(0, 0): None, (1, 0): None, (2, 0): (0xFFFFFFFF, 0), (0, 1): (0x001F001F, 0x001F001F),
             (1, 1): (0x001F001F, 0x001F001F), (2, 1): (0x001F001F, 0)}
    last = None
    for (ft, dt), m in masks.items():
        for i in range(4):
            r = (dt * 3 + ft) * 4 + i
            off = r * 256
            ins = []
            if m:
                ins += [mk("s_mov_b32", sEX[0], m[0]), mk("s_mov_b32", sEX[1], m[1]), mk("s_mov_b64", "exec", sEX)]
            a = mk("buffer_atomic_add_f32", KA[r], l4, WS, sA if off < 4096 else sB, mods=f"offen offset:{off & 4095}")
            last = a
            ins.append(a)
            if m:
                ins.append(mk("s_mov_b64", "exec", -1))
            post.append(n_(*ins))
    last.tag = "KVA"
    return addr, blk, post, sB


def wt_round_atoms(rnd, st):
    su, sk, sc, sw_, sst, sM, sB, sC1 = S(4), S(5), S(6), S(7), S(8), S(9), S(12), S(13)
    sX, sY = S(14), S(15)
    a = []
    g = lambda *rows: a.append(n_(*[mk(*r) for r in rows]))
    g(("s_lshl_b32", su, sRB, 3), ("s_add_u32", su, su, sP), ("s_lshl_b32", su, su, 2), ("s_add_u32", su, su, sW))
    if rnd:
        g(("s_add_u32", su, su, 512), ("s_cmp_ge_u32", su, 680), ("s_cselect_b32", sX, 344, 0), ("s_sub_u32", su, su, sX))
    g(("s_mul_i32", sk, su, 52429), ("s_lshr_b32", sk, sk, 19),
      ("s_mul_i32", sX, sk, 10), ("s_sub_u32", sc, su, sX))
    g(("s_mul_i32", sw_, sk, 3856), ("s_lshr_b32", sw_, sw_, 16),
      ("s_mul_i32", sX, sw_, 17), ("s_sub_u32", sst, sk, sX))
    g(("s_mul_i32", sB, sw_, 12), ("s_add_u32", sB, sB, sst), ("s_lshl_b32", sB, sB, 5))
    g(("s_cmp_eq_u32", sst, 2), ("s_cselect_b32", sX, 1, 0), ("s_cmp_eq_u32", sst, 8), ("s_cselect_b32", sX, 1, sX))
    g(("s_cmp_eq_u32", sX, 1), ("s_cselect_b32", sM, 16, 8), ("s_cselect_b32", sC1, 8, 16))
    g(("s_sub_u32", sX, sst, 12), ("s_lshr_b32", sY, sX, 1), ("s_mul_i32", sY, sY, 80), ("s_and_b32", sX, sX, 1))
    g(("s_lshl_b32", sX, sX, 3), ("s_add_u32", sY, sY, sX), ("s_mul_i32", su, sw_, 160))
    g(("s_cmp_eq_u32", sst, 16), ("s_cselect_b32", sY, 16, sY), ("s_cselect_b32", sX, 80, 4), ("s_add_u32", sY, sY, su))
    g(("s_cmp_ge_u32", sst, 12), ("s_cselect_b32", sB, sY, sB), ("s_cselect_b32", sM, sX, sM),
      ("s_cselect_b32", sC1, 20, sC1), ("s_cselect_b32", sX, 40, 4),
      ("s_cselect_b32", WD[0], S(10), WDP[0]), ("s_cselect_b32", WD[1], S(11), WDP[1]))
    g(("s_cmp_ge_u32", sst, 12), ("s_mov_b32", WD[2], 1536 * 640 * 2), ("s_cselect_b32", WD[2], 640 * 640 * 2, WD[2]),
      ("s_mov_b32", WD[3], 0x20000))
    g(("s_mul_i32", su, sw_, 10), ("s_add_u32", su, su, sc), ("s_lshl_b32", su, su, 5), ("s_add_u32", su, su, sst))
    g(("s_lshl_b32", su, su, 2), ("s_add_u32", sst, su, L.F_FLW))
    t0, t1, vo = TMP[0], TMP[1], TMP[2]
    a.append(v_("v_lshrrev_b32", t0, 5, lane))
    a.append(v_("v_mul_u32_u24", t0, sM, t0))
    a.append(v_("v_bfe_u32", t1, lane, 3, 2))
    a.append(v_("v_add_u32", t0, t0, t1))
    a.append(v_("v_mul_u32_u24", t0, 1280, t0))
    a.append(v_("v_and_b32", t1, 7, lane))
    a.append(v_("v_lshl_add_u32", vo, t1, 4, t0))
    g(("s_lshl_b32", su, sc, 7), ("s_lshl_b32", sw_, sW, 12), ("s_add_u32", sw_, sw_, WTS))
    for j in range(4):
        ins = [mk("s_mov_b32", "m0", sw_), mk("s_mul_i32", sY, sC1, j & 1), mk("s_add_u32", sY, sY, sB)]
        if j >> 1:
            ins.append(mk("s_add_u32", sY, sY, sX))
        ins += [mk("s_mul_i32", sY, sY, 1280), mk("s_add_u32", sY, sY, su)]
        if j:
            ins.append(mk("s_sub_u32", sY, sY, 1024 * j))
        ins.append(mk("buffer_load_dwordx4", vo, WD, sY, mods=f"offen offset:{1024 * j} lds", tag=f"WT{rnd}" if j == 3 else None))
        a.append(n_(*ins))
    b = []
    ra = TMP[0]
    b.append(v_("v_lshrrev_b32", ra, 4, lane))
    b.append(v_("v_bfe_u32", t1, lane, 2, 2))
    b.append(v_("v_lshl_add_u32", ra, ra, 3, t1))
    b.append(v_("v_lshlrev_b32", ra, 7, ra))
    b.append(v_("v_and_b32", t1, 3, lane))
    b.append(v_("v_lshl_add_u32", ra, t1, 3, ra))
    b.append(n_(mk("s_lshl_b32", sY, sW, 12), mk("s_add_u32", sY, sY, WTS)))
    b.append(v_("v_add_u32", ra, sY, ra))
    b.append(("blk", lambda p: p.wait_tag(f"WT{rnd}")))
    FR = PKD[0:16]
    for nt in range(4):
        for rd in range(2):
            b.append(n_(mk("ds_read_b64_tr_b16", FR[4 * nt + 2 * rd:4 * nt + 2 * rd + 2], ra, mods=f"offset:{rd * 512 + 32 * nt}")))
    b.append(n_(mk("s_mul_i32", sY, sk, 40), mk("s_lshl_b32", su, sc, 2), mk("s_add_u32", sY, sY, su),
                mk("s_lshl_b32", sY, sY, 10), mk("s_add_u32", sY, sY, L.F_WT)))
    for nt in range(4):
        b.append(n_(mk("buffer_store_dwordx4", FR[4 * nt:4 * nt + 4], l16, WS, sY, mods=f"offen offset:{1024 * nt}" + st,
                       tag=f"WS{rnd}" if nt == 3 else None)))

    def flag(p):
        p.wait_tag(f"WS{rnd}")
        flag_store(p, TMP[1], WS, sst)
    return a, b, ("blk", flag), sst


def o_stage_parts(o):
    st = o["st"]
    KVR = V(96, 24)
    AB = [V(120 + 4 * i, 4) for i in range(8)]
    OA = V(152, 32)
    OP = [V(184, 10), V(194, 10)]
    t0, t1, ta, aa = V(204), V(205), V(206), V(207)
    Z4 = V(160, 4)
    sA, sB = S(16), S(17)
    POLL, PADDR = V(204), V(205)
    cnt_load = [v_("v_and_b32", PADDR, 3, lane), v_("v_mul_u32_u24", PADDR, L.KVS, PADDR),
                n_(mk("s_mul_i32", sA, sP, 4 * L.KVS), mk("s_add_u32", sA, sA, L.F_KV + 6144)),
                n_(mk("buffer_load_dword", POLL, PADDR, WS, sA, mods="offen sc1"))]
    cnt_check = ("blk", poll_block(POLL, PADDR, WS, sA, 16, "Y_kc"))
    kvl = [n_(mk("s_lshl_b32", sA, sP, 2), mk("s_add_u32", sA, sA, sW), mk("s_mul_i32", sA, sA, L.KVS),
              mk("s_add_u32", sA, sA, L.F_KV), mk("s_add_u32", sB, sA, 4096))]
    for r in range(24):
        off = r * 256
        kvl.append(n_(mk("buffer_load_dword", KVR[r], l4, WS, sA if off < 4096 else sB, mods=f"offen offset:{off & 4095} sc1")))
    out = []
    for r in range(4):
        out.append(v_("v_mov_b32", Z4[r], 0))
    out.append(v_("v_add_u32", t0, LDS_Z2, l16))
    for k in range(4):
        out.append(n_(mk("ds_write_b128", t0, Z4, mods=f"offset:{1024 * k}")))
    out += [v_("v_and_b32", t0, 15, lane), v_("v_lshrrev_b32", t1, 4, lane), v_("v_mul_u32_u24", ta, 80, t0),
            v_("v_lshl_add_u32", ta, t1, 3, ta), n_(mk("s_mul_i32", sA, sW, 1920)), v_("v_add_u32", ta, sA, ta)]
    out += [v_("v_lshrrev_b32", t0, 5, lane), v_("v_bfe_u32", t1, lane, 2, 1),
            v_("v_cmp_eq_u32", "vcc", t0, t1),
            v_("v_mul_u32_u24", t0, 2 * 1920, t0), v_("v_bfe_u32", t1, lane, 3, 2), v_("v_lshlrev_b32", t1, 2, t1),
            v_("v_and_b32", aa, 3, lane), v_("v_add_u32", t1, t1, aa), v_("v_mul_u32_u24", t1, 80, t1),
            v_("v_add_u32", t0, t0, t1), v_("v_mov_b32", t1, LDS_Z2), v_("v_cndmask_b32", aa, t1, t0, "vcc")]
    for dt in range(2):
        for ft in range(3):
            r0 = (dt * 3 + ft) * 4
            out.append(v_("v_cvt_pk_bf16_f32", KVR[r0], KVR[r0], KVR[r0 + 1]))
            out.append(v_("v_cvt_pk_bf16_f32", KVR[r0 + 1], KVR[r0 + 2], KVR[r0 + 3]))
    masks = {(0, 0): None, (1, 0): None, (2, 0): (0xFFFFFFFF, 0), (0, 1): (0x00FF00FF, 0x00FF00FF),
             (1, 1): (0x00FF00FF, 0x00FF00FF), (2, 1): (0x00FF00FF, 0)}
    for (ft, dt), m in masks.items():
        r0 = (dt * 3 + ft) * 4
        ins = []
        if m:
            ins += [mk("s_mov_b32", sEX[0], m[0]), mk("s_mov_b32", sEX[1], m[1]), mk("s_mov_b64", "exec", sEX)]
        ins.append(mk("ds_write_b64", ta, KVR[r0:r0 + 2], mods=f"offset:{LDS_T + dt * 16 * 80 + ft * 32}"))
        if m:
            ins.append(mk("s_mov_b64", "exec", -1))
        out.append(n_(*ins))

    def bar(p):
        p.wait_lgkm0()
        p.e("s_barrier")
    out.append(("blk", bar))
    for hh in range(2):
        seq = [(u, c) for u in range(2) for c in range(5)]
        rd = lambda n: n_(mk("ds_read_b128", AB[n % 8], aa, mods=f"offset:{LDS_T + hh * 1920 + seq[n][0] * 1280 + seq[n][1] * 16}"))
        for n in range(6):
            out.append(rd(n))
        for n, (u, c) in enumerate(seq):
            d = OA[16 * u:16 * u + 16]
            out.append(("m", [mk("v_mfma_f32_32x32x16_bf16", d, AB[n % 8], PKD[20 * hh + 4 * c:20 * hh + 4 * c + 4], d if c else 0)]))
            if n + 6 < len(seq):
                out.append(rd(n + 6))
        out += [v_("v_add_f32", t0, 1e-6, OA[20]), ("t", [mk("v_rcp_f32", t0, t0)])]
        for d in range(20):
            out.append(v_("v_mul_f32", OA[d], t0, OA[d]))
        for q in range(10):
            out.append(v_("v_cvt_pk_bf16_f32", OP[hh][q], OA[2 * q], OA[2 * q + 1]))
    for q in range(10):
        out.append(v_("v_permlane16_swap_b32", OP[0][q], OP[1][q]))
    out.append(n_(mk("s_lshl_b32", sA, sRB, 3), mk("s_lshl_b32", sB, sW, 1), mk("s_add_u32", sA, sA, sB),
                  mk("s_lshl_b32", sA, sA, 3), mk("s_add_u32", sA, sA, sP), mk("s_mul_i32", sA, sA, 2560),
                  mk("s_add_u32", sA, sA, L.F_OB), mk("s_add_u32", sB, sA, 8 * 2560)))
    for h, sx in ((0, sA), (1, sB)):
        d = OP[h]
        out.append(n_(mk("buffer_store_dwordx4", d[0:4], l16, WS, sx, mods="offen" + st)))
        out.append(n_(mk("buffer_store_dwordx4", d[4:8], l16, WS, sx, mods="offen offset:1024" + st)))
        out.append(n_(mk("buffer_store_dwordx2", d[8:10], l8, WS, sx, mods="offen offset:2048" + st, tag="OST" if h else None)))

    def flag(p):
        p.wait_tag("OST")
        pair_flag(p, L.F_FLO, t0, sA, sB)
    return cnt_load, cnt_check, kvl, out, flag


def pair_flag(p, base, vtmp, sA, sB):
    p.e("s_lshl_b32", sA, sRB, 1)
    p.e("s_lshr_b32", sB, sW, 1)
    p.e("s_add_u32", sA, sA, sB)
    p.e("s_lshl_b32", sA, sA, 3)
    p.e("s_add_u32", sA, sA, sP)
    p.e("s_lshl_b32", sA, sA, 1)
    p.e("s_and_b32", sB, sW, 1)
    p.e("s_add_u32", sA, sA, sB)
    p.e("s_lshl_b32", sA, sA, 2)
    p.e("s_add_u32", sA, sA, base)
    flag_store(p, vtmp, WS, sA)


def h_flag(p, typ):
    e = p.e
    p.wait_tag("HST")
    e("s_lshl_b32", sT0, sRB, 1)
    e("s_lshr_b32", sT1, sW, 1)
    e("s_add_u32", sT0, sT0, sT1)
    e("s_lshl_b32", sT0, sT0, 3)
    e("s_add_u32", sT0, sT0, sP)
    e("s_lshl_b32", sT0, sT0, 2)
    e("s_and_b32", sT1, sW, 1)
    e("s_add_u32", sT0, sT0, sT1)
    if typ == "Y":
        e("s_add_u32", sT0, sT0, 2)
    e("s_lshl_b32", sT0, sT0, 2)
    e("s_add_u32", sT0, sT0, L.F_FLH)
    flag_store(p, V(90), WS, sT0)


srt, sct = S(43), S(23)
sH0, sO0, sW0, sFH, sFO, sFW, sFE = S(28), S(29), S(30), S(31), S(40), S(41), S(42)
OUT = S(44, 4)
sST = [S(64 + k) for k in range(12)]
sOI = [S(76 + k) for k in range(4)]
LONE = (6, 10)


def phase2_scalars(o):
    q = Prog()
    e = q.e
    sR, t0, t1, t2, t3 = S(84), S(85), S(86), S(87), S(88)
    e("s_and_b32", t0, S(2), 7)
    e("s_lshr_b32", t1, S(2), 3)
    e("s_lshr_b32", srt, t0, 1)
    e("s_lshl_b32", srt, srt, 3)
    e("s_and_b32", t2, t1, 7)
    e("s_add_u32", srt, srt, t2)
    e("s_and_b32", sct, t0, 1)
    e("s_lshl_b32", sct, sct, 2)
    e("s_lshr_b32", t3, t1, 3)
    e("s_add_u32", sct, sct, t3)
    if o["rot2"]:
        e("s_mul_i32", t3, t3, 3)
        e("s_add_u32", sR, t3, t2)
    else:
        e("s_mov_b32", sR, 0)
    srd(q, OUT, OUTP, 2048 * 640 * 2)
    for n in range(4):
        e("s_add_u32", t0, sR, n)
        e("s_and_b32", sOI[n], t0, 3)
        e("s_lshr_b32", t1, sOI[n], 1)
        e("s_mul_i32", t1, t1, 6)
        e("s_and_b32", t2, sOI[n], 1)
        e("s_add_u32", t1, t1, t2)
        e("s_add_u32", t1, t1, 4)
        e("s_lshl_b32", sST[n], t1, 10)
    pos_pair = [4, 5, 7, 8, 9, 11]
    e("s_mul_i32", t0, sR, 43)
    e("s_lshr_b32", t0, t0, 8)
    e("s_mul_i32", t0, t0, 6)
    e("s_sub_u32", t0, sR, t0)
    for n, pos in enumerate(pos_pair):
        e("s_cmp_ge_u32", t0, 3)
        e("s_cselect_b32", t1, 3, 0)
        e("s_sub_u32", t2, t0, t1)
        e("s_lshl_b32", t1, t1, 1)
        e("s_add_u32", t1, t1, t2)
        e("s_cmp_ge_u32", t2, 2)
        e("s_cselect_b32", t2, 1, 0)
        e("s_add_u32", t1, t1, t2)
        e("s_lshl_b32", sST[pos], t1, 10)
        if n < 5:
            e("s_add_u32", t0, t0, 1)
            e("s_cmp_eq_u32", t0, 6)
            e("s_cselect_b32", t0, 0, t0)
    e("s_and_b32", t0, sR, 1)
    e("s_mul_i32", t1, t0, 6 * 1024)
    e("s_add_u32", sST[LONE[0]], t1, 2048)
    e("s_sub_u32", sST[LONE[1]], 2048 + 6 * 1024, t1)
    e("s_lshl_b32", t0, srt, 5)
    e("s_lshl_b32", t1, sW, 1)
    e("s_add_u32", t0, t0, t1)
    e("s_mul_i32", sH0, t0, 6144)
    if L.F_HB:
        e("s_add_u32", sH0, sH0, L.F_HB)
    e("s_mul_i32", sO0, t0, 2560)
    e("s_add_u32", sO0, sO0, L.F_OB)
    e("s_mul_i32", sW0, sW, 17 * 40)
    e("s_mul_i32", t1, sct, 5)
    e("s_add_u32", sW0, sW0, t1)
    e("s_lshl_b32", sW0, sW0, 10)
    e("s_add_u32", sW0, sW0, L.F_WT)
    e("s_lshl_b32", t0, srt, 3)
    e("s_lshl_b32", t1, sW, 1)
    e("s_add_u32", t0, t0, t1)
    e("s_lshl_b32", sFH, t0, 4)
    e("s_add_u32", sFH, sFH, L.F_FLH)
    e("s_lshl_b32", sFO, t0, 3)
    e("s_add_u32", sFE, sFO, L.F_FLE)
    e("s_add_u32", sFO, sFO, L.F_FLO)
    e("s_mul_i32", t0, sct, 80)
    e("s_lshr_b32", t0, t0, 6)
    e("s_mul_i32", t1, sW, 10)
    e("s_add_u32", t0, t0, t1)
    e("s_lshl_b32", sFW, t0, 7)
    e("s_add_u32", sFW, sFW, L.F_FLW)
    return atomize_scalar(q.ins)


def phase2(p, typ, o):
    e = p.e
    ld = o["ld"]
    D = o["d2"]
    tmp_s = [S(82 + k) for k in range(8)]
    ti = [0]

    def ts():
        ti[0] += 1
        return tmp_s[ti[0] % len(tmp_s)]

    PW, AW, PE, AE = V(22), V(23), V(88), V(89)
    e("v_and_b32", AW, 31, lane)
    e("v_min_u32", AW, 16, AW)
    e("v_lshrrev_b32", PW, 5, lane)
    e("v_lshlrev_b32", PW, 7, PW)
    e("v_lshl_add_u32", AW, AW, 2, PW)
    e("buffer_load_dword", PW, AW, WS, sFW, mods="offen sc1")
    e("v_and_b32", AE, 3, lane)
    e("v_lshlrev_b32", AE, 2, AE)
    e("buffer_load_dword", PE, AE, WS, sFE, mods="offen sc1")
    vA = [V(5 + a) for a in range(4)]
    vL = [V(9 + a) for a in range(4)]
    vO = [V(13 + a) for a in range(4)]
    vR = [V(17 + a) for a in range(4)]
    vW4 = V(21)
    for a in range(4):
        e("v_add_u32", vA[a], 49152 * a, l16)
        e("v_add_u32", vL[a], 49152 * a, l8)
        e("v_add_u32", vO[a], 20480 * a, l16)
        e("v_add_u32", vR[a], 20480 * a, l8)
    e("v_add_u32", vW4, 4096, l16)
    XRES = V(74, 10)
    xo = [V(64 + k) for k in range(5)]
    ro = [V(69 + k) for k in range(5)]
    rq = Prog()
    f = rq.e
    f("s_lshl_b32", S(80), srt, 6)
    f("s_mul_i32", S(80), S(80), 1280)
    f("s_mul_i32", S(81), sct, 160)
    f("s_add_u32", S(80), S(80), S(81))
    for k in range(5):
        it, row, c4, tt = V(84), V(85), V(86), V(87)
        f("s_lshl_b32", S(81), sW, 6)
        f("s_add_u32", S(81), S(81), 256 * k)
        f("v_add_u32", it, S(81), lane)
        f("v_mul_u32_u24", row, 3277, it)
        f("v_lshrrev_b32", row, 16, row)
        f("v_mul_u32_u24", c4, 20, row)
        f("v_sub_u32", c4, it, c4)
        f("v_mul_u32_u24", tt, 1280, row)
        f("v_lshl_add_u32", tt, c4, 3, tt)
        f("v_add_u32", xo[k], S(80), tt)
        f("v_mul_u32_u24", tt, RPITCH, row)
        f("v_lshl_add_u32", tt, c4, 4, tt)
        f("v_add_u32", ro[k], LDS_R, tt)
        f("buffer_load_dwordx2", XRES[2 * k:2 * k + 2], xo[k], XS, 0, mods="offen")
    res_atoms = atomize(rq.ins)
    h_flag(p, typ)
    p.stamp("p1_end")

    if typ == "Y":
        D = o.get("d2y", 6)
        pool = [A(80 + 4 * i, 4) for i in range(44)] + [V(208 + 4 * i, 4) for i in range(12)]
    else:
        D = o.get("d2x", 8)
        pool = [A(80 + 4 * i, 4) for i in range(44)] + [V(96 + 4 * i, 4) for i in range(40)]
    assert D * 9 <= len(pool)
    slot = lambda s_, i: pool[(s_ % D) * 9 + i]

    def w_loads(pos):
        s_ = ts()
        if pos < 12:
            pre = [mk("s_mul_i32", s_, sST[pos], 40), mk("s_add_u32", s_, s_, sW0)]
        elif pos < 16:
            pre = [mk("s_add_u32", s_, sOI[pos - 12], 12), mk("s_mul_i32", s_, s_, 40960), mk("s_add_u32", s_, s_, sW0)]
        else:
            pre = [mk("s_add_u32", s_, sW0, 16 * 40960)]
        out = []
        for nt in range(5):
            i = mk("buffer_load_dwordx4", slot(pos, 4 + nt), l16 if nt < 4 else vW4, WS, s_,
                   mods=f"offen offset:{1024 * (nt % 4)}" + ld)
            out.append((pre if nt == 0 else []) + [i])
        return out

    def a_loads(pos):
        s_ = ts()
        out = []
        if pos < 12:
            pre = [mk("s_add_u32", s_, sST[pos], sH0)]
            for a in range(4):
                q = slot(pos, a)
                if pos in LONE:
                    out.append((pre if a == 0 else []) + [mk("buffer_load_dwordx2", q[0:2], vL[a], WS, s_, mods="offen" + ld)])
                    out.append([mk("buffer_load_dwordx2", q[2:4], vL[a], WS, s_, mods="offen offset:512" + ld)])
                else:
                    out.append((pre if a == 0 else []) + [mk("buffer_load_dwordx4", q, vA[a], WS, s_, mods="offen" + ld)])
        elif pos < 16:
            s2 = ts()
            pre = [mk("s_lshr_b32", s_, sOI[pos - 12], 1), mk("s_mul_i32", s_, s_, 2560), mk("s_and_b32", s2, sOI[pos - 12], 1),
                   mk("s_lshl_b32", s2, s2, 10), mk("s_add_u32", s_, s_, s2), mk("s_add_u32", s_, s_, sO0)]
            for a in range(4):
                out.append((pre if a == 0 else []) + [mk("buffer_load_dwordx4", slot(pos, a), vO[a], WS, s_, mods="offen" + ld)])
        else:
            pre = [mk("s_add_u32", s_, sO0, 2048)]
            for a in range(4):
                q = slot(pos, a)
                out.append((pre if a == 0 else []) + [mk("buffer_load_dwordx2", q[0:2], vR[a], WS, s_, mods="offen" + ld)])
                out.append([mk("buffer_load_dwordx2", q[2:4], vR[a], WS, s_, mods="offen offset:2560" + ld)])
        return out

    def emit_groups(gs):
        for grp in gs:
            for i in grp:
                p.add(i)

    def loads(pos):
        return a_loads(pos) + w_loads(pos)

    poll_block(PW, AW, WS, sFW, 1, typ + "_fw")(p)
    poll_block(PE, AE, WS, sFE, 1, typ + "_fe")(p)
    p.stamp("p2_flags")
    for pos in range(4):
        emit_groups(a_loads(pos) + w_loads(pos))
    for pos in range(4, o.get("wpre", 5)):
        emit_groups(w_loads(pos))
    OPOS = o.get("opos", 1)
    if typ == "Y":
        cnt_load, cnt_check, kvl, ocomp, oflag = o_stage_parts(o)
    side = Side(p)

    ACC = lambda a, nt: A((a * 5 + nt) * 4, 4)
    LCHK, OCHK = o.get("lchk", 1), o.get("ochk", 8)
    POLL, PA_ = V(22), V(23)
    nA, nW = 4, max(4, o.get("wpre", 5))
    for pos in range(17):
        pending = []
        want = min(17, pos + D)
        while nA < want and ((nA < 12 and pos > LCHK) or pos > OCHK):
            pending += a_loads(nA)
            nA += 1
        wl = []
        while nW < want and len(wl) < 5 * o.get("wper", 2):
            wl += w_loads(nW)
            nW += 1
        pending += wl
        if pos == LCHK:
            e("v_and_b32", PA_, 7, lane)
            e("v_lshlrev_b32", PA_, 2, PA_)
            e("buffer_load_dword", POLL, PA_, WS, sFH, mods="offen sc1")
        if pos == OCHK:
            e("v_and_b32", PA_, 3, lane)
            e("v_lshlrev_b32", PA_, 2, PA_)
            e("buffer_load_dword", POLL, PA_, WS, sFO, mods="offen sc1")
        if typ == "Y" and pos == OPOS - 1:
            emit_atoms(p, cnt_load)
        if typ == "Y" and pos == OPOS:
            emit_atoms(p, [cnt_check])
            emit_atoms(p, kvl)
            every = max(1, len(ocomp) // (len(pending) + 1))
            for n, a in enumerate(ocomp):
                emit_atoms(p, [a])
                if pending and n % every == every - 1:
                    emit_groups([pending.pop(0)])
            emit_groups(pending)
            pending = []
            p.stamp("p2_o")
        if pos == (OPOS + 2 if typ == "Y" else 3):
            side.q = list(res_atoms)
        if pos in (0, 2, 4, 8, 12):
            p.stamp(f"p2_s{pos}")
        n = 0
        for nt in range(5):
            for a in range(4):
                d = ACC(a, nt)
                e("v_mfma_f32_16x16x32_bf16", d, slot(pos, 4 + nt), slot(pos, a), d if pos else 0)
                n += 1
                if pending and (n % 2 == 0 or len(pending) > 20 - n):
                    for i in pending.pop(0):
                        p.add(i)
                elif side.q:
                    side.fill(2, nmax=1)
        emit_groups(pending)
        if typ == "Y" and pos == OPOS + 1:
            oflag(p)
        if pos == LCHK:
            poll_block(POLL, PA_, WS, sFH, 1, typ + "_fh")(p)
            p.stamp("p2_late")
        if pos == OCHK:
            poll_block(POLL, PA_, WS, sFO, 1, typ + "_fo")(p)
            p.stamp("p2_ochk")
    side.flush()
    p.stamp("p2_loop")

    g_, n16, wa = V(84), V(85), V(86)
    e("v_lshrrev_b32", g_, 4, lane)
    e("v_and_b32", n16, 15, lane)
    e("v_mul_u32_u24", wa, RPITCH, n16)
    e("v_lshl_add_u32", wa, g_, 4, wa)
    e("s_mul_i32", sT0, sW, 64 * RPITCH)
    e("s_add_u32", sT0, sT0, LDS_R)
    e("v_add_u32", wa, sT0, wa)
    for a in range(4):
        for nt in range(5):
            e("ds_write_b128", wa, ACC(a, nt), mods=f"offset:{a * 16 * RPITCH + nt * 64}")
    p.wait_lgkm0()
    e("s_barrier")
    p.stamp("p2_red")
    RB = V(96, 80)
    for k in range(5):
        for w in range(4):
            e("ds_read_b128", RB[16 * k + 4 * w:16 * k + 4 * w + 4], ro[k], mods=f"offset:{w * 64 * RPITCH}")
    e("s_mov_b32", sT0, 0xFFFF0000)
    for k in range(5):
        b = 16 * k
        for i in range(4):
            e("v_add_f32", RB[b + i], RB[b + i], RB[b + 4 + i])
            e("v_add_f32", RB[b + 8 + i], RB[b + 8 + i], RB[b + 12 + i])
        e("v_lshlrev_b32", RB[b + 4], 16, XRES[2 * k])
        e("v_and_b32", RB[b + 5], sT0, XRES[2 * k])
        e("v_lshlrev_b32", RB[b + 6], 16, XRES[2 * k + 1])
        e("v_and_b32", RB[b + 7], sT0, XRES[2 * k + 1])
        for i in range(4):
            e("v_add_f32", RB[b + i], RB[b + i], RB[b + 8 + i])
        for i in range(4):
            e("v_add_f32", RB[b + i], RB[b + i], RB[b + 4 + i])
        e("v_cvt_pk_bf16_f32", RB[b], RB[b], RB[b + 1])
        e("v_cvt_pk_bf16_f32", RB[b + 1], RB[b + 2], RB[b + 3])
        e("buffer_store_dwordx2", RB[b:b + 2], xo[k], OUT, 0, mods="offen")
    p.stamp("end")


def body_x(p, o, vx):
    st = o["st"]
    kv = Pass("kv", "kv", 5, ACC_A, 320, 20, 20, WQ, 3840, sROTQ, [V(5 + j) for j in range(5)], [V(16)], 0)
    u80 = Pass("u80", "U", 5, ACC_B, 160, 10, 10, WU, 3072, sROTU, [V(10 + j) for j in range(5)], [V(17), V(18)], 0)
    stream = Stream(p, [kv, u80], 5, o)
    stream.m0_each = False
    phr = prologue(p, "X", [kv, u80], stream, o, vx)
    run_first_pass(p, stream, o["q1x"], phr, guard_load(), o.get("sx0", ()))
    p.stamp("pass1")
    vPK, vV = V(19), V(20)
    side = [guard_check("X_g")]
    side += [v_("v_and_b32", TMP[0], 31, lane), n_(mk("s_lshl_b32", sT0, sW, 5)), v_("v_add_u32", TMP[0], sT0, TMP[0]),
             v_("v_lshrrev_b32", TMP[1], 5, lane), v_("v_mul_u32_u24", TMP[0], 80, TMP[0]),
             v_("v_mul_u32_u24", TMP[2], 20480, TMP[1]), v_("v_mul_u32_u24", TMP[1], 10240, TMP[1]),
             v_("v_add_u32", vPK, TMP[0], TMP[2]), v_("v_add_u32", vV, TMP[0], TMP[1]),
             v_("v_add_u32", vPK, PKB, vPK), v_("v_add_u32", vV, VB, vV)]
    side += pack_atoms(ACC_A, 20, EP, TMP[0], TMP[1])
    side += feature_mfma_atoms(EP)
    side += pack_atoms(ACC_A + 40, 20, EP, TMP[0], TMP[1])
    for c in range(5):
        side.append(n_(mk("ds_write_b128", vV, EP[4 * c:4 * c + 4], mods=f"offset:{16 * c}")))
    POLL, PADDR = V(51 - 46 + 10), V(51 - 46 + 11)
    side += [n_(mk("s_lshl_b32", sT0, sP, 2), mk("s_add_u32", sT0, sT0, sW), mk("s_lshl_b32", sMISC, sT0, 2), mk("s_add_u32", sMISC, sMISC, DBG_Z)),
             v_("v_mov_b32", PADDR, 0),
             n_(mk("buffer_load_dword", POLL, PADDR, DBG, sMISC, mods="offen sc1"))]
    addr, kvblk, post, sB = kv_atoms(o)
    for hh in range(2):
        side += softmax_atoms(hh)
        if hh == 1:
            side += addr
        for c in range(5):
            side.append(n_(mk("ds_write_b128", vPK, PKD[20 * hh + 4 * c:20 * hh + 4 * c + 4], mods=f"offset:{10240 * hh + 16 * c}")))
    side.append(("blk", lambda p_: p_.stamp("softmax_done")))
    side.append(("blk", poll_block(POLL, PADDR, DBG, sMISC, 1, "X_z")))
    side.append(("blk", kvblk))
    side += post
    side.append(("blk", lambda p_: p_.stamp("kv_done")))
    stream.side.q = interleave(side, phase2_scalars(o), start=150)
    stream.run_pass(1, o["q2x"], stamp_at=o.get("sx1", ()))
    stream.side.flush()
    p.stamp("pass2")
    p.wait_lgkm0()
    p.e("s_barrier")
    G, U = EP[0:8], EP[8:16]
    PA, PB = PKD[40:44], PKD[44:48]
    atoms = glu_atoms(ACC_B, [("pair", 0, L.H_X01), ("pair", 2, L.H_X23), ("lone", 4, L.H_XL)], st, (G, U, PA, PB), tag="HST")
    emit_atoms(p, atoms)
    p.wait_tag("KVA")
    p.e("s_add_u32", sT0, sB, 2048)
    flag_store(p, TMP[0], WS, sT0, atomic=True)
    phase2(p, "X", o)


def body_y(p, o, vx):
    st = o["st"]
    u64 = Pass("u64", "U", 4, ACC_A, 160, 10, 8, WU, 3072, sROTU, [V(5 + j) for j in range(5)], [V(16), V(17)], 128)
    q = Pass("q", "q", 3, ACC_B, 192, 12, 12, WQ, 3840, sROTQ, [V(10 + j) for j in range(3)], [V(18)], 0)
    u48 = Pass("u48", "U", 3, ACC_A, 96, 6, 6, WU, 3072, sROTU, [V(13 + j) for j in range(3)], [V(19), V(20)], 80)
    stream = Stream(p, [u64, q, u48], 7, o)
    phr = prologue(p, "Y", [u64, q, u48], stream, o, vx)
    run_first_pass(p, stream, o["q1y"], phr, guard_load(), o.get("sy0", ()))
    p.stamp("pass1")
    G, U = EP[0:8], EP[8:16]
    PA, PB = PKD[16:20], PKD[20:24]
    wa0, wb0, wf0, _ = wt_round_atoms(0, st)
    wa1, wb1, wf1, _ = wt_round_atoms(1, st)
    glu = glu_atoms(ACC_A, [("pair", 0, L.H_Y64A), ("pair", 2, L.H_Y64B)], st, (G, U, PA, PB), tag="HE")

    def early_flag(p_):
        p_.wait_tag("HE")
        pair_flag(p_, L.F_FLE, TMP[1], S(16), S(17))
    stream.side.q = [guard_check("Y_g")] + wa0 + glu + wb0
    stream.run_pass(1, o["q2y"], hooks={75: lambda s_: s_.side.q.extend([wf0, ("blk", early_flag)] + wa1), 112: lambda s_: s_.side.q.extend(wb1)},
                    stamp_at=o.get("sy1", ()))
    stream.side.flush()
    p.stamp("pass2")
    side = pack_atoms(ACC_B, 20, EP, TMP[0], TMP[1])
    side += feature_mfma_atoms(EP)
    side.append(wf1)
    for hh in range(2):
        side += softmax_atoms(hh)
    stream.side.q = interleave(side, phase2_scalars(o), start=90)
    stream.run_pass(2, o["q3y"], stamp_at=o.get("sy2", ()))
    stream.side.flush()
    p.stamp("pass3")
    p.wait_lgkm0()
    p.e("s_barrier")
    atoms = glu_atoms(ACC_A, [("lone", 0, L.H_YL), ("pair", 1, L.H_Y48)], st, (EP[0:8], EP[8:16], PKD[40:44], PKD[44:48]), tag="HST")
    emit_atoms(p, atoms)
    phase2(p, "Y", o)


def build(**kw):
    o = dict(DEF)
    o.update(kw)
    p = Prog()
    p.stamps_on = o["stamps"]
    p.lane_stamps = True
    e = p.e
    e("s_cmp_ge_u32", S(2), 256)
    e("s_cbranch_scc1", "F_end")
    if o.get("diag"):
        p.raw("s_memrealtime s[90:91]")
    p.stamp("start_rt", real=True)
    p.stamp("start")
    e("s_load_dwordx8", S(4, 8), S(0, 2), 0)
    e("s_load_dwordx4", S(12, 4), S(0, 2), 40)
    e("s_load_dwordx2", WDP, S(0, 2), 56)
    e("s_load_dwordx2", OUTP, S(0, 2), 64)
    e("s_load_dwordx4", S(16, 4), S(0, 2), 72)
    e("v_and_b32", lane, 63, V(0))
    e("v_lshrrev_b32", V(5), 6, V(0))
    e("v_lshlrev_b32", l16, 4, lane)
    e("v_readfirstlane_b32", sW, V(5))
    e("v_lshlrev_b32", l8, 3, lane)
    e("v_lshlrev_b32", l4, 2, lane)
    e("s_and_b32", sT0, S(2), 7)
    e("s_lshr_b32", sT1, S(2), 3)
    e("s_and_b32", sRB, sT0, 1)
    e("s_lshl_b32", sRB, sRB, 3)
    e("s_and_b32", sT2, sT1, 7)
    e("s_add_u32", sRB, sRB, sT2)
    e("s_lshr_b32", sT0, sT0, 1)
    e("s_lshl_b32", sT0, sT0, 2)
    e("s_lshr_b32", sT1, sT1, 3)
    e("s_add_u32", sT0, sT0, sT1)
    e("s_lshr_b32", sP, sT0, 1)
    e("s_and_b32", sMISC, sT0, 1)
    if o["rot"]:
        e("s_mul_i32", sT1, sT1, 3)
        e("s_add_u32", sROT, sT1, sT2)
        e("s_cmp_ge_u32", sROT, 10)
        e("s_cselect_b32", sT1, 10, 0)
        e("s_sub_u32", sROT, sROT, sT1)
    else:
        e("s_mov_b32", sROT, 0)
    e("s_mul_i32", sROTQ, sROT, 64 * 3840)
    e("s_mul_i32", sROTU, sROT, 64 * 3072)
    e("s_mov_b32", sMASK, 0xFFFF0000)
    e("s_mov_b32", sL2E, LOG2E)
    vx = prologue_lane(p)
    p.wait_smem()
    extra = 1024 * 256 if o["stamps"] else 0
    srd(p, XS, S(4, 2), 2048 * 640 * 2)
    srd(p, WQ, S(6, 2), 640 * 1920 * 2)
    srd(p, PH, S(8, 2), 32 * 400 * 2)
    srd(p, WS, S(18, 2), L.F_END + extra)
    srd(p, DBG, S(16, 2), 256)
    e("s_cmp_ge_u32", sW, 2)
    e("s_cselect_b32", WU[0], S(14), S(12))
    e("s_cselect_b32", WU[1], S(15), S(13))
    e("s_mov_b32", WU[2], 640 * 1536 * 2)
    e("s_mov_b32", WU[3], 0x20000)
    e("s_lshl_b32", sT0, sRB, 3)
    e("s_lshl_b32", sT1, sW, 1)
    e("s_add_u32", sT0, sT0, sT1)
    e("s_lshl_b32", sT0, sT0, 3)
    e("s_add_u32", sT0, sT0, sP)
    e("s_mul_i32", sHB, sT0, 6144)
    if L.F_HB:
        e("s_add_u32", sHB, sHB, L.F_HB)
    e("s_cmp_eq_u32", sMISC, 1)
    e("s_cbranch_scc1", "F_Y")
    p.fork_save()
    names0 = list(getattr(p, "stamp_names", []))

    def dump():
        if o.get("diag"):
            p.raw("s_memrealtime s[92:93]")
            p.wait_smem()
            e("s_mov_b64", "exec", 1)
            e("s_not_b32", sT0, S(90))
            e("v_mov_b32", V(8), sT0)
            e("buffer_atomic_umax", V(8), "off", DBG, 0, mods="offset:4")
            e("v_mov_b32", V(9), S(92))
            e("buffer_atomic_umax", V(9), "off", DBG, 0, mods="offset:8")
            e("s_sub_u32", sT0, S(92), S(90))
            e("v_mov_b32", V(10), sT0)
            e("buffer_atomic_umax", V(10), "off", DBG, 0, mods="offset:12")
            e("v_mov_b32", V(11), S(90))
            e("buffer_atomic_umax", V(11), "off", DBG, 0, mods="offset:16")
            p.wait_vm0()
            e("s_mov_b64", "exec", -1)
        if o["stamps"]:
            p.stamp("end_rt", real=True)
            e("s_lshl_b32", sT0, S(2), 2)
            e("s_add_u32", sT0, sT0, sW)
            e("s_lshl_b32", sT0, sT0, 8)
            e("s_add_u32", sT0, sT0, L.F_END)
            p.dump_stamps(WS, sT0, l4)
    body_x(p, o, vx)
    dump()
    p.names_x = list(getattr(p, "stamp_names", []))
    e("s_endpgm")
    p.label("F_Y")
    p.fork_restore()
    if o["stamps"]:
        p.stamp_names = list(names0)
    body_y(p, o, vx)
    dump()
    p.names_y = list(getattr(p, "stamp_names", []))
    p.label("F_end")
    e("s_endpgm")
    return p
```

```python
from asmlib import V, A, S, Neg, Prog, mk
import layout as L

NAME = "parallel_sum__linear_kernel_hedgehog__glu_gated_reglu__prompt_kernel"
LDS_BYTES = 163840
SLOT = 20480
XSTG, XW = 40960, 28672
PTB = 155648
ZB = PTB + 3584
PKB, VB = 102400, 143360
WTS = 143360
LDS_T, LDS_Z2, LDS_R, RPITCH = 0, 7680, 16384, 336
LOG2E = 1.4426950408889634
OOB = 0x7FF00000
SPIN_MAX = 1 << 18
NOPOLL = ()
SLEEP = 1
DBG_Z, DBG_G = 128, 64

sW, sRB, sP, sROT = S(52), S(53), S(54), S(55)
sSRC, sT0, sT1, sT2, sT3 = S(56), S(57), S(58), S(59), S(60)
sMASK, sL2E, sMISC = S(61), S(62), S(63)
XS, WQ, WU, WS, PH, WD, DBG = (S(k, 4) for k in (24, 28, 32, 36, 40, 44, 48))
sROTQ, sROTU, sHB, sXP = S(20), S(21), S(22), S(23)
OUTP, WDP = S(94, 2), S(98, 2)
WREG = [S(96), S(97), S(3)]
sEX = S(100, 2)
lane, l16, l8, l4 = V(1), V(2), V(3), V(4)
RSTD, CEN = V(21), V(22)
XR = lambda s: V(96 + 4 * s, 4)
PKD = V(24, 48)
EP = V(72, 20)
TMP = [V(23), V(92), V(93), V(94), V(95)]
ACC_A, ACC_B, FB0, PHI0 = 0, 80, 160, 192

DEF = dict(rot=True, st=" sc1", ld=" sc1", q0=5, q1x=4, q1y=5, q2x=5, q2y=3, q3y=4, depth=6, d2=5, stamps=False,
           rot2=True, apace=1, touch_every=3, opos=1, d2x=5, d2y=5, ninit=3, lchk=0, ochk=7, sleep=4)


def v_(op, *a, **k):
    return ("v", [mk(op, *a, **k)])


def n_(*ins):
    return ("n", list(ins))


def atomize(ins):
    out = []
    for i in ins:
        if i.cls == "valu":
            out.append(("v", [i]))
        elif i.cls in ("salu", "vmem") and out and out[-1][0] == "n" and out[-1][1][-1].cls == "salu":
            out[-1][1].append(i)
        else:
            out.append(("n", [i]))
    return out


def atomize_scalar(ins):
    out = []
    for i in ins:
        if out and (i.op.startswith("s_cselect") or out[-1][1][-1].op.startswith("s_cmp")):
            out[-1][1].append(i)
        else:
            out.append(("n", [i]))
    return out


def interleave(main, extra, start=0):
    if not extra:
        return list(main)
    out = list(main[:start])
    rest = main[start:]
    step = max(1.0, len(rest) / (len(extra) + 1.0))
    k = 0
    for n, a in enumerate(rest):
        out.append(a)
        while k < len(extra) and (n + 1) >= (k + 1) * step:
            out.append(extra[k])
            k += 1
    return out + extra[k:]


def srd(p, k, base, nbytes):
    p.e("s_mov_b32", k[0], base[0])
    p.e("s_mov_b32", k[1], base[1])
    p.e("s_mov_b32", k[2], nbytes)
    p.e("s_mov_b32", k[3], 0x20000)


class Pass:
    def __init__(self, name, kind, nt, acc, pitch, cpr, ndata, srdreg, srcpitch, rot, voff, pat, col0):
        self.name, self.kind, self.nt, self.acc, self.pitch, self.cpr = name, kind, nt, acc, pitch, cpr
        self.ndata, self.srd, self.srcpitch, self.rot = ndata, srdreg, srcpitch, rot
        self.voff, self.pat, self.col0 = voff, pat, col0
        self.wreg = None
        self.ndma = len(voff)

    def reads(self, sl, t):
        P = self.pitch
        if self.kind == "U":
            return [(self.pat[rd], 16 * sl * P + 32 * t) for rd in range(2)]
        return [(self.pat[0], (16 * sl + 4 * rd) * P + 32 * t) for rd in range(2)]


def div_magic(n):
    return {20: 3277, 12: 5462, 10: 6554, 6: 10923}[n]


def setup_pass(p, ps, slot0, t, sc):
    e = p.e
    P = ps.pitch
    s0, s1, s2, s3 = sc
    if ps.kind == "U":
        e("s_lshr_b32", s0, sW, 1)
        e("s_mul_i32", s0, s0, 64 * P)
        e("s_and_b32", s1, sW, 1)
        e("s_mul_i32", s1, s1, 32 * P)
        e("s_add_u32", ps.wreg, s0, s1)
        e("s_lshr_b32", s2, sW, 1)
        e("s_lshl_b32", s2, s2, 2)
        e("s_and_b32", s1, sW, 1)
        e("s_lshl_b32", s1, s1, 5)
        e("s_mul_i32", s3, sP, 384)
        e("s_add_u32", s3, s3, 2 * ps.col0)
    else:
        e("s_mul_i32", ps.wreg, sW, 16 * P)
        e("s_lshl_b32", s1, sW, 4)
        e("s_mul_i32", s3, sP, 160)
    e("s_mov_b32", s0, slot0)
    for j in range(ps.ndma):
        q, row, c = t[0], t[1], t[2]
        e("v_add_u32", q, 64 * j, lane)
        e("v_mul_u32_u24", row, div_magic(ps.cpr), q)
        e("v_lshrrev_b32", row, 16, row)
        e("v_mul_u32_u24", c, ps.cpr, row)
        e("v_sub_u32", c, q, c)
        if ps.kind == "kv":
            seg = t[3]
            e("v_mul_u32_u24", seg, 52, c)
            e("v_lshrrev_b32", seg, 8, seg)
            e("v_mul_u32_u24", q, 5, seg)
            e("v_sub_u32", c, c, q)
            e("v_and_b32", q, 1, seg)
            e("v_mul_u32_u24", q, 1280, q)
            e("v_lshl_add_u32", c, c, 4, q)
            e("v_lshrrev_b32", seg, 1, seg)
            e("v_mul_u32_u24", seg, 80, seg)
            e("v_add3_u32", c, c, seg, s3)
            e("v_add_u32", c, 1280 - 1024 * (j % 4), c)
        elif ps.kind == "q":
            hf = t[3]
            e("v_mul_u32_u24", hf, 43, c)
            e("v_lshrrev_b32", hf, 8, hf)
            e("v_mul_u32_u24", q, 6, hf)
            e("v_sub_u32", c, c, q)
            e("v_min_u32", c, 4, c)
            e("v_lshlrev_b32", c, 4, c)
            e("v_mul_u32_u24", hf, 80, hf)
            e("v_add3_u32", c, c, hf, s3)
        else:
            if ps.ndata < ps.cpr:
                e("v_min_u32", c, ps.ndata - 1, c)
            e("v_lshl_add_u32", c, c, 4, s3)
            e("v_xor_b32", row, s2, row)
        e("v_add_u32", row, s1, row)
        e("v_mul_u32_u24", row, ps.srcpitch, row)
        comp = 1024 * (j % 4) if ps.kind != "kv" else 0
        if comp:
            e("v_add_u32", row, row, c)
            e("v_subrev_u32", ps.voff[j], comp, row)
        else:
            e("v_add_u32", ps.voff[j], row, c)
    G1, kh, rho, pp = t[0], t[1], t[2], t[3]
    e("v_bfe_u32", G1, lane, 4, 1)
    e("v_lshrrev_b32", kh, 5, lane)
    e("v_bfe_u32", rho, lane, 2, 2)
    e("v_and_b32", pp, 3, lane)
    e("v_lshl_add_u32", rho, kh, 3, rho)
    e("v_mul_u32_u24", rho, P, rho)
    if ps.kind == "U":
        e("v_lshl_add_u32", rho, pp, 3, rho)
        e("v_mul_u32_u24", kh, 68 * P, G1)
        e("v_add3_u32", ps.pat[0], rho, kh, s0)
        e("v_mul_u32_u24", kh, 60 * P, G1)
        e("v_add_u32", kh, 4 * P, kh)
        e("v_add3_u32", ps.pat[1], rho, kh, s0)
    else:
        half = 160 if ps.kind == "kv" else 96
        e("v_and_b32", kh, 1, pp)
        e("v_mul_u32_u24", kh, half, kh)
        e("v_add_u32", rho, rho, kh)
        e("v_lshrrev_b32", pp, 1, pp)
        e("v_lshl_add_u32", pp, G1, 1, pp)
        e("v_lshl_add_u32", rho, pp, 3, rho)
        e("v_add_u32", ps.pat[0], s0, rho)


def dma_atoms(ps, slot, first_of_pass, tag, m0_each=True):
    out = []
    for j in range(ps.ndma):
        ins = []
        if j == 0 and first_of_pass:
            ins.append(mk("s_mov_b32", sSRC, ps.rot))
        if m0_each or j in (0, 4):
            ins.append(mk("s_add_u32", "m0", ps.wreg, slot * SLOT + (4096 if j == 4 else 0)))
        last = j == ps.ndma - 1
        ins.append(mk("buffer_load_dwordx4", ps.voff[j], ps.srd, sSRC, mods=f"offen offset:{1024 * (j % 4)} lds",
                      tag=tag if last else None))
        if last:
            step = 64 * ps.srcpitch
            ins.append(mk("s_add_u32", sSRC, sSRC, step))
            ins.append(mk("s_cmp_eq_u32", sSRC, 10 * step))
            ins.append(mk("s_cselect_b32", sSRC, 0, sSRC))
        out.append(ins)
    return out


def center_atoms(s, t0, t1):
    out = []
    for r in range(4):
        x = XR(s)[r]
        out += [v_("v_lshlrev_b32", t0, 16, x), v_("v_and_b32", t1, sMASK, x),
                v_("v_fma_f32", t0, t0, RSTD, CEN), v_("v_fma_f32", t1, t1, RSTD, CEN),
                v_("v_cvt_pk_bf16_f32", x, t0, t1)]
    return out


PHI_FRAGS = [(0, 0), (0, 1), (0, 2), (1, 0), (1, 1), (1, 2), (1, 3), (1, 4), (2, 2), (2, 3), (2, 4)]
PHI_CONST = {(0, 0): 0, (1, 0): 32, (1, 1): 792, (2, 1): 824}


def phi_addr_setup(p, regs, t):
    e = p.e
    kh, jj, par, b0 = t[0], t[1], t[2], t[3]
    e("v_lshrrev_b32", kh, 5, lane)
    e("v_bfe_u32", jj, lane, 4, 1)
    e("v_bfe_u32", par, lane, 1, 1)
    e("v_lshl_add_u32", jj, jj, 1, par)
    e("v_mul_u32_u24", b0, 1600, kh)
    e("v_bfe_u32", par, lane, 2, 2)
    e("v_mul_u32_u24", par, 40, par)
    e("v_add_u32", b0, b0, par)
    e("v_lshl_add_u32", b0, jj, 3, b0)
    e("v_add_u32", b0, PTB, b0)
    e("v_and_b32", par, 1, lane)
    e("v_mov_b32", regs[4], ZB)
    e("v_cmp_eq_u32", "vcc", par, kh)
    e("v_cndmask_b32", regs[0], regs[4], b0, "vcc")
    e("v_cmp_eq_u32", "vcc", 0, jj)
    e("v_cndmask_b32", regs[1], regs[4], regs[0], "vcc")
    e("v_cmp_le_u32", "vcc", 1, jj)
    e("v_cndmask_b32", regs[2], regs[4], regs[0], "vcc")
    e("v_cmp_ge_u32", "vcc", 1, jj)
    e("v_cndmask_b32", regs[3], regs[4], regs[0], "vcc")


def phi_read_atoms(regs):
    out = []
    sel = {(0, 0): regs[0], (1, 0): regs[1], (1, 1): regs[2], (2, 1): regs[3]}
    for idx, (tp, c) in enumerate(PHI_FRAGS):
        for rd in range(2):
            R0 = 8 * c + 4 * rd
            hl = 1 if R0 >= 20 else 0
            d0 = R0 - 20 * hl
            dst = A(PHI0 + 4 * idx + 2 * rd, 2)
            if (tp, hl) in sel:
                out.append(n_(mk("ds_read_b64_tr_b16", dst, sel[(tp, hl)], mods=f"offset:{PHI_CONST[(tp, hl)] + 40 * d0}")))
            else:
                out.append(n_(mk("ds_read_b64_tr_b16", dst, regs[4])))
    return out


def pack_atoms(acc, n, dst, t0, t1):
    out = []
    for u in range(n):
        a, b = (t0, t1) if u % 2 == 0 else (TMP[3], TMP[4])
        out += [v_("v_accvgpr_read_b32", a, A(acc + 2 * u)), v_("v_accvgpr_read_b32", b, A(acc + 2 * u + 1)),
                v_("v_cvt_pk_bf16_f32", dst[u], a, b)]
    return out


def feature_mfma_atoms(kp):
    out = []
    seen = set()
    for idx, (tp, c) in enumerate(PHI_FRAGS):
        d = PKD[16 * tp:16 * tp + 16]
        out.append(("m", [mk("v_mfma_f32_32x32x16_bf16", d, A(PHI0 + 4 * idx, 4), kp[4 * c:4 * c + 4], d if tp in seen else 0)]))
        seen.add(tp)
    return out


def softmax_atoms(hh):
    pv = [PKD[20 * hh + i] for i in range(20)]
    mx, mn, s0, s1 = TMP[0], TMP[1], TMP[2], TMP[3]
    out = [v_("v_max3_f32", mx, pv[0], pv[1], pv[2]), v_("v_min3_f32", mn, pv[0], pv[1], pv[2])]
    for i in range(3, 19, 2):
        out += [v_("v_max3_f32", mx, mx, pv[i], pv[i + 1]), v_("v_min3_f32", mn, mn, pv[i], pv[i + 1])]
    out += [v_("v_max_f32", mx, mx, pv[19]), v_("v_min_f32", mn, mn, pv[19])]
    out += [v_("v_mul_f32", mx, sL2E, mx), v_("v_mul_f32", mn, sL2E, mn)]
    for i in range(20):
        out.append(v_("v_fma_f32", EP[i], pv[i], sL2E, Neg(mx)))
        out.append(v_("v_fma_f32", pv[i], Neg(pv[i]), sL2E, mn))
    for i in range(20):
        out.append(("t", [mk("v_exp_f32", EP[i], EP[i])]))
        out.append(("t", [mk("v_exp_f32", pv[i], pv[i])]))
    out += [v_("v_add_f32", s0, EP[0], EP[1]), v_("v_add_f32", s1, pv[0], pv[1]),
            v_("v_add_f32", mx, EP[2], EP[3]), v_("v_add_f32", mn, pv[2], pv[3])]
    for i in range(4, 20, 2):
        out += [v_("v_add_f32", s0, s0, EP[i]), v_("v_add_f32", s1, s1, pv[i]),
                v_("v_add_f32", mx, mx, EP[i + 1]), v_("v_add_f32", mn, mn, pv[i + 1])]
    out += [v_("v_add_f32", s0, s0, mx), v_("v_add_f32", s1, s1, mn)]
    out += [("t", [mk("v_rcp_f32", s0, s0)]), ("t", [mk("v_rcp_f32", s1, s1)])]
    for i in range(20):
        out.append(v_("v_mul_f32", EP[i], s0, EP[i]))
    for i in range(20):
        out.append(v_("v_mul_f32", pv[i], s1, pv[i]))
    for u in range(10):
        out.append(v_("v_cvt_pk_bf16_f32", pv[u], pv[2 * u], pv[2 * u + 1]))
    for u in range(10):
        out.append(v_("v_cvt_pk_bf16_f32", pv[10 + u], EP[2 * u], EP[2 * u + 1]))
    return out


def glu_tile_atoms(acc, dst, G, U):
    out = []
    for i in range(8):
        out.append(v_("v_accvgpr_read_b32", G[i], A(acc + i)))
    for i in range(8):
        out.append(v_("v_accvgpr_read_b32", U[i], A(acc + 8 + i)))
    for i in range(8):
        out.append(v_("v_max_f32", G[i], 0, G[i]))
    for i in range(8):
        out.append(v_("v_mul_f32", U[i], G[i], U[i]))
    for q in range(4):
        out.append(v_("v_cvt_pk_bf16_f32", dst[q], U[2 * q], U[2 * q + 1]))
    return out


def h_store(data, blk, second, st, wide, tag=None):
    off = blk + (8 * 6144 if second else 0)
    ins = [mk("s_add_u32", sT0, sHB, off)]
    if wide:
        ins.append(mk("buffer_store_dwordx4", data, l16, WS, sT0, mods="offen" + st, tag=tag))
    else:
        ins.append(mk("buffer_store_dwordx2", data, l8, WS, sT0, mods="offen" + st, tag=tag))
    return n_(*ins)


def glu_atoms(acc, groups, st, regs, tag=None):
    G, U, PA, PB = regs
    out = []
    for n, (kind, t, blk) in enumerate(groups):
        tg = tag if n == len(groups) - 1 else None
        out += glu_tile_atoms(acc + 16 * t, PA, G, U)
        if kind == "pair":
            out += glu_tile_atoms(acc + 16 * (t + 1), PB, G, U)
            for q in range(4):
                out.append(v_("v_permlane16_swap_b32", PA[q], PB[q]))
            out.append(h_store(PA, blk, False, st, True))
            out.append(h_store(PB, blk, True, st, True, tg))
        else:
            out.append(v_("v_permlane16_swap_b32", PA[0], PA[2]))
            out.append(v_("v_permlane16_swap_b32", PA[1], PA[3]))
            out.append(h_store(PA[0:2], blk, False, st, False))
            out.append(h_store(PA[2:4], blk, True, st, False, tg))
    return out


def emit_atoms(p, atoms):
    for kind, ins in atoms:
        if kind == "d":
            continue
        if kind == "blk":
            ins(p)
        else:
            for i in ins:
                p.add(i)


class Side:
    def __init__(self, p):
        self.p = p
        self.q = []

    def fill(self, quota, nmax=2):
        p = self.p
        if self.q and self.q[0][0] == "d":
            if self.q[0][1] > 1:
                self.q[0] = ("d", self.q[0][1] - 1)
            else:
                self.q.pop(0)
            return
        n = 0
        while self.q and self.q[0][0] == "n" and n < nmax:
            for i in self.q.pop(0)[1]:
                p.add(i)
            n += 1
        n = 0
        ns = 0
        while self.q:
            kind, ins = self.q[0]
            if kind == "n" and ns < 2 and all(i.cls == "salu" for i in ins) and len(ins) <= 4:
                ns += 1
            elif kind in ("v", "t"):
                cost = 2 if kind == "t" else 1
                if n + cost > quota and n > 0:
                    break
                n += cost
            else:
                break
            self.q.pop(0)
            for i in ins:
                p.add(i)

    def mfmas(self, quota):
        p = self.p
        while self.q and self.q[0][0] in ("m", "blk"):
            kind, ins = self.q.pop(0)
            if kind == "blk":
                ins(p)
                continue
            for i in ins:
                p.add(i)
            self.fill(quota)

    def flush(self):
        emit_atoms(self.p, self.q)
        self.q = []


class Stream:
    def __init__(self, p, passes, ns, o):
        self.p, self.passes, self.ns, self.depth = p, passes, ns, o["depth"]
        self.frags = [(pi, s, t) for pi, ps in enumerate(passes) for s in range(40) for t in range(ps.nt)]
        self.nstage = 10 * len(passes)
        self.dmaq = []
        self.next_read = 0
        self.cur_stage = -1
        self.side = Side(p)
        self.dma_next = 0
        self.m0_each = True
        self.since_dma = 99
        self.o = o

    def stage_of(self, f):
        pi, s, t = self.frags[f]
        return 10 * pi + s // 4

    def queue_stage(self):
        g = self.dma_next
        if g >= self.nstage:
            return
        ps = self.passes[g // 10]
        atoms = dma_atoms(ps, g % self.ns, g % 10 == 0, f"W{g}", self.m0_each)
        if self.o.get("nodma") and g >= 2:
            atoms = [[mk("s_add_u32", "m0", ps.wreg, (g % self.ns) * SLOT)] + [i for i in atoms[-1] if i.cls == "vmem"]]
        self.dmaq += atoms
        self.dma_next += 1

    def emit_dma_now(self):
        for ins in self.dmaq:
            for i in ins:
                self.p.add(i)
        self.dmaq = []

    def read_frag(self):
        f = self.next_read
        if f >= len(self.frags):
            return
        p = self.p
        pi, s, t = self.frags[f]
        ps = self.passes[pi]
        g = self.stage_of(f)
        if g != self.cur_stage:
            while self.dma_next <= g or any(i.tag == f"W{g}" for ins in self.dmaq for i in ins):
                if self.dmaq:
                    for i in self.dmaq.pop(0):
                        p.add(i)
                else:
                    self.queue_stage()
            p.wait_tag(f"W{g}")
            p.e("s_barrier")
            if g > 0 and g % 10 != 0:
                delta = ((g % self.ns) - ((g - 1) % self.ns)) * SLOT
                for r in ps.pat:
                    p.e("v_add_u32", r, delta, r)
            if g == 0:
                while self.dma_next < self.ns - 1:
                    self.queue_stage()
            else:
                self.queue_stage()
            self.cur_stage = g
        fb = FB0 + 4 * (f % 8)
        for rd, (reg, imm) in enumerate(ps.reads(s % 4, t)):
            p.e("ds_read_b64_tr_b16", A(fb + 2 * rd, 2), reg, mods=f"offset:{imm}")
        self.next_read += 1

    def prime(self):
        for _ in range(self.depth + 1):
            self.read_frag()

    def run_pass(self, pi, quota, deadline=None, hooks=None, stamp_at=()):
        p = self.p
        ps = self.passes[pi]
        idx = [f for f, fr in enumerate(self.frags) if fr[0] == pi]
        for n, f in enumerate(idx):
            _, s, t = self.frags[f]
            if hooks and n in hooks:
                hooks[n](self)
            if n in stamp_at:
                p.stamp(f"p{pi}g{n}")
            if t == 0 and deadline is not None:
                lim = deadline(s)
                while len(self.side.q) > lim:
                    emit_atoms(p, [self.side.q.pop(0)])
            d = A(ps.acc + 16 * t, 16)
            p.e("v_mfma_f32_32x32x16_bf16", d, A(FB0 + 4 * (f % 8), 4), XR(s), d if s else 0)
            crossing = self.next_read < len(self.frags) and self.stage_of(self.next_read) != self.cur_stage
            late = []
            every = max(1, (4 * ps.nt) // self.passes[min(len(self.passes) - 1, self.dma_next // 10)].ndma)
            if len(self.dmaq) > 6 or not self.o.get("pace", True):
                every = 1
            self.since_dma += 1
            if self.dmaq and not crossing and self.since_dma >= every:
                self.since_dma = 0
                ins = self.dmaq.pop(0)
                k = next(n_ for n_, i in enumerate(ins) if i.cls == "vmem")
                for i in ins[:k]:
                    p.add(i)
                late = ins[k:]
            self.read_frag()
            for i in late:
                p.add(i)
            te = self.o.get("touch_every", 2)
            if f % te == 0:
                p.touch(*[A(FB0 + 4 * ((f + k) % 8), 4) for k in range(1, te + 1) if f + k < len(self.frags)])
            q = quota(n) if callable(quota) else quota
            self.side.fill(q)
            self.side.mfmas(q)


def poll_block(reg, addr, srdreg, soff, want, lab, mask=-1, imm=0):
    def blk(p):
        if NOPOLL and any(lab.endswith(x) for x in NOPOLL):
            p.touch(reg)
            return
        p.e("v_cmp_eq_u32", "vcc", want, reg)
        p.e("s_cmp_eq_u64", "vcc", mask)
        p.e("s_cbranch_scc1", lab + "_ok")
        p.region_begin()
        p.e("s_mov_b32", sT3, 0)
        p.label(lab + "_spin")
        p.e("s_add_u32", sT3, sT3, 1)
        p.e("s_cmp_ge_u32", sT3, SPIN_MAX)
        p.e("s_cbranch_scc1", lab + "_ok")
        p.e("s_sleep", SLEEP)
        p.e("buffer_load_dword", reg, addr, srdreg, soff, mods=f"offen offset:{imm} sc1")
        p.wait_vm0()
        p.e("v_cmp_eq_u32", "vcc", want, reg)
        p.e("s_cmp_eq_u64", "vcc", mask)
        p.e("s_cbranch_scc0", lab + "_spin")
        p.label(lab + "_ok")
        p.region_end()
    return blk


def flag_store(p, vtmp, srdreg, soff, atomic=False):
    p.e("v_mov_b32", vtmp, 1)
    p.e("s_mov_b64", "exec", 1)
    if atomic:
        p.e("buffer_atomic_add", vtmp, "off", srdreg, soff, mods="sc1")
    else:
        p.e("buffer_store_dword", vtmp, "off", srdreg, soff, mods="sc1")
    p.e("s_mov_b64", "exec", -1)


def prologue_lane(p):
    e = p.e
    t = [V(23), V(24), V(25), V(26)]
    vx = [V(27 + j) for j in range(4)]
    e("v_lshrrev_b32", t[0], 3, lane)
    e("v_lshrrev_b32", t[1], 4, lane)
    e("v_and_b32", t[2], 7, lane)
    e("v_mul_u32_u24", t[0], 1280, t[0])
    for j in range(4):
        e("v_add_u32", t[3], 4 * j, t[1])
        e("v_and_b32", t[3], 7, t[3])
        e("v_xor_b32", t[3], t[3], t[2])
        e("v_lshl_add_u32", t[3], t[3], 4, t[0])
        e("v_add_u32", vx[j], 8 * 1280 * j - 1024 * j, t[3])
    return vx


def prologue(p, typ, passes, stream, o, vx):
    e = p.e
    sXB, sXW, sPI = S(16), S(17), S(18)
    e("s_lshl_b32", sXB, sRB, 7)
    e("s_lshl_b32", sT1, sW, 5)
    e("s_add_u32", sXB, sXB, sT1)
    e("s_mul_i32", sXB, sXB, 1280)
    e("s_mul_i32", sXW, sW, XW)
    e("s_add_u32", sXW, sXW, XSTG)
    e("s_mov_b32", sPI, sROT)

    def x_piece(pi):
        e("s_add_u32", "m0", sXW, (pi % 7) * 4096)
        e("s_lshl_b32", sT2, sPI, 7)
        e("s_add_u32", sT2, sT2, sXB)
        for j in range(4):
            e("buffer_load_dwordx4", vx[j], XS, sT2, mods=f"offen offset:{1024 * j} lds", tag=f"X{pi}" if j == 3 else None)
        e("s_add_u32", sPI, sPI, 1)
        e("s_cmp_eq_u32", sPI, 10)
        e("s_cselect_b32", sPI, 0, sPI)

    x_piece(0)
    Z4 = V(32, 4)
    for r in range(4):
        e("v_mov_b32", Z4[r], 0)
    e("s_mul_i32", S(4), sP, 3200)
    e("s_mul_i32", S(5), sW, 800)
    e("s_add_u32", S(4), S(4), S(5))
    e("s_add_u32", "m0", S(5), PTB)
    e("buffer_load_dwordx4", l16, PH, S(4), mods="offen lds", tag="PT")
    if typ == "X":
        e("s_cmp_eq_u32", sRB, 0)
        e("s_cselect_b32", S(4), 0, OOB)
        e("s_lshl_b32", S(5), sP, 2)
        e("s_add_u32", S(5), S(5), sW)
        e("s_mul_i32", S(6), S(5), L.KVS)
        e("s_add_u32", S(6), S(6), L.F_KV)
        e("s_lshl_b32", S(5), S(5), 2)
        e("s_add_u32", S(5), S(5), DBG_Z)
        e("v_add_u32", V(36), S(4), l16)
        for k in range(3):
            e("buffer_store_dwordx4", Z4, V(36), WS, S(6), mods=f"offen offset:{1024 * k} sc1")
        e("v_add_u32", V(37), S(4), l4)
        for k in range(3):
            e("buffer_store_dword", Z4[0], V(37), WS, S(6), mods=f"offen offset:{3072 + 256 * k} sc1", tag="ZI" if k == 2 else None)
    else:
        e("s_or_b32", S(4), sRB, sP)
        e("s_cmp_eq_u32", S(4), 0)
        e("s_cselect_b32", S(4), 0, OOB)
        e("s_lshl_b32", S(6), sW, 12)
        e("s_add_u32", S(6), S(6), L.F_FLH)
        e("s_lshl_b32", S(5), sW, 2)
        e("s_add_u32", S(5), S(5), DBG_G)
        e("v_add_u32", V(36), S(4), l16)
        for k in range(4):
            e("buffer_store_dwordx4", Z4, V(36), WS, S(6), mods=f"offen offset:{1024 * k} sc1", tag="ZI" if k == 3 else None)
    x_piece(1)
    p.stamp("x_issued")
    e("v_mov_b32", V(37), S(5))
    e("v_add_u32", V(37), S(4), V(37))

    q = Prog()
    f = q.e
    t = [V(42), V(43), V(44), V(45)]
    f("v_add_u32", t[0], ZB, l16)
    f("ds_write_b128", t[0], Z4)
    f("ds_write_b128", t[0], Z4, mods="offset:1024")
    vr = [V(38 + k) for k in range(4)]
    f("v_and_b32", t[0], 31, lane)
    f("v_lshrrev_b32", t[1], 5, lane)
    f("v_bfe_u32", t[2], lane, 1, 3)
    f("v_xor_b32", t[1], t[1], t[2])
    f("v_lshlrev_b32", t[0], 7, t[0])
    f("v_add_u32", t[0], sXW, t[0])
    for k in range(4):
        f("v_xor_b32", t[2], 2 * k, t[1])
        f("v_lshl_add_u32", vr[k], t[2], 4, t[0])
    for k, ps in enumerate(passes):
        ps.wreg = WREG[k]
    setup_pass(q, passes[0], 0, t, [S(8), S(9), S(12), S(13)])
    n_first = len(q.ins)
    for k, ps in list(enumerate(passes))[1:]:
        setup_pass(q, ps, ((10 * k) % stream.ns) * SLOT, t, [S(8), S(9), S(12), S(13)])
    phr = [V(46 + k) for k in range(5)]
    phi_addr_setup(q, phr, t)
    first = q.ins[:n_first]
    rest = atomize(q.ins[n_first:])
    half = len(first) // 2
    for i in first[:half]:
        p.add(i)
    x_piece(2)
    for i in first[half:]:
        p.add(i)
    x_piece(3)
    NPF = 4
    side = Side(p)
    side.q = rest
    npre = o.get("pre_atoms", 60)
    emit_atoms(p, side.q[:npre])
    side.q = side.q[npre:]
    acc = [V(51), V(52), V(53), V(54)]
    for r in acc:
        e("v_mov_b32", r, 0)
    sONE = S(19)
    e("s_mov_b32", sONE, 0x3F803F80)
    p.stamp("setup")

    def x_reads(pi):
        p.wait_tag(f"X{pi}")
        for k in range(4):
            e("ds_read_b128", XR(4 * pi + k), vr[k], mods=f"offset:{(pi % 7) * 4096}")
    x_reads(0)
    per = -(-len(side.q) // 9)
    for pi in range(10):
        if o.get("pstamp") and pi in (0, 1, 2, 4, 6, 8):
            p.stamp(f"pc{pi}")
        if pi + NPF < 10:
            x_piece(pi + NPF)
        if pi + NPF == 10:
            stream.queue_stage()
            stream.queue_stage()
            stream.emit_dma_now()
        emit_atoms(p, side.q[:per])
        side.q = side.q[per:]
        if pi + 1 < 10:
            x_reads(pi + 1)
        for k in range(4):
            for r in range(4):
                x = XR(4 * pi + k)[r]
                e("v_dot2c_f32_bf16", acc[r & 1], sONE, x)
                e("v_dot2c_f32_bf16", acc[2 + (r & 1)], x, x)
    p.stamp("x_done")
    side.flush()
    p.wait_tag("ZI")
    e("v_mov_b32", V(36), 1)
    e("s_mov_b64", "exec", 1)
    e("buffer_store_dword", V(36), V(37), DBG, 0, mods="offen sc1")
    e("s_mov_b64", "exec", -1)
    e("v_add_f32", acc[0], acc[0], acc[1])
    e("v_add_f32", acc[2], acc[2], acc[3])
    e("v_mov_b32", acc[1], acc[0])
    e("v_mov_b32", acc[3], acc[2])
    e("v_permlane32_swap_b32", acc[0], acc[1])
    e("v_permlane32_swap_b32", acc[2], acc[3])
    e("v_add_f32", acc[0], acc[0], acc[1])
    e("v_add_f32", acc[2], acc[2], acc[3])
    e("v_mul_f32", acc[0], 1.0 / 640, acc[0])
    e("v_mul_f32", acc[2], 1.0 / 640, acc[2])
    e("v_fma_f32", acc[2], Neg(acc[0]), acc[0], acc[2])
    e("v_max_f32", acc[2], 0, acc[2])
    e("v_add_f32", acc[2], 1e-5, acc[2])
    e("v_rsq_f32", RSTD, acc[2])
    e("v_mul_f32", CEN, acc[0], RSTD)
    e("v_sub_f32", CEN, 0, CEN)
    p.wait_tag("PT")
    p.wait_lgkm0()
    return phr


def run_first_pass(p, stream, quota, phr, extra, stamp_at=()):
    for s in (0, 1):
        emit_atoms(p, center_atoms(s, V(23), V(24)))
    stream.prime()
    p.stamp("primed")
    phi = phi_read_atoms(phr)
    groups = {}
    for s in range(2, 40):
        groups[s] = center_atoms(s, V(23 + 2 * (s & 1)), V(24 + 2 * (s & 1)))
        if s - 2 < len(phi):
            groups[s] = groups[s][:10] + [phi[s - 2]] + groups[s][10:]
    groups[30] = groups[30] + extra
    stream.side.q = [a for s in range(2, 40) for a in groups[s]]
    rest = lambda s: sum(len(groups[k]) for k in range(max(s, 1) + 1, 40))
    stream.run_pass(0, quota, deadline=rest, stamp_at=stamp_at)
    assert not stream.side.q


def guard_load():
    return [v_("v_and_b32", V(51), 3, lane), v_("v_lshlrev_b32", V(51), 2, V(51)),
            n_(mk("buffer_load_dword", V(52), V(51), DBG, 0, mods=f"offen offset:{DBG_G} sc1"))]


def guard_check(lab):
    return ("blk", poll_block(V(52), V(51), DBG, 0, 1, lab, imm=DBG_G))


def kv_atoms(o):
    out = []
    pa, va, vb = V(5), V(6), V(7)
    t0, t1 = V(8), V(9)
    q = Prog()
    e = q.e
    e("v_lshrrev_b32", t0, 4, lane)
    e("v_bfe_u32", t1, lane, 2, 2)
    e("v_lshl_add_u32", t0, t0, 3, t1)
    e("v_and_b32", t1, 3, lane)
    e("v_lshlrev_b32", t1, 3, t1)
    e("v_mul_u32_u24", vb, 80, t0)
    e("s_mul_i32", S(4), sW, 10240)
    e("s_add_u32", S(4), S(4), PKB)
    e("v_add3_u32", pa, vb, t1, S(4))
    e("s_lshr_b32", S(5), sW, 1)
    e("s_mul_i32", S(5), S(5), 10240)
    e("s_and_b32", S(4), sW, 1)
    e("s_mul_i32", S(4), S(4), 40)
    e("s_add_u32", S(5), S(5), S(4))
    e("s_add_u32", S(5), S(5), VB)
    e("v_add3_u32", va, vb, t1, S(5))
    e("v_add_u32", vb, S(5), vb)
    e("v_add_u32", vb, 32, vb)
    e("v_and_b32", t0, 15, lane)
    e("v_cmp_eq_u32", S(6, 2), 4, t0)
    e("v_mov_b32", t1, 0x3F803F80)
    addr = atomize(q.ins)
    KA = PKD[0:24]
    AF = [[PKD[24 + 4 * k:28 + 4 * k] for k in range(3)], [PKD[36 + 4 * k:40 + 4 * k] for k in range(3)]]
    BF = [[EP[4 * k:4 * k + 4] for k in range(2)], [EP[8 + 4 * k:12 + 4 * k] for k in range(2)]]

    def blk(p):
        e = p.e
        p.wait_lgkm0()
        e("s_barrier")

        def reads(ks):
            a, b = AF[ks % 2], BF[ks % 2]
            for rd in range(2):
                for ft in range(3):
                    e("ds_read_b64_tr_b16", a[ft][2 * rd:2 * rd + 2], pa, mods=f"offset:{(32 * ks + 4 * rd) * 80 + 32 * ft}")
                e("ds_read_b64_tr_b16", b[0][2 * rd:2 * rd + 2], va, mods=f"offset:{(32 * ks + 4 * rd) * 80}")
                e("ds_read_b64_tr_b16", b[1][2 * rd:2 * rd + 2], vb, mods=f"offset:{(32 * ks + 4 * rd) * 80}")
        reads(0)
        for ks in range(4):
            if ks < 3:
                reads(ks + 1)
            a, b = AF[ks % 2], BF[ks % 2]
            for r in range(4):
                e("v_cndmask_b32", b[1][r], b[1][r], t1, S(6, 2))
            for dt in range(2):
                for ft in range(3):
                    d = KA[(dt * 3 + ft) * 4:(dt * 3 + ft) * 4 + 4]
                    e("v_mfma_f32_16x16x32_bf16", d, a[ft], b[dt], d if ks else 0)
    sA, sB = S(8), S(9)
    wa, ra = V(5), V(6)
    post = [n_(mk("s_lshl_b32", sA, sP, 2), mk("s_add_u32", sA, sA, sW), mk("s_mul_i32", sA, sA, L.KVS),
               mk("s_add_u32", sA, sA, L.F_KV)),
            n_(mk("s_mul_i32", sB, sW, 10240), mk("s_add_u32", sB, sB, PKB)),
            v_("v_and_b32", wa, 15, lane), v_("v_mul_u32_u24", wa, 160, wa), v_("v_lshrrev_b32", ra, 4, lane),
            v_("v_lshl_add_u32", wa, ra, 4, wa), v_("v_add_u32", wa, sB, wa), v_("v_add_u32", ra, sB, l4)]
    masks = {(0, 0): None, (1, 0): None, (2, 0): (0xFFFFFFFF, 0), (0, 1): (0x001F001F, 0x001F001F),
             (1, 1): (0x001F001F, 0x001F001F), (2, 1): (0x001F001F, 0)}
    for (ft, dt), m in masks.items():
        r = (dt * 3 + ft) * 4
        ins = []
        if m:
            ins += [mk("s_mov_b32", sEX[0], m[0]), mk("s_mov_b32", sEX[1], m[1]), mk("s_mov_b64", "exec", sEX)]
        ins.append(mk("ds_write_b128", wa, KA[r:r + 4], mods=f"offset:{dt * 2560 + ft * 64}"))
        if m:
            ins.append(mk("s_mov_b64", "exec", -1))
        post.append(n_(*ins))
    DN = AF[0][0].__class__("v", PKD.idx + 24, 14)
    for k in range(14):
        post.append(n_(mk("ds_read_b32", DN[k], ra, mods=f"offset:{256 * k}")))
    atomics = []
    for k in range(14):
        ins = []
        if k == 13:
            ins.append(mk("s_mov_b64", "exec", 0xFF))
        ins.append(mk("buffer_atomic_add_f32", DN[k], l4, WS, sA, mods=f"offen offset:{256 * k}", tag="KVA" if k == 13 else None))
        if k == 13:
            ins.append(mk("s_mov_b64", "exec", -1))
        atomics.append(n_(*ins))
    return addr, blk, post, atomics, sA


def wt_round_atoms(rnd, st):
    su, sk, sc, sw_, sst, sM, sB, sC1 = S(4), S(5), S(6), S(7), S(8), S(9), S(12), S(13)
    sX, sY = S(14), S(15)
    a = []
    g = lambda *rows: a.append(n_(*[mk(*r) for r in rows]))
    g(("s_lshl_b32", su, sRB, 3), ("s_add_u32", su, su, sP), ("s_lshl_b32", su, su, 2), ("s_add_u32", su, su, sW))
    if rnd:
        g(("s_add_u32", su, su, 512), ("s_cmp_ge_u32", su, 680), ("s_cselect_b32", sX, 344, 0), ("s_sub_u32", su, su, sX))
    g(("s_mul_i32", sk, su, 52429), ("s_lshr_b32", sk, sk, 19),
      ("s_mul_i32", sX, sk, 10), ("s_sub_u32", sc, su, sX))
    g(("s_mul_i32", sw_, sk, 3856), ("s_lshr_b32", sw_, sw_, 16),
      ("s_mul_i32", sX, sw_, 17), ("s_sub_u32", sst, sk, sX))
    g(("s_mul_i32", sB, sw_, 12), ("s_add_u32", sB, sB, sst), ("s_lshl_b32", sB, sB, 5))
    g(("s_cmp_eq_u32", sst, 2), ("s_cselect_b32", sX, 1, 0), ("s_cmp_eq_u32", sst, 8), ("s_cselect_b32", sX, 1, sX))
    g(("s_cmp_eq_u32", sX, 1), ("s_cselect_b32", sM, 16, 8), ("s_cselect_b32", sC1, 8, 16))
    g(("s_sub_u32", sX, sst, 12), ("s_lshr_b32", sY, sX, 1), ("s_mul_i32", sY, sY, 80), ("s_and_b32", sX, sX, 1))
    g(("s_lshl_b32", sX, sX, 3), ("s_add_u32", sY, sY, sX), ("s_mul_i32", su, sw_, 160))
    g(("s_cmp_eq_u32", sst, 16), ("s_cselect_b32", sY, 16, sY), ("s_cselect_b32", sX, 80, 4), ("s_add_u32", sY, sY, su))
    g(("s_cmp_ge_u32", sst, 12), ("s_cselect_b32", sB, sY, sB), ("s_cselect_b32", sM, sX, sM),
      ("s_cselect_b32", sC1, 20, sC1), ("s_cselect_b32", sX, 40, 4),
      ("s_cselect_b32", WD[0], S(10), WDP[0]), ("s_cselect_b32", WD[1], S(11), WDP[1]))
    g(("s_cmp_ge_u32", sst, 12), ("s_mov_b32", WD[2], 1536 * 640 * 2), ("s_cselect_b32", WD[2], 640 * 640 * 2, WD[2]),
      ("s_mov_b32", WD[3], 0x20000))
    g(("s_mul_i32", su, sw_, 10), ("s_add_u32", su, su, sc), ("s_lshl_b32", su, su, 5), ("s_add_u32", su, su, sst))
    sFLG = S(81) if rnd == 0 else S(89)
    g(("s_lshl_b32", su, su, 2), ("s_add_u32", sFLG, su, L.F_FLW))
    t0, t1, vo = TMP[0], TMP[1], TMP[2]
    a.append(v_("v_lshrrev_b32", t0, 5, lane))
    a.append(v_("v_mul_u32_u24", t0, sM, t0))
    a.append(v_("v_bfe_u32", t1, lane, 3, 2))
    a.append(v_("v_add_u32", t0, t0, t1))
    a.append(v_("v_mul_u32_u24", t0, 1280, t0))
    a.append(v_("v_and_b32", t1, 7, lane))
    a.append(v_("v_lshl_add_u32", vo, t1, 4, t0))
    g(("s_lshl_b32", su, sc, 7), ("s_lshl_b32", sw_, sW, 12), ("s_add_u32", sw_, sw_, WTS))
    for j in range(4):
        ins = [mk("s_mov_b32", "m0", sw_), mk("s_mul_i32", sY, sC1, j & 1), mk("s_add_u32", sY, sY, sB)]
        if j >> 1:
            ins.append(mk("s_add_u32", sY, sY, sX))
        ins += [mk("s_mul_i32", sY, sY, 1280), mk("s_add_u32", sY, sY, su)]
        if j:
            ins.append(mk("s_sub_u32", sY, sY, 1024 * j))
        ins.append(mk("buffer_load_dwordx4", vo, WD, sY, mods=f"offen offset:{1024 * j} lds", tag=f"WT{rnd}" if j == 3 else None))
        a.append(n_(*ins))
    b = []
    ra = TMP[0]
    b.append(v_("v_lshrrev_b32", ra, 4, lane))
    b.append(v_("v_bfe_u32", t1, lane, 2, 2))
    b.append(v_("v_lshl_add_u32", ra, ra, 3, t1))
    b.append(v_("v_lshlrev_b32", ra, 7, ra))
    b.append(v_("v_and_b32", t1, 3, lane))
    b.append(v_("v_lshl_add_u32", ra, t1, 3, ra))
    b.append(n_(mk("s_lshl_b32", sY, sW, 12), mk("s_add_u32", sY, sY, WTS)))
    b.append(v_("v_add_u32", ra, sY, ra))
    b.append(("blk", lambda p: p.wait_tag(f"WT{rnd}")))
    FR = PKD[0:16]
    for nt in range(4):
        for rd in range(2):
            b.append(n_(mk("ds_read_b64_tr_b16", FR[4 * nt + 2 * rd:4 * nt + 2 * rd + 2], ra, mods=f"offset:{rd * 512 + 32 * nt}")))
    b.append(n_(mk("s_mul_i32", sY, sk, 40), mk("s_lshl_b32", su, sc, 2), mk("s_add_u32", sY, sY, su),
                mk("s_lshl_b32", sY, sY, 10), mk("s_add_u32", sY, sY, L.F_WT)))
    for nt in range(4):
        b.append(n_(mk("buffer_store_dwordx4", FR[4 * nt:4 * nt + 4], l16, WS, sY, mods=f"offen offset:{1024 * nt}" + st,
                       tag=f"WS{rnd}" if nt == 3 else None)))

    def flag(p):
        p.wait_tag(f"WS{rnd}")
        flag_store(p, TMP[1], WS, sFLG)
    return a, b, ("blk", flag), sFLG


def o_stage_parts(o):
    st = o["st"]
    KVR = V(96, 24)
    AB = [V(120 + 4 * i, 4) for i in range(8)]
    OA = V(152, 32)
    OP = [V(184, 10), V(194, 10)]
    t0, t1, ta, aa = V(204), V(205), V(206), V(207)
    Z4 = V(160, 4)
    sA, sB = S(16), S(17)
    POLL, PADDR = V(204), V(205)
    cnt_load = [v_("v_and_b32", PADDR, 3, lane), v_("v_mul_u32_u24", PADDR, L.KVS, PADDR),
                n_(mk("s_mul_i32", sA, sP, 4 * L.KVS), mk("s_add_u32", sA, sA, L.F_KV + L.KVC)),
                n_(mk("buffer_load_dword", POLL, PADDR, WS, sA, mods="offen sc1"))]
    cnt_check = ("blk", poll_block(POLL, PADDR, WS, sA, 16, "Y_kc"))
    kvl = [n_(mk("s_lshl_b32", sA, sP, 2), mk("s_add_u32", sA, sA, sW), mk("s_mul_i32", sA, sA, L.KVS),
              mk("s_add_u32", sA, sA, L.F_KV))]
    for r in range(7):
        kvl.append(n_(mk("buffer_load_dwordx2", KVR[2 * r:2 * r + 2], l8, WS, sA, mods=f"offen offset:{512 * r} sc1")))
    out = []
    for r in range(4):
        out.append(v_("v_mov_b32", Z4[r], 0))
    out.append(v_("v_add_u32", t0, LDS_Z2, l16))
    for k in range(4):
        out.append(n_(mk("ds_write_b128", t0, Z4, mods=f"offset:{1024 * k}")))
    out += [n_(mk("s_mul_i32", sA, sW, 1920)), v_("v_add_u32", ta, sA, l4)]
    out += [v_("v_lshrrev_b32", t0, 5, lane), v_("v_bfe_u32", t1, lane, 2, 1),
            v_("v_cmp_eq_u32", "vcc", t0, t1),
            v_("v_mul_u32_u24", t0, 2 * 1920, t0), v_("v_bfe_u32", t1, lane, 3, 2), v_("v_lshlrev_b32", t1, 2, t1),
            v_("v_and_b32", aa, 3, lane), v_("v_add_u32", t1, t1, aa), v_("v_mul_u32_u24", t1, 80, t1),
            v_("v_add_u32", t0, t0, t1), v_("v_mov_b32", t1, LDS_Z2), v_("v_cndmask_b32", aa, t1, t0, "vcc")]
    for r in range(7):
        out.append(v_("v_cvt_pk_bf16_f32", KVR[2 * r], KVR[2 * r], KVR[2 * r + 1]))
    for r in range(7):
        out.append(n_(mk("ds_write_b32", ta, KVR[2 * r], mods=f"offset:{LDS_T + 256 * r}")))

    def bar(p):
        p.wait_lgkm0()
        p.e("s_barrier")
    out.append(("blk", bar))
    for hh in range(2):
        seq = [(u, c) for u in range(2) for c in range(5)]
        rd = lambda n: n_(mk("ds_read_b128", AB[n % 8], aa, mods=f"offset:{LDS_T + hh * 1920 + seq[n][0] * 1280 + seq[n][1] * 16}"))
        for n in range(6):
            out.append(rd(n))
        for n, (u, c) in enumerate(seq):
            d = OA[16 * u:16 * u + 16]
            out.append(("m", [mk("v_mfma_f32_32x32x16_bf16", d, AB[n % 8], PKD[20 * hh + 4 * c:20 * hh + 4 * c + 4], d if c else 0)]))
            if n + 6 < len(seq):
                out.append(rd(n + 6))
        out += [v_("v_add_f32", t0, 1e-6, OA[20]), ("t", [mk("v_rcp_f32", t0, t0)])]
        for d in range(20):
            out.append(v_("v_mul_f32", OA[d], t0, OA[d]))
        for q in range(10):
            out.append(v_("v_cvt_pk_bf16_f32", OP[hh][q], OA[2 * q], OA[2 * q + 1]))
    for q in range(10):
        out.append(v_("v_permlane16_swap_b32", OP[0][q], OP[1][q]))
    out.append(n_(mk("s_lshl_b32", sA, sRB, 3), mk("s_lshl_b32", sB, sW, 1), mk("s_add_u32", sA, sA, sB),
                  mk("s_lshl_b32", sA, sA, 3), mk("s_add_u32", sA, sA, sP), mk("s_mul_i32", sA, sA, 2560),
                  mk("s_add_u32", sA, sA, L.F_OB), mk("s_add_u32", sB, sA, 8 * 2560)))
    for h, sx in ((0, sA), (1, sB)):
        d = OP[h]
        out.append(n_(mk("buffer_store_dwordx4", d[0:4], l16, WS, sx, mods="offen" + st)))
        out.append(n_(mk("buffer_store_dwordx4", d[4:8], l16, WS, sx, mods="offen offset:1024" + st)))
        out.append(n_(mk("buffer_store_dwordx2", d[8:10], l8, WS, sx, mods="offen offset:2048" + st, tag="OST" if h else None)))

    def flag(p):
        p.wait_tag("OST")
        pair_flag(p, L.F_FLO, t0, sA, sB)
    return cnt_load, cnt_check, kvl, out, flag


def pair_flag(p, base, vtmp, sA, sB):
    p.e("s_lshl_b32", sA, sRB, 1)
    p.e("s_lshr_b32", sB, sW, 1)
    p.e("s_add_u32", sA, sA, sB)
    p.e("s_lshl_b32", sA, sA, 3)
    p.e("s_add_u32", sA, sA, sP)
    p.e("s_lshl_b32", sA, sA, 1)
    p.e("s_and_b32", sB, sW, 1)
    p.e("s_add_u32", sA, sA, sB)
    p.e("s_lshl_b32", sA, sA, 2)
    p.e("s_add_u32", sA, sA, base)
    flag_store(p, vtmp, WS, sA)


def h_flag(p, typ):
    e = p.e
    p.wait_tag("HST")
    e("s_lshl_b32", sT0, sRB, 1)
    e("s_lshr_b32", sT1, sW, 1)
    e("s_add_u32", sT0, sT0, sT1)
    e("s_lshl_b32", sT0, sT0, 3)
    e("s_add_u32", sT0, sT0, sP)
    e("s_lshl_b32", sT0, sT0, 2)
    e("s_and_b32", sT1, sW, 1)
    e("s_add_u32", sT0, sT0, sT1)
    if typ == "Y":
        e("s_add_u32", sT0, sT0, 2)
    e("s_lshl_b32", sT0, sT0, 2)
    e("s_add_u32", sT0, sT0, L.F_FLH)
    flag_store(p, V(90), WS, sT0)


srt, sct = S(43), S(23)
sH0, sO0, sW0, sFH, sFO, sFW, sFE = S(28), S(29), S(30), S(31), S(40), S(41), S(42)
OUT = S(44, 4)
sST = [S(64 + k) for k in range(12)]
sOI = [S(76 + k) for k in range(4)]
LONE = (6, 10)


def phase2_scalars(o):
    q = Prog()
    e = q.e
    sR, t0, t1, t2, t3 = S(90 - 10), S(85), S(86), S(87), S(88)
    e("s_and_b32", t0, S(2), 7)
    e("s_lshr_b32", t1, S(2), 3)
    e("s_lshr_b32", srt, t0, 1)
    e("s_lshl_b32", srt, srt, 3)
    e("s_and_b32", t2, t1, 7)
    e("s_add_u32", srt, srt, t2)
    e("s_and_b32", sct, t0, 1)
    e("s_lshl_b32", sct, sct, 2)
    e("s_lshr_b32", t3, t1, 3)
    e("s_add_u32", sct, sct, t3)
    if o["rot2"]:
        e("s_mul_i32", t3, t3, 3)
        e("s_add_u32", sR, t3, t2)
    else:
        e("s_mov_b32", sR, 0)
    for n in range(4):
        e("s_add_u32", t0, sR, n)
        e("s_and_b32", sOI[n], t0, 3)
        e("s_lshr_b32", t1, sOI[n], 1)
        e("s_mul_i32", t1, t1, 4)
        e("s_add_u32", t1, t1, sOI[n])
        e("s_add_u32", t1, t1, 4)
        e("s_lshl_b32", sST[n], t1, 10)
    e("s_lshl_b32", t0, srt, 5)
    e("s_lshl_b32", t1, sW, 1)
    e("s_add_u32", t0, t0, t1)
    e("s_mul_i32", sH0, t0, 6144)
    if L.F_HB:
        e("s_add_u32", sH0, sH0, L.F_HB)
    e("s_mul_i32", sO0, t0, 2560)
    e("s_add_u32", sO0, sO0, L.F_OB)
    e("s_mul_i32", sW0, sW, 17 * 40)
    e("s_mul_i32", t1, sct, 5)
    e("s_add_u32", sW0, sW0, t1)
    e("s_lshl_b32", sW0, sW0, 10)
    e("s_add_u32", sW0, sW0, L.F_WT)
    if o.get("fakeW"):
        e("s_mov_b32", sW0, L.F_WT)
    if o.get("fakeA"):
        e("s_mov_b32", sH0, L.F_HB)
        e("s_mov_b32", sO0, L.F_OB)
    e("s_lshl_b32", t0, srt, 3)
    e("s_lshl_b32", t1, sW, 1)
    e("s_add_u32", t0, t0, t1)
    e("s_lshl_b32", sFH, t0, 4)
    e("s_add_u32", sFH, sFH, L.F_FLH)
    e("s_lshl_b32", sFO, t0, 3)
    e("s_add_u32", sFE, sFO, L.F_FLE)
    e("s_add_u32", sFO, sFO, L.F_FLO)
    e("s_mul_i32", t0, sct, 80)
    e("s_lshr_b32", t0, t0, 6)
    e("s_mul_i32", t1, sW, 10)
    e("s_add_u32", t0, t0, t1)
    e("s_lshl_b32", sFW, t0, 7)
    e("s_add_u32", sFW, sFW, L.F_FLW)
    pre = atomize_scalar(q.ins)
    q = Prog()
    e = q.e
    t0, t1, t2 = S(4), S(5), S(6)
    pos_pair = [4, 5, 7, 8, 9, 11]
    e("s_mul_i32", t0, sR, 43)
    e("s_lshr_b32", t0, t0, 8)
    e("s_mul_i32", t0, t0, 6)
    e("s_sub_u32", t0, sR, t0)
    for n, pos in enumerate(pos_pair):
        e("s_cmp_ge_u32", t0, 3)
        e("s_cselect_b32", t1, 3, 0)
        e("s_sub_u32", t2, t0, t1)
        e("s_lshl_b32", t1, t1, 1)
        e("s_add_u32", t1, t1, t2)
        e("s_cmp_ge_u32", t2, 2)
        e("s_cselect_b32", t2, 1, 0)
        e("s_add_u32", t1, t1, t2)
        e("s_lshl_b32", sST[pos], t1, 10)
        if n < 5:
            e("s_add_u32", t0, t0, 1)
            e("s_cmp_eq_u32", t0, 6)
            e("s_cselect_b32", t0, 0, t0)
    e("s_and_b32", t0, sR, 1)
    e("s_mul_i32", t1, t0, 6 * 1024)
    e("s_add_u32", sST[LONE[0]], t1, 2048)
    e("s_sub_u32", sST[LONE[1]], 2048 + 6 * 1024, t1)
    srd(q, OUT, OUTP, 2048 * 640 * 2)
    post = atomize_scalar(q.ins)
    return pre, post


def phase2(p, typ, o):
    e = p.e
    ld = o["ld"]
    D = o["d2"]
    tmp_s = [S(82 + k) for k in range(8)]
    ti = [0]

    def ts():
        ti[0] += 1
        return tmp_s[ti[0] % len(tmp_s)]

    PW, AW, PE, AE = V(22), V(23), V(88), V(89)
    e("v_and_b32", AW, 31, lane)
    e("v_min_u32", AW, 16, AW)
    e("v_lshrrev_b32", PW, 5, lane)
    e("v_lshlrev_b32", PW, 7, PW)
    e("v_lshl_add_u32", AW, AW, 2, PW)
    e("buffer_load_dword", PW, AW, WS, sFW, mods="offen sc1")
    e("v_and_b32", AE, 3, lane)
    e("v_lshlrev_b32", AE, 2, AE)
    e("buffer_load_dword", PE, AE, WS, sFE, mods="offen sc1")
    vA = [V(5 + a) for a in range(4)]
    vL = [V(9 + a) for a in range(4)]
    vO = [V(13 + a) for a in range(4)]
    vR = [V(17 + a) for a in range(4)]
    vW4 = V(21)
    for a in range(4):
        e("v_add_u32", vA[a], 49152 * a, l16)
        e("v_add_u32", vL[a], 49152 * a, l8)
        e("v_add_u32", vO[a], 20480 * a, l16)
        e("v_add_u32", vR[a], 20480 * a, l8)
    e("v_add_u32", vW4, 4096, l16)
    XRES = V(74, 10)
    xo = [V(64 + k) for k in range(5)]
    ro = [V(69 + k) for k in range(5)]
    rq = Prog()
    f = rq.e
    f("s_lshl_b32", S(80), srt, 6)
    f("s_mul_i32", S(80), S(80), 1280)
    f("s_mul_i32", S(81), sct, 160)
    f("s_add_u32", S(80), S(80), S(81))
    for k in range(5):
        it, row, c4, tt = V(84), V(85), V(86), V(87)
        f("s_lshl_b32", S(81), sW, 6)
        f("s_add_u32", S(81), S(81), 256 * k)
        f("v_add_u32", it, S(81), lane)
        f("v_mul_u32_u24", row, 3277, it)
        f("v_lshrrev_b32", row, 16, row)
        f("v_mul_u32_u24", c4, 20, row)
        f("v_sub_u32", c4, it, c4)
        f("v_mul_u32_u24", tt, 1280, row)
        f("v_lshl_add_u32", tt, c4, 3, tt)
        f("v_add_u32", xo[k], S(80), tt)
        f("v_mul_u32_u24", tt, RPITCH, row)
        f("v_lshl_add_u32", tt, c4, 4, tt)
        f("v_add_u32", ro[k], LDS_R, tt)
        f("buffer_load_dwordx2", XRES[2 * k:2 * k + 2], xo[k], XS, 0, mods="offen")
    res_atoms = atomize(rq.ins)
    h_flag(p, typ)
    p.stamp("p1_end")

    if typ == "Y":
        D = o.get("d2y", 3)
        pool = [A(80 + 4 * i, 4) for i in range(44)] + [V(208 + 4 * i, 4) for i in range(12)]
    else:
        D = o.get("d2x", 3)
        pool = [A(80 + 4 * i, 4) for i in range(44)] + [V(96 + 4 * i, 4) for i in range(40)]
    assert D * 9 <= len(pool)
    slot = lambda s_, i: pool[(s_ % D) * 9 + i]

    def w_loads(pos):
        s_ = ts()
        if pos < 12:
            pre = [mk("s_mul_i32", s_, sST[pos], 40), mk("s_add_u32", s_, s_, sW0)]
        elif pos < 16:
            pre = [mk("s_add_u32", s_, sOI[pos - 12], 12), mk("s_mul_i32", s_, s_, 40960), mk("s_add_u32", s_, s_, sW0)]
        else:
            pre = [mk("s_add_u32", s_, sW0, 16 * 40960)]
        out = []
        for nt in range(5):
            i = mk("buffer_load_dwordx4", slot(pos, 4 + nt), l16 if nt < 4 else vW4, WS, s_,
                   mods=f"offen offset:{1024 * (nt % 4)}" + ld)
            out.append((pre if nt == 0 else []) + [i])
        return out

    def a_loads(pos):
        s_ = ts()
        out = []
        if pos < 12:
            pre = [mk("s_add_u32", s_, sST[pos], sH0)]
            for a in range(4):
                q = slot(pos, a)
                if pos in LONE:
                    out.append((pre if a == 0 else []) + [mk("buffer_load_dwordx2", q[0:2], vL[a], WS, s_, mods="offen" + ld)])
                    out.append([mk("buffer_load_dwordx2", q[2:4], vL[a], WS, s_, mods="offen offset:512" + ld)])
                else:
                    out.append((pre if a == 0 else []) + [mk("buffer_load_dwordx4", q, vA[a], WS, s_, mods="offen" + ld)])
        elif pos < 16:
            s2 = ts()
            pre = [mk("s_lshr_b32", s_, sOI[pos - 12], 1), mk("s_mul_i32", s_, s_, 2560), mk("s_and_b32", s2, sOI[pos - 12], 1),
                   mk("s_lshl_b32", s2, s2, 10), mk("s_add_u32", s_, s_, s2), mk("s_add_u32", s_, s_, sO0)]
            for a in range(4):
                out.append((pre if a == 0 else []) + [mk("buffer_load_dwordx4", slot(pos, a), vO[a], WS, s_, mods="offen" + ld)])
        else:
            pre = [mk("s_add_u32", s_, sO0, 2048)]
            for a in range(4):
                q = slot(pos, a)
                out.append((pre if a == 0 else []) + [mk("buffer_load_dwordx2", q[0:2], vR[a], WS, s_, mods="offen" + ld)])
                out.append([mk("buffer_load_dwordx2", q[2:4], vR[a], WS, s_, mods="offen offset:2560" + ld)])
        return out

    def emit_groups(gs):
        for grp in gs:
            for i in grp:
                p.add(i)

    def loads(pos):
        return a_loads(pos) + w_loads(pos)

    poll_block(PW, AW, WS, sFW, 1, typ + "_fw")(p)
    poll_block(PE, AE, WS, sFE, 1, typ + "_fe")(p)
    p.stamp("p2_flags")
    loads0 = a_loads(0) + w_loads(0)
    NI = o.get("ninit", 2)
    OPOS = o.get("opos", 1)
    if typ == "Y":
        cnt_load, cnt_check, kvl, ocomp, oflag = o_stage_parts(o)
    if typ == "Y" and OPOS < 0:
        emit_atoms(p, cnt_load)
        emit_groups(loads0)
        emit_atoms(p, phase2_scalars(o)[1])
        emit_atoms(p, [cnt_check])
        emit_atoms(p, kvl)
        pend = [g for pos in range(1, NI) for g in a_loads(pos) + w_loads(pos)]
        every = max(1, len(ocomp) // (len(pend) + 1))
        for n, a in enumerate(ocomp):
            emit_atoms(p, [a])
            if pend and n % every == every - 1:
                emit_groups([pend.pop(0)])
        emit_groups(pend)
        p.stamp("p2_o")
    else:
        emit_groups(loads0)
        for pos in range(1, NI):
            emit_groups(a_loads(pos) + w_loads(pos))
        emit_atoms(p, phase2_scalars(o)[1])
    side = Side(p)

    ACC = lambda a, nt: A((a * 5 + nt) * 4, 4)
    LCHK, OCHK = o.get("lchk", 1), o.get("ochk", 9)
    POLL, PA_ = V(22), V(23)
    nA = nW = NI
    for pos in range(17):
        pending = []
        want = min(17, pos + D)
        wwant = min(17, pos + D)
        al, wl = [], []
        while nA < want and (nA < 4 or (nA < 12 and pos > LCHK) or pos > OCHK):
            al += a_loads(nA)
            nA += 1
        while nW < wwant:
            wl += w_loads(nW)
            nW += 1
        pending = al + wl
        if pos == LCHK:
            e("v_and_b32", PA_, 7, lane)
            e("v_lshlrev_b32", PA_, 2, PA_)
            e("buffer_load_dword", POLL, PA_, WS, sFH, mods="offen sc1")
        if pos == OCHK:
            e("v_and_b32", PA_, 3, lane)
            e("v_lshlrev_b32", PA_, 2, PA_)
            e("buffer_load_dword", POLL, PA_, WS, sFO, mods="offen sc1")
        if typ == "Y" and pos == OPOS - 1:
            emit_atoms(p, cnt_load)
        if typ == "Y" and pos == OPOS:
            emit_atoms(p, [cnt_check])
            emit_atoms(p, kvl)
            every = max(1, len(ocomp) // (len(pending) + 1))
            for n, a in enumerate(ocomp):
                emit_atoms(p, [a])
                if pending and n % every == every - 1:
                    emit_groups([pending.pop(0)])
            emit_groups(pending)
            pending = []
            p.stamp("p2_o")
        if pos == (OPOS + 2 if typ == "Y" else 3):
            side.q = list(res_atoms)
        if pos in o.get("p2st", (0, 2, 4, 8, 12)):
            p.stamp(f"p2_s{pos}")
        n = 0
        for nt in range(5):
            for a in range(4):
                d = ACC(a, nt)
                e("v_mfma_f32_16x16x32_bf16", d, slot(pos, 4 + nt), slot(pos, a), d if pos else 0)
                n += 1
                if pending and (n % 2 == 0 or len(pending) > 20 - n):
                    for i in pending.pop(0):
                        p.add(i)
                elif side.q:
                    side.fill(2, nmax=1)
        emit_groups(pending)
        if typ == "Y" and pos == max(OPOS + 1, o.get("ofpos", 0)):
            oflag(p)
        if typ == "X" and pos == o.get("kcpos", -1):
            o["x_counter"](p)
        if pos == LCHK:
            poll_block(POLL, PA_, WS, sFH, 1, typ + "_fh")(p)
            p.stamp("p2_late")
        if pos == OCHK:
            poll_block(POLL, PA_, WS, sFO, 1, typ + "_fo")(p)
            p.stamp("p2_ochk")
    side.flush()
    p.stamp("p2_loop")

    g_, n16, wa = V(84), V(85), V(86)
    e("v_lshrrev_b32", g_, 4, lane)
    e("v_and_b32", n16, 15, lane)
    e("v_mul_u32_u24", wa, RPITCH, n16)
    e("v_lshl_add_u32", wa, g_, 4, wa)
    e("s_mul_i32", sT0, sW, 64 * RPITCH)
    e("s_add_u32", sT0, sT0, LDS_R)
    e("v_add_u32", wa, sT0, wa)
    for a in range(4):
        for nt in range(5):
            e("ds_write_b128", wa, ACC(a, nt), mods=f"offset:{a * 16 * RPITCH + nt * 64}")
    p.wait_lgkm0()
    e("s_barrier")
    p.stamp("p2_red")
    RB = V(96, 80)
    for k in range(5):
        for w in range(4):
            e("ds_read_b128", RB[16 * k + 4 * w:16 * k + 4 * w + 4], ro[k], mods=f"offset:{w * 64 * RPITCH}")
    e("s_mov_b32", sT0, 0xFFFF0000)
    for k in range(5):
        b = 16 * k
        for i in range(4):
            e("v_add_f32", RB[b + i], RB[b + i], RB[b + 4 + i])
            e("v_add_f32", RB[b + 8 + i], RB[b + 8 + i], RB[b + 12 + i])
        e("v_lshlrev_b32", RB[b + 4], 16, XRES[2 * k])
        e("v_and_b32", RB[b + 5], sT0, XRES[2 * k])
        e("v_lshlrev_b32", RB[b + 6], 16, XRES[2 * k + 1])
        e("v_and_b32", RB[b + 7], sT0, XRES[2 * k + 1])
        for i in range(4):
            e("v_add_f32", RB[b + i], RB[b + i], RB[b + 8 + i])
        for i in range(4):
            e("v_add_f32", RB[b + i], RB[b + i], RB[b + 4 + i])
        e("v_cvt_pk_bf16_f32", RB[b], RB[b], RB[b + 1])
        e("v_cvt_pk_bf16_f32", RB[b + 1], RB[b + 2], RB[b + 3])
        e("buffer_store_dwordx2", RB[b:b + 2], xo[k], OUT, 0, mods="offen")
    p.stamp("end")


def body_x(p, o, vx):
    st = o["st"]
    kv = Pass("kv", "kv", 5, ACC_A, 320, 20, 20, WQ, 3840, sROTQ, [V(5 + j) for j in range(5)], [V(16)], 0)
    u80 = Pass("u80", "U", 5, ACC_B, 160, 10, 10, WU, 3072, sROTU, [V(10 + j) for j in range(5)], [V(17), V(18)], 0)
    stream = Stream(p, [kv, u80], 5, o)
    stream.m0_each = False
    phr = prologue(p, "X", [kv, u80], stream, o, vx)
    run_first_pass(p, stream, o["q1x"], phr, guard_load(), o.get("sx0", ()))
    p.stamp("pass1")
    vPK, vV = V(19), V(20)
    side = [guard_check("X_g")]
    side += [v_("v_and_b32", TMP[0], 31, lane), n_(mk("s_lshl_b32", sT0, sW, 5)), v_("v_add_u32", TMP[0], sT0, TMP[0]),
             v_("v_lshrrev_b32", TMP[1], 5, lane), v_("v_mul_u32_u24", TMP[0], 80, TMP[0]),
             v_("v_mul_u32_u24", TMP[2], 20480, TMP[1]), v_("v_mul_u32_u24", TMP[1], 10240, TMP[1]),
             v_("v_add_u32", vPK, TMP[0], TMP[2]), v_("v_add_u32", vV, TMP[0], TMP[1]),
             v_("v_add_u32", vPK, PKB, vPK), v_("v_add_u32", vV, VB, vV)]
    side += pack_atoms(ACC_A, 20, EP, TMP[0], TMP[1])
    side += feature_mfma_atoms(EP)
    side += pack_atoms(ACC_A + 40, 20, EP, TMP[0], TMP[1])
    for c in range(5):
        side.append(n_(mk("ds_write_b128", vV, EP[4 * c:4 * c + 4], mods=f"offset:{16 * c}")))
    POLL, PADDR = V(51 - 46 + 10), V(51 - 46 + 11)
    side += [n_(mk("s_lshl_b32", sT0, sP, 2), mk("s_add_u32", sT0, sT0, sW), mk("s_lshl_b32", sMISC, sT0, 2), mk("s_add_u32", sMISC, sMISC, DBG_Z)),
             v_("v_mov_b32", PADDR, 0),
             n_(mk("buffer_load_dword", POLL, PADDR, DBG, sMISC, mods="offen sc1"))]
    addr, kvblk, post0, post, sKV = kv_atoms(o)
    for hh in range(2):
        side += softmax_atoms(hh)
        if hh == 1:
            side += addr
        for c in range(5):
            side.append(n_(mk("ds_write_b128", vPK, PKD[20 * hh + 4 * c:20 * hh + 4 * c + 4], mods=f"offset:{10240 * hh + 16 * c}")))
    side.append(("blk", lambda p_: p_.stamp("softmax_done")))
    side.append(("blk", poll_block(POLL, PADDR, DBG, sMISC, 1, "X_z")))
    side.append(("blk", kvblk))
    side.append(("blk", lambda p_: p_.stamp("kv_mfma")))
    side += post0
    paced = []
    for a in post:
        paced += [a, ("d", o.get("apace", 2))]
    side += paced
    if o.get("nosm"):
        side = [a for a in side if not (a[0] in ("v", "t") and a[1][0].op in ("v_exp_f32", "v_fma_f32", "v_mul_f32", "v_add_f32", "v_max3_f32", "v_min3_f32"))]
    stream.side.q = interleave(side, phase2_scalars(o)[0], start=o.get("p2start", 150))
    stream.run_pass(1, o["q2x"], stamp_at=o.get("sx1", ()))
    left = [a for a in stream.side.q if a[0] != "d"]
    tail = [a for a in left if a in post]
    emit_atoms(p, [a for a in left if a not in post])
    p.stamp("pass2")
    p.wait_lgkm0()
    p.e("s_barrier")
    G, U = EP[0:8], EP[8:16]
    PA, PB = PKD[40:44], PKD[44:48]
    atoms = glu_atoms(ACC_B, [("pair", 0, L.H_X01), ("pair", 2, L.H_X23), ("lone", 4, L.H_XL)], st, (G, U, PA, PB), tag="HST")
    emit_atoms(p, interleave(atoms, tail))

    def counter(p_):
        p_.wait_tag("KVA")
        p_.e("s_add_u32", sT0, sKV, L.KVC)
        flag_store(p_, V(91), WS, sT0, atomic=True)
    o["x_counter"] = counter
    if o.get("kcpos", -1) < 0:
        counter(p)
    phase2(p, "X", o)


def body_y(p, o, vx):
    st = o["st"]
    u64 = Pass("u64", "U", 4, ACC_A, 160, 10, 8, WU, 3072, sROTU, [V(5 + j) for j in range(5)], [V(16), V(17)], 128)
    q = Pass("q", "q", 3, ACC_B, 192, 12, 12, WQ, 3840, sROTQ, [V(10 + j) for j in range(3)], [V(18)], 0)
    u48 = Pass("u48", "U", 3, ACC_A, 96, 6, 6, WU, 3072, sROTU, [V(13 + j) for j in range(3)], [V(19), V(20)], 80)
    stream = Stream(p, [u64, q, u48], 7, o)
    phr = prologue(p, "Y", [u64, q, u48], stream, o, vx)
    run_first_pass(p, stream, o["q1y"], phr, guard_load(), o.get("sy0", ()))
    p.stamp("pass1")
    G, U = EP[0:8], EP[8:16]
    PA, PB = PKD[16:20], PKD[20:24]
    wa0, wb0, wf0, _ = wt_round_atoms(0, st)
    wa1, wb1, wf1, _ = wt_round_atoms(1, st)
    glu = glu_atoms(ACC_A, [("pair", 0, L.H_Y64A), ("pair", 2, L.H_Y64B)], st, (G, U, PA, PB), tag="HE")

    def early_flag(p_):
        p_.wait_tag("HE")
        pair_flag(p_, L.F_FLE, TMP[1], S(16), S(17))
    stream.side.q = [guard_check("Y_g")] + wa0 + glu + wb0
    stream.run_pass(1, o["q2y"], hooks={o.get("y_wa1", 72): lambda s_: s_.side.q.extend(wa1), o.get("y_ef", 100): lambda s_: s_.side.q.extend([wf0, ("blk", early_flag)]),
                           o.get("y_wb1", 108): lambda s_: s_.side.q.extend(wb1)},
                    stamp_at=o.get("sy1", ()))
    stream.side.flush()
    p.stamp("pass2")
    side = pack_atoms(ACC_B, 20, EP, TMP[0], TMP[1])
    side += feature_mfma_atoms(EP)
    side += softmax_atoms(0)
    side.append(wf1)
    side += softmax_atoms(1)
    stream.side.q = interleave(side, phase2_scalars(o)[0], start=90)
    stream.run_pass(2, o["q3y"], stamp_at=o.get("sy2", ()))
    stream.side.flush()
    p.stamp("pass3")
    p.wait_lgkm0()
    p.e("s_barrier")
    atoms = glu_atoms(ACC_A, [("lone", 0, L.H_YL), ("pair", 1, L.H_Y48)], st, (EP[0:8], EP[8:16], PKD[40:44], PKD[44:48]), tag="HST")
    emit_atoms(p, atoms)
    phase2(p, "Y", o)


def build(**kw):
    global NOPOLL
    o = dict(DEF)
    o.update(kw)
    NOPOLL = o.get("nopoll", ())
    global SLEEP
    SLEEP = o.get("sleep", 1)
    p = Prog()
    p.stamps_on = o["stamps"]
    p.lane_stamps = True
    e = p.e
    e("s_cmp_ge_u32", S(2), 256)
    e("s_cbranch_scc1", "F_end")
    if o.get("diag"):
        p.raw("s_memrealtime s[90:91]")
    p.stamp("start_rt", real=True)
    p.stamp("start")
    e("s_load_dwordx8", S(4, 8), S(0, 2), 0)
    e("s_load_dwordx4", S(12, 4), S(0, 2), 40)
    e("s_load_dwordx2", WDP, S(0, 2), 56)
    e("s_load_dwordx2", OUTP, S(0, 2), 64)
    e("s_load_dwordx4", S(16, 4), S(0, 2), 72)
    e("v_and_b32", lane, 63, V(0))
    e("v_lshrrev_b32", V(5), 6, V(0))
    e("v_lshlrev_b32", l16, 4, lane)
    e("v_readfirstlane_b32", sW, V(5))
    e("v_lshlrev_b32", l8, 3, lane)
    e("v_lshlrev_b32", l4, 2, lane)
    e("s_and_b32", sT0, S(2), 7)
    e("s_lshr_b32", sT1, S(2), 3)
    e("s_and_b32", sRB, sT0, 1)
    e("s_lshl_b32", sRB, sRB, 3)
    e("s_and_b32", sT2, sT1, 7)
    e("s_add_u32", sRB, sRB, sT2)
    e("s_lshr_b32", sT0, sT0, 1)
    e("s_lshl_b32", sT0, sT0, 2)
    e("s_lshr_b32", sT1, sT1, 3)
    e("s_add_u32", sT0, sT0, sT1)
    e("s_lshr_b32", sP, sT0, 1)
    e("s_and_b32", sMISC, sT0, 1)
    if o["rot"]:
        e("s_mul_i32", sT1, sT1, 3)
        e("s_add_u32", sROT, sT1, sT2)
        e("s_cmp_ge_u32", sROT, 10)
        e("s_cselect_b32", sT1, 10, 0)
        e("s_sub_u32", sROT, sROT, sT1)
    else:
        e("s_mov_b32", sROT, 0)
    e("s_mul_i32", sROTQ, sROT, 64 * 3840)
    e("s_mul_i32", sROTU, sROT, 64 * 3072)
    e("s_mov_b32", sMASK, 0xFFFF0000)
    e("s_mov_b32", sL2E, LOG2E)
    vx = prologue_lane(p)
    p.wait_smem()
    extra = 1024 * 256 if o["stamps"] else 0
    srd(p, XS, S(4, 2), 2048 * 640 * 2)
    srd(p, WQ, S(6, 2), 640 * 1920 * 2)
    srd(p, PH, S(8, 2), 32 * 400 * 2)
    srd(p, WS, S(18, 2), L.F_END + extra)
    srd(p, DBG, S(16, 2), 256)
    e("s_cmp_ge_u32", sW, 2)
    e("s_cselect_b32", WU[0], S(14), S(12))
    e("s_cselect_b32", WU[1], S(15), S(13))
    e("s_mov_b32", WU[2], 640 * 1536 * 2)
    e("s_mov_b32", WU[3], 0x20000)
    e("s_lshl_b32", sT0, sRB, 3)
    e("s_lshl_b32", sT1, sW, 1)
    e("s_add_u32", sT0, sT0, sT1)
    e("s_lshl_b32", sT0, sT0, 3)
    e("s_add_u32", sT0, sT0, sP)
    e("s_mul_i32", sHB, sT0, 6144)
    if L.F_HB:
        e("s_add_u32", sHB, sHB, L.F_HB)
    e("s_cmp_eq_u32", sMISC, 1)
    e("s_cbranch_scc1", "F_Y")
    p.fork_save()
    names0 = list(getattr(p, "stamp_names", []))

    def dump():
        if o.get("diag"):
            p.raw("s_memrealtime s[92:93]")
            p.wait_smem()
            e("s_mov_b64", "exec", 1)
            e("s_not_b32", sT0, S(90))
            e("v_mov_b32", V(8), sT0)
            e("buffer_atomic_umax", V(8), "off", DBG, 0, mods="offset:4")
            e("v_mov_b32", V(9), S(92))
            e("buffer_atomic_umax", V(9), "off", DBG, 0, mods="offset:8")
            e("s_sub_u32", sT0, S(92), S(90))
            e("v_mov_b32", V(10), sT0)
            e("buffer_atomic_umax", V(10), "off", DBG, 0, mods="offset:12")
            e("v_mov_b32", V(11), S(90))
            e("buffer_atomic_umax", V(11), "off", DBG, 0, mods="offset:16")
            p.wait_vm0()
            e("s_mov_b64", "exec", -1)
        if o["stamps"]:
            p.stamp("end_rt", real=True)
            e("s_lshl_b32", sT0, S(2), 2)
            e("s_add_u32", sT0, sT0, sW)
            e("s_lshl_b32", sT0, sT0, 8)
            e("s_add_u32", sT0, sT0, L.F_END)
            p.dump_stamps(WS, sT0, l4)
    body_x(p, o, vx)
    dump()
    p.names_x = list(getattr(p, "stamp_names", []))
    e("s_endpgm")
    p.label("F_Y")
    p.fork_restore()
    if o["stamps"]:
        p.stamp_names = list(names0)
    body_y(p, o, vx)
    dump()
    p.names_y = list(getattr(p, "stamp_names", []))
    p.label("F_end")
    e("s_endpgm")
    return p
```

```python
import numpy as np

S_, D_, H_, DH, F_ = 2048, 640, 32, 20, 1536

PHIQ = 0
HB = PHIQ + 64 * 8 * 10240
OB = HB + 128 * 8 * 6144
WT = OB + 128 * 8 * 2560
KV = WT + 68 * 40 * 1024
FL = KV + 32 * 6144
WS_END = FL + 32 * 128

F_HB = 0
F_OB = F_HB + 128 * 8 * 6144
F_WT = F_OB + 128 * 8 * 2560
F_KV = F_WT + 68 * 40 * 1024
KVS = 3840
KVC = 3584
F_FLH = F_KV + 32 * KVS
F_FLO = F_FLH + 4096
F_FLW = F_FLO + 2048
F_FLE = F_FLW + 5120
F_FLEND = F_FLH + 16384
F_END = F_FLEND
PERM = list(range(20, 40)) + list(range(20))

H_X01, H_X23, H_XL, H_YL, H_Y48, H_Y64A, H_Y64B = 0, 1024, 2048, 2560, 3072, 4096, 5120


def pair_f(F0, g, e):
    return F0 + 16 * (g & 1) + 8 * (e >> 2) + 4 * (g >> 1) + (e & 3)


def lone_f(f0, g, e4):
    return f0 + 8 * (g & 1) + 4 * (g >> 1) + e4


def krow(kappa, g, e):
    w, st = divmod(kappa, 17)
    if st < 12:
        base = 32 * (12 * w + st)
        if st % 6 == 2:
            return ("h", lone_f(base + 16 * (e >> 2), g, e & 3))
        return ("h", pair_f(base, g, e))
    if st < 16:
        ct = 2 * w + ((st - 12) >> 1)
        return ("o", 20 * (4 * ct + g) + 8 * ((st - 12) & 1) + e)
    ct = 2 * w + (e >> 2)
    return ("o", 20 * (4 * ct + g) + 16 + (e & 3))


def bf16_bits(x):
    u = np.ascontiguousarray(x, np.float32).view(np.uint32)
    return ((u + 0x7FFF + ((u >> 16) & 1)) >> 16).astype(np.uint16)


def bf16_val(b):
    return (np.ascontiguousarray(b).astype(np.uint32) << 16).view(np.float32)


def rbf(x):
    return bf16_val(bf16_bits(x))


def model(x, wqkv, wphi, wo, wg, wu, wd):
    x = x.astype(np.float32)
    mean = x.mean(-1, keepdims=True)
    var = (x * x).mean(-1, keepdims=True) - mean * mean
    rstd = 1.0 / np.sqrt(var + 1e-5)
    xn = rbf((x - mean) * rstd)
    qkv = xn @ wqkv
    q = rbf(qkv[:, :640]).reshape(S_, H_, DH)
    k = rbf(qkv[:, 640:1280]).reshape(S_, H_, DH)
    v = rbf(qkv[:, 1280:]).reshape(S_, H_, DH)
    pq = np.einsum("shd,hdf->shf", q, wphi)
    pk = np.einsum("shd,hdf->shf", k, wphi)

    def phi(p):
        a = np.exp(p - p.max(-1, keepdims=True))
        a /= a.sum(-1, keepdims=True)
        b = np.exp(-p - (-p).max(-1, keepdims=True))
        b /= b.sum(-1, keepdims=True)
        return rbf(np.concatenate([a, b], -1))

    phq, phk = phi(pq), phi(pk)
    kv = np.einsum("shf,shd->hfd", phk, v)
    z = phk.sum(0)
    kvb, zb = rbf(kv), rbf(z)
    num = np.einsum("shf,hfd->shd", phq, kvb)
    den = np.einsum("shf,hf->sh", phq, zb)[..., None] + 1e-6
    o = rbf(num / den).reshape(S_, D_)
    g = xn @ wg
    u = xn @ wu
    h = rbf(np.maximum(g, 0) * u)
    out = x + o @ wo + h @ wd
    return dict(xn=xn, phq=phq, phk=phk, v=v, kv=kv, z=z, o=o, h=h, out=out)


def pack_phiq(phq):
    b = bf16_bits(phq)
    img = np.zeros((64, 8, 10, 64, 8), np.uint16)
    for hf in range(2):
        for hh in range(2):
            for c in range(5):
                src = b.reshape(64, 32, 8, 4, 40)[:, :, :, 2 * hf + hh, 8 * c:8 * c + 8]
                img[:, :, 5 * hh + c, 32 * hf:32 * hf + 32, :] = src.transpose(0, 2, 1, 3)
    return img


def pack_h(h):
    b = bf16_bits(h).reshape(128, 16, F_)
    img = np.zeros((128, 8, 3072), np.uint16)
    lane = np.arange(64)
    g, r = lane >> 4, lane & 15
    for p in range(8):
        for off, F0 in ((H_X01, 0), (H_X23, 32), (H_Y48, 96), (H_Y64A, 128), (H_Y64B, 160)):
            for e in range(8):
                img[:, p, off // 2 + lane * 8 + e] = b[:, r, pair_f(192 * p + F0, g, e)]
        for off, f0 in ((H_XL, 64), (H_YL, 80)):
            for e in range(4):
                img[:, p, off // 2 + lane * 4 + e] = b[:, r, lone_f(192 * p + f0, g, e)]
    return img


def pack_o(o):
    b = bf16_bits(o).reshape(128, 16, D_)
    img = np.zeros((128, 8, 1280), np.uint16)
    lane = np.arange(64)
    g, r = lane >> 4, lane & 15
    for ct in range(8):
        for e in range(8):
            img[:, ct, lane * 8 + e] = b[:, r, 20 * (4 * ct + g) + e]
            img[:, ct, 512 + lane * 8 + e] = b[:, r, 20 * (4 * ct + g) + 8 + e]
        for e in range(4):
            img[:, ct, 1024 + lane * 4 + e] = b[:, r, 20 * (4 * ct + g) + 16 + e]
    return img


def pack_wt(wo, wd):
    wob, wdb = bf16_bits(wo), bf16_bits(wd)
    img = np.zeros((68, 40, 64, 8), np.uint16)
    lane = np.arange(64)
    for kappa in range(68):
        for g in range(4):
            for e in range(8):
                kind, row = krow(kappa, g, e)
                src = (wdb if kind == "h" else wob)[row].reshape(40, 16)
                img[kappa, :, 16 * g:16 * g + 16, e] = src
    return img


def pack_kv(kv, z):
    img = np.zeros((32, 24, 64), np.float32)
    for dt in range(2):
        for ft in range(3):
            for i in range(4):
                for g in range(4):
                    f = 16 * ft + 4 * g + i
                    if f >= 40:
                        continue
                    for n in range(16):
                        d = 16 * dt + n
                        if d < 20:
                            img[:, (dt * 3 + ft) * 4 + i, 16 * g + n] = kv[:, f, d]
                        elif d == 20:
                            img[:, (dt * 3 + ft) * 4 + i, 16 * g + n] = z[:, f]
    return img


def pack_kv_dense(kv, z):
    return np.concatenate([kv.transpose(0, 2, 1), z[:, None, :]], 1).reshape(32, 840).astype(np.float32)
```

```python
class R:
    __slots__ = ("kind", "idx", "n")

    def __init__(self, kind, idx, n=1):
        self.kind, self.idx, self.n = kind, idx, n

    def __str__(self):
        if self.n == 1:
            return f"{self.kind}{self.idx}"
        return f"{self.kind}[{self.idx}:{self.idx + self.n - 1}]"

    __repr__ = __str__

    def regs(self):
        return [(self.kind, self.idx + i) for i in range(self.n)]

    def __getitem__(self, i):
        if isinstance(i, slice):
            a = i.start or 0
            b = self.n if i.stop is None else i.stop
            assert 0 <= a < b <= self.n, (self, i)
            return R(self.kind, self.idx + a, b - a)
        assert 0 <= i < self.n, (self, i)
        return R(self.kind, self.idx + i, 1)


def V(i, n=1):
    return R("v", i, n)


def A(i, n=1):
    return R("a", i, n)


def S(i, n=1):
    return R("s", i, n)


VCC = "vcc"
EXEC = "exec"
M0 = "m0"
SPECIAL = {"vcc": [("x", "vcc")], "exec": [("x", "exec")], "m0": [("x", "m0")]}


def regs_of(o):
    if isinstance(o, R):
        return o.regs()
    if isinstance(o, str):
        s = o.lstrip("-")
        if s in SPECIAL:
            return SPECIAL[s]
    if isinstance(o, Neg):
        return regs_of(o.r)
    return []


class Neg:
    def __init__(self, r):
        self.r = r

    def __str__(self):
        return f"-{self.r}"


TRANS = {"v_exp_f32", "v_rcp_f32", "v_rsq_f32", "v_log_f32", "v_sqrt_f32"}
DOTS = {"v_dot2c_f32_bf16", "v_dot2_f32_bf16"}
RMW = {"v_fmac_f32", "v_dot2c_f32_bf16"}
MFMA_PASSES = {"v_mfma_f32_32x32x16_bf16": 8, "v_mfma_f32_16x16x32_bf16": 4}


class I:
    __slots__ = ("op", "text", "rd", "wr", "cls", "tag", "meta")

    def __init__(self, op, text, rd, wr, cls, tag=None, meta=None):
        self.op, self.text, self.rd, self.wr, self.cls, self.tag, self.meta = op, text, rd, wr, cls, tag, meta


def fmt(o):
    if isinstance(o, float):
        import struct
        return hex(struct.unpack("<I", struct.pack("<f", o))[0])
    if isinstance(o, int):
        return str(o) if -16 <= o <= 64 else hex(o & 0xFFFFFFFF)
    return str(o)


def mk(op, *ops, mods="", tag=None):
    text = op + (" " + ", ".join(fmt(o) for o in ops) if ops else "") + ((" " + mods) if mods else "")
    rd, wr = [], []
    meta = None
    if op.startswith("v_mfma"):
        cls = "mfma"
        wr = regs_of(ops[0])
        rd = regs_of(ops[1]) + regs_of(ops[2]) + regs_of(ops[3])
        meta = dict(passes=MFMA_PASSES[op], d=set(regs_of(ops[0])), ab=set(regs_of(ops[1]) + regs_of(ops[2])),
                    c=set(regs_of(ops[3])), cfirst=(regs_of(ops[3]) or [None])[0], clen=len(regs_of(ops[3])))
    elif op.startswith("v_cmp"):
        cls = "valu"
        wr = regs_of(ops[0])
        for o in ops[1:]:
            rd += regs_of(o)
    elif op.startswith("v_permlane"):
        cls = "valu"
        wr = regs_of(ops[0]) + regs_of(ops[1])
        rd = list(wr)
    elif op in ("v_add_co_u32", "v_addc_co_u32"):
        cls = "valu"
        wr = regs_of(ops[0]) + regs_of(ops[1])
        for o in ops[2:]:
            rd += regs_of(o)
    elif op.startswith("v_"):
        cls = "valu"
        wr = regs_of(ops[0])
        for o in ops[1:]:
            rd += regs_of(o)
        if op in RMW:
            rd += wr
        if op.startswith("v_cndmask") and len(ops) == 3:
            rd += SPECIAL["vcc"]
    elif op.startswith("ds_read"):
        cls = "ds"
        wr = regs_of(ops[0])
        rd = regs_of(ops[1])
        meta = dict(load=True)
    elif op.startswith("ds_"):
        cls = "ds"
        for o in ops:
            rd += regs_of(o)
        meta = dict(load=False)
    elif op.startswith("buffer_load"):
        cls = "vmem"
        if " lds" in (" " + mods):
            for o in ops:
                rd += regs_of(o)
            rd += SPECIAL["m0"]
            meta = dict(load=False, dma=True)
        else:
            wr = regs_of(ops[0])
            for o in ops[1:]:
                rd += regs_of(o)
            meta = dict(load=True)
    elif op.startswith("buffer_store") or op.startswith("buffer_atomic"):
        cls = "vmem"
        for o in ops:
            rd += regs_of(o)
        meta = dict(load=False, store=True, data=set(regs_of(ops[0])), wide=op.endswith("x4") or op.endswith("x3"))
    elif op.startswith("global_load"):
        cls = "vmem"
        wr = regs_of(ops[0])
        for o in ops[1:]:
            rd += regs_of(o)
        meta = dict(load=True)
    elif op in ("s_barrier", "s_endpgm", "s_setprio", "s_sleep"):
        cls = "misc"
    elif op == "s_nop":
        cls = "nop"
        meta = dict(n=ops[0] + 1)
    elif op.startswith("s_cbranch") or op == "s_branch":
        cls = "branch"
        if "exec" in op:
            rd = SPECIAL["exec"]
        if "vcc" in op:
            rd = SPECIAL["vcc"]
    elif op.startswith("s_load"):
        cls = "smem"
        wr = regs_of(ops[0])
        rd = regs_of(ops[1])
    elif op.startswith("s_cmp") or op.startswith("s_bitcmp"):
        cls = "salu"
        for o in ops:
            rd += regs_of(o)
    elif op.startswith("s_and_saveexec"):
        cls = "salu"
        wr = regs_of(ops[0]) + SPECIAL["exec"]
        rd = regs_of(ops[1]) + SPECIAL["exec"]
    elif op.startswith("s_"):
        cls = "salu"
        wr = regs_of(ops[0])
        for o in ops[1:]:
            rd += regs_of(o)
    else:
        raise ValueError(op)
    if cls in ("valu", "mfma", "ds", "vmem"):
        rd = rd + SPECIAL["exec"]
    return I(op, text, rd, wr, cls, tag, meta)


class Prog:
    def __init__(self):
        self.ins = []

    def add(self, i):
        self.ins.append(i)
        return i

    def e(self, op, *ops, mods="", tag=None):
        return self.add(mk(op, *ops, mods=mods, tag=tag))

    def label(self, name):
        self.add(I("label", name + ":", [], [], "label"))

    def comment(self, text):
        self.add(I("comment", "; " + text, [], [], "comment"))

    def raw(self, text):
        self.add(I("raw", text, [], [], "comment"))

    stamps_on = False
    STAMP_S0 = 64

    lane_stamps = False

    def stamp(self, name, real=False):
        if not self.stamps_on:
            return
        if self.lane_stamps:
            if not hasattr(self, "stamp_names"):
                self.stamp_names = []
            n = len(self.stamp_names)
            if n >= 2 or (n >= 1 and self.lane_ready):
                pass
            self.stamp_names.append(name)
            k = 90 + 2 * (n % 2)
            if n >= 2 and self.lane_ready:
                self.add(I("raw", f"v_writelane_b32 v0, s{k}, {n - 2}", [], [], "misc"))
            op = "s_memrealtime" if real else "s_memtime"
            self.add(I(op, f"{op} s[{k}:{k + 1}]", [], [], "misc"))
            return
        if not hasattr(self, "stamp_names"):
            self.stamp_names = []
        k = self.STAMP_S0 + 2 * len(self.stamp_names)
        assert k + 1 <= 101
        self.stamp_names.append(name)
        op = "s_memrealtime" if real else "s_memtime"
        self.add(I(op, f"{op} s[{k}:{k + 1}]", [], [], "misc"))

    lane_ready = True

    def dump_stamps(self, srd, soff_reg, vtmp):
        if not self.stamps_on:
            return
        if self.lane_stamps:
            n = len(self.stamp_names)
            self.wait_smem()
            self.wait_vm0()
            for m in (n - 2, n - 1):
                self.add(I("raw", f"v_writelane_b32 v0, s{90 + 2 * (m % 2)}, {m}", [], [], "misc"))
            self.add(I("raw", "s_nop 4", [], [], "misc"))
            self.e("buffer_store_dword", V(0), vtmp, srd, soff_reg, mods="offen")
            self.wait_vm0()
            return
        self.wait_smem()
        self.wait_vm0()
        self.e("s_mov_b64", "exec", 1)
        for n in range(len(self.stamp_names)):
            self.e("v_mov_b32", vtmp[0], S(self.STAMP_S0 + 2 * n))
            self.e("v_mov_b32", vtmp[1], 4 * n)
            self.e("buffer_store_dword", vtmp[0], vtmp[1], srd, soff_reg, mods="offen")
            self.wait_vm0()
        self.e("s_mov_b64", "exec", -1)

    def wait_tag(self, tag):
        self.add(I("wait_tag", "", [], [], "pseudo", tag))

    def wait_vm0(self):
        self.add(I("wait_vm0", "", [], [], "pseudo"))

    def wait_lgkm0(self):
        self.add(I("wait_lgkm0", "", [], [], "pseudo"))

    def wait_smem(self):
        self.add(I("wait_smem", "", [], [], "pseudo"))

    def touch(self, *regs):
        rd = []
        for r in regs:
            rd += regs_of(r)
        self.add(I("touch", "", rd, [], "pseudo"))

    def fork_save(self):
        self.add(I("fork_save", "", [], [], "pseudo"))

    def fork_restore(self):
        self.add(I("fork_restore", "", [], [], "pseudo"))

    def region_begin(self):
        self.add(I("region_begin", "", [], [], "pseudo"))

    def region_end(self):
        self.add(I("region_end", "", [], [], "pseudo"))


def wait_instr(vm=None, lgkm=None):
    parts = []
    if vm is not None:
        assert 0 <= vm <= 63
        parts.append(f"vmcnt({vm})")
    if lgkm is not None:
        assert 0 <= lgkm <= 15
        parts.append(f"lgkmcnt({lgkm})")
    return I("s_waitcnt", "s_waitcnt " + " ".join(parts), [], [], "wait")


def insert_waits(ins):
    out = []
    vm_n = 0
    lg_n = 0
    vm_done = 0
    lg_done = 0
    pend = {}
    tags = {}
    stack = []
    stats = dict(vm=0, lg=0)

    def need(kind, seq):
        nonlocal vm_done, lg_done
        if kind == "vm":
            if seq < vm_done:
                return None
            n = min(63, vm_n - seq - 1)
            vm_done = vm_n - n
            stats["vm"] += 1
            return wait_instr(vm=n)
        if seq < lg_done:
            return None
        n = min(15, lg_n - seq - 1)
        lg_done = lg_n - n
        stats["lg"] += 1
        return wait_instr(lgkm=n)

    for i in ins:
        if i.cls == "pseudo":
            if i.op == "wait_tag":
                w = need("vm", tags[i.tag])
                if w:
                    out.append(w)
            elif i.op == "wait_vm0":
                out.append(wait_instr(vm=0))
                vm_done = vm_n
            elif i.op == "wait_lgkm0":
                if lg_done < lg_n:
                    out.append(wait_instr(lgkm=0))
                lg_done = lg_n
            elif i.op == "wait_smem":
                out.append(wait_instr(lgkm=0))
                lg_done = lg_n
            elif i.op == "touch":
                worst = {}
                for r in i.rd:
                    q = pend.get(r)
                    if q and (q[0] not in worst or q[1] > worst[q[0]]):
                        worst[q[0]] = q[1]
                for k, s_ in worst.items():
                    w = need(k, s_)
                    if w:
                        out.append(w)
                for r in i.rd:
                    pend.pop(r, None)
            elif i.op == "fork_save":
                stack.append((vm_n, lg_n, vm_done, lg_done, dict(pend), dict(tags)))
            elif i.op == "fork_restore":
                vm_n, lg_n, vm_done, lg_done, pend, tags = stack.pop()
                out.append(mk("s_nop", 11))
            elif i.op == "region_begin":
                stack.append((vm_n, lg_n, vm_done, lg_done, dict(pend)))
                out.append(mk("s_nop", 11))
            elif i.op == "region_end":
                assert vm_done == vm_n or vm_n == stack[-1][0], "region must drain vmcnt"
                assert lg_done == lg_n or lg_n == stack[-1][1], "region must drain lgkmcnt"
                vm_n, lg_n, vm_done, lg_done, pend = stack.pop()
                out.append(mk("s_nop", 11))
            continue
        worst = {}
        for r in list(i.rd) + list(i.wr):
            p = pend.get(r)
            if p:
                if p[0] not in worst or p[1] > worst[p[0]]:
                    worst[p[0]] = p[1]
        for k, s in worst.items():
            w = need(k, s)
            if w:
                out.append(w)
        for r in list(i.rd) + list(i.wr):
            pend.pop(r, None)
        out.append(i)
        if i.cls == "vmem":
            if i.tag is not None:
                tags[i.tag] = vm_n
            if i.meta.get("load"):
                for r in i.wr:
                    pend[r] = ("vm", vm_n)
            vm_n += 1
        elif i.cls == "ds":
            if i.meta.get("load"):
                for r in i.wr:
                    pend[r] = ("lg", lg_n)
            lg_n += 1
    return out, stats


def isv(r):
    return r[0] in ("v", "a")


def insert_nops(ins):
    out = []
    pos = 0
    valu_w = {}
    trans_w = {}
    dot_w = {}
    sgpr_w = {}
    mfma_w = {}
    mfma_c = {}
    store_d = {}
    m0_w = -100
    exec_valu_w = -100
    nnop = 0

    for i in ins:
        if i.cls in ("label", "comment"):
            out.append(i)
            continue
        req = pos

        def after(p, n):
            nonlocal req
            req = max(req, p + 1 + n)

        if i.cls == "mfma":
            m = i.meta
            for r in i.rd:
                if r in valu_w:
                    after(valu_w[r], 2)
            for r in m["ab"]:
                if r in mfma_w:
                    after(mfma_w[r][0], {4: 8, 8: 12}[mfma_w[r][1]])
            for r in m["c"]:
                if r in mfma_w:
                    p, ps, first, ln = mfma_w[r]
                    if first == m["cfirst"] and ln == m["clen"] and ps == m["passes"]:
                        continue
                    after(p, {4: 6, 8: 10}[ps])
            for r in m["d"]:
                if r in mfma_w and r not in m["c"]:
                    after(mfma_w[r][0], {4: 6, 8: 10}[mfma_w[r][1]])
            after(exec_valu_w, 4)
        elif i.cls in ("valu", "ds", "vmem"):
            for r in list(i.rd) + list(i.wr):
                if r in mfma_w:
                    after(mfma_w[r][0], {4: 8, 8: 12}[mfma_w[r][1]])
            if i.cls == "valu":
                for r in i.wr:
                    if r in mfma_c:
                        after(mfma_c[r][0], {4: 3, 8: 7}[mfma_c[r][1]])
                    if r in store_d:
                        after(store_d[r], 2)
                for r in i.rd:
                    if r in trans_w and i.op not in TRANS:
                        after(trans_w[r], 1)
                    if r in dot_w and not (i.op in DOTS and r in i.wr):
                        after(dot_w[r], 3)
                    if r in sgpr_w:
                        after(sgpr_w[r], 2)
                for r in i.wr:
                    if r in dot_w and i.op not in DOTS:
                        after(dot_w[r], 3)
                if i.op.startswith("v_permlane"):
                    for r in i.rd:
                        if r in valu_w:
                            after(valu_w[r], 2)
                if i.op.startswith("v_readfirstlane") or i.op.startswith("v_readlane"):
                    for r in i.rd:
                        if r in valu_w:
                            after(valu_w[r], 1)
            else:
                for r in i.wr:
                    if r in store_d:
                        after(store_d[r], 1)
                if i.cls == "vmem":
                    for r in i.rd:
                        if r in sgpr_w:
                            after(sgpr_w[r], 5)
                    if i.meta.get("dma"):
                        after(m0_w, 1)
        elif i.cls in ("salu", "branch", "smem"):
            for r in i.rd:
                if r in sgpr_w:
                    after(sgpr_w[r], 4)
        while pos < req:
            n = min(req - pos, 16)
            out.append(mk("s_nop", n - 1))
            pos += n
            nnop += n
        out.append(i)
        if i.cls == "mfma":
            m = i.meta
            first = min(m["d"])
            for r in m["d"]:
                mfma_w[r] = (pos, m["passes"], first, len(m["d"]))
                valu_w.pop(r, None)
            for r in m["c"]:
                mfma_c[r] = (pos, m["passes"])
        elif i.cls == "valu":
            for r in i.wr:
                if isv(r):
                    valu_w[r] = pos
                    mfma_w.pop(r, None)
                    if i.op in TRANS:
                        trans_w[r] = pos
                    else:
                        trans_w.pop(r, None)
                    if i.op in DOTS:
                        dot_w[r] = pos
                    else:
                        dot_w.pop(r, None)
                else:
                    sgpr_w[r] = pos
                    if r == ("x", "exec"):
                        exec_valu_w = pos
        elif i.cls == "salu":
            for r in i.wr:
                sgpr_w.pop(r, None)
                if r == ("x", "m0"):
                    m0_w = pos
        elif i.cls == "vmem" and i.meta.get("store") and i.meta.get("wide"):
            for r in i.meta["data"]:
                store_d[r] = pos
        if i.cls in ("ds", "vmem"):
            for r in i.wr:
                mfma_w.pop(r, None)
                valu_w.pop(r, None)
        pos += i.meta["n"] if i.cls == "nop" else 1
    return out, nnop


def finalize(prog, verbose=None):
    ins, st = insert_waits(prog.ins)
    ins, nn = insert_nops(ins)
    if verbose:
        n = sum(1 for i in ins if i.cls not in ("label", "comment"))
        print(f"{verbose}: {n} instructions, waits vm={st['vm']} lgkm={st['lg']}, nop states={nn}")
    return "\n".join(i.text for i in ins)


KD = """
.section .rodata,"a"
.p2align 6
.amdhsa_kernel {name}
  .amdhsa_next_free_vgpr {vgpr}
  .amdhsa_next_free_sgpr 102
  .amdhsa_accum_offset {acc}
  .amdhsa_group_segment_fixed_size 0
  .amdhsa_kernarg_size 88
  .amdhsa_user_sgpr_count 2
  .amdhsa_user_sgpr_kernarg_segment_ptr 1
  .amdhsa_system_sgpr_workgroup_id_x 1
.end_amdhsa_kernel
"""


def kernel_text(name, body, vgpr=512, acc=256):
    return (f".text\n.globl {name}\n.p2align 8\n.type {name},@function\n{name}:\n" + body + "\n" +
            KD.format(name=name, vgpr=vgpr, acc=acc))
```

```python
from asmlib import V, A, S, Neg, Prog, mk
import layout as L

NAME = "parallel_sum__linear_kernel_hedgehog__glu_gated_reglu__prompt_kernel"
LDS_BYTES = 163840
SLOT = 20480
XSTG, XW = 40960, 28672
PTB = 155648
ZB = PTB + 3584
PKB, VB = 102400, 143360
WTS = 143360
LDS_T, LDS_Z2, LDS_R, RPITCH = 0, 7680, 16384, 336
LOG2E = 1.4426950408889634
OOB = 0x7FF00000
SPIN_MAX = 1 << 18
NOPOLL = ()
SLEEP = 1
DBG_Z, DBG_G = 128, 64

sW, sRB, sP, sROT = S(52), S(53), S(54), S(55)
sSRC, sT0, sT1, sT2, sT3 = S(56), S(57), S(58), S(59), S(60)
sMASK, sL2E, sMISC = S(61), S(62), S(63)
XS, WQ, WU, WS, PH, WD, DBG = (S(k, 4) for k in (24, 28, 32, 36, 40, 44, 48))
sROTQ, sROTU, sHB, sXP = S(20), S(21), S(22), S(23)
OUTP, WDP = S(94, 2), S(98, 2)
WREG = [S(96), S(97), S(3)]
sEX = S(100, 2)
lane, l16, l8, l4 = V(1), V(2), V(3), V(4)
RSTD, CEN = V(21), V(22)
XR = lambda s: V(96 + 4 * s, 4)
PKD = V(24, 48)
EP = V(72, 20)
TMP = [V(23), V(92), V(93), V(94), V(95)]
ACC_A, ACC_B, FB0, PHI0 = 0, 80, 160, 192

DEF = dict(rot=True, st=" sc1", ld=" sc1", q0=5, q1x=4, q1y=5, q2x=5, q2y=3, q3y=4, depth=6, d2=5, stamps=False,
           rot2=True, apace=1, touch_every=3, opos=1, d2x=5, d2y=5, ninit=3, lchk=0, ochk=7, sleep=4)


def v_(op, *a, **k):
    return ("v", [mk(op, *a, **k)])


def n_(*ins):
    return ("n", list(ins))


def atomize(ins):
    out = []
    for i in ins:
        if i.cls == "valu":
            out.append(("v", [i]))
        elif i.cls in ("salu", "vmem") and out and out[-1][0] == "n" and out[-1][1][-1].cls == "salu":
            out[-1][1].append(i)
        else:
            out.append(("n", [i]))
    return out


def atomize_scalar(ins):
    out = []
    for i in ins:
        if out and (i.op.startswith("s_cselect") or out[-1][1][-1].op.startswith("s_cmp")):
            out[-1][1].append(i)
        else:
            out.append(("n", [i]))
    return out


def interleave(main, extra, start=0):
    if not extra:
        return list(main)
    out = list(main[:start])
    rest = main[start:]
    step = max(1.0, len(rest) / (len(extra) + 1.0))
    k = 0
    for n, a in enumerate(rest):
        out.append(a)
        while k < len(extra) and (n + 1) >= (k + 1) * step:
            out.append(extra[k])
            k += 1
    return out + extra[k:]


def srd(p, k, base, nbytes):
    p.e("s_mov_b32", k[0], base[0])
    p.e("s_mov_b32", k[1], base[1])
    p.e("s_mov_b32", k[2], nbytes)
    p.e("s_mov_b32", k[3], 0x20000)


class Pass:
    def __init__(self, name, kind, nt, acc, pitch, cpr, ndata, srdreg, srcpitch, rot, voff, pat, col0):
        self.name, self.kind, self.nt, self.acc, self.pitch, self.cpr = name, kind, nt, acc, pitch, cpr
        self.ndata, self.srd, self.srcpitch, self.rot = ndata, srdreg, srcpitch, rot
        self.voff, self.pat, self.col0 = voff, pat, col0
        self.wreg = None
        self.ndma = len(voff)

    def reads(self, sl, t):
        P = self.pitch
        if self.kind == "U":
            return [(self.pat[rd], 16 * sl * P + 32 * t) for rd in range(2)]
        return [(self.pat[0], (16 * sl + 4 * rd) * P + 32 * t) for rd in range(2)]


def div_magic(n):
    return {20: 3277, 12: 5462, 10: 6554, 6: 10923}[n]


def setup_pass(p, ps, slot0, t, sc):
    e = p.e
    P = ps.pitch
    s0, s1, s2, s3 = sc
    if ps.kind == "U":
        e("s_lshr_b32", s0, sW, 1)
        e("s_mul_i32", s0, s0, 64 * P)
        e("s_and_b32", s1, sW, 1)
        e("s_mul_i32", s1, s1, 32 * P)
        e("s_add_u32", ps.wreg, s0, s1)
        e("s_lshr_b32", s2, sW, 1)
        e("s_lshl_b32", s2, s2, 2)
        e("s_and_b32", s1, sW, 1)
        e("s_lshl_b32", s1, s1, 5)
        e("s_mul_i32", s3, sP, 384)
        e("s_add_u32", s3, s3, 2 * ps.col0)
    else:
        e("s_mul_i32", ps.wreg, sW, 16 * P)
        e("s_lshl_b32", s1, sW, 4)
        e("s_mul_i32", s3, sP, 160)
    e("s_mov_b32", s0, slot0)
    for j in range(ps.ndma):
        q, row, c = t[0], t[1], t[2]
        e("v_add_u32", q, 64 * j, lane)
        e("v_mul_u32_u24", row, div_magic(ps.cpr), q)
        e("v_lshrrev_b32", row, 16, row)
        e("v_mul_u32_u24", c, ps.cpr, row)
        e("v_sub_u32", c, q, c)
        if ps.kind == "kv":
            seg = t[3]
            e("v_mul_u32_u24", seg, 52, c)
            e("v_lshrrev_b32", seg, 8, seg)
            e("v_mul_u32_u24", q, 5, seg)
            e("v_sub_u32", c, c, q)
            e("v_and_b32", q, 1, seg)
            e("v_mul_u32_u24", q, 1280, q)
            e("v_lshl_add_u32", c, c, 4, q)
            e("v_lshrrev_b32", seg, 1, seg)
            e("v_mul_u32_u24", seg, 80, seg)
            e("v_add3_u32", c, c, seg, s3)
            e("v_add_u32", c, 1280 - 1024 * (j % 4), c)
        elif ps.kind == "q":
            hf = t[3]
            e("v_mul_u32_u24", hf, 43, c)
            e("v_lshrrev_b32", hf, 8, hf)
            e("v_mul_u32_u24", q, 6, hf)
            e("v_sub_u32", c, c, q)
            e("v_min_u32", c, 4, c)
            e("v_lshlrev_b32", c, 4, c)
            e("v_mul_u32_u24", hf, 80, hf)
            e("v_add3_u32", c, c, hf, s3)
        else:
            if ps.ndata < ps.cpr:
                e("v_min_u32", c, ps.ndata - 1, c)
            e("v_lshl_add_u32", c, c, 4, s3)
            e("v_xor_b32", row, s2, row)
        e("v_add_u32", row, s1, row)
        e("v_mul_u32_u24", row, ps.srcpitch, row)
        comp = 1024 * (j % 4) if ps.kind != "kv" else 0
        if comp:
            e("v_add_u32", row, row, c)
            e("v_subrev_u32", ps.voff[j], comp, row)
        else:
            e("v_add_u32", ps.voff[j], row, c)
    G1, kh, rho, pp = t[0], t[1], t[2], t[3]
    e("v_bfe_u32", G1, lane, 4, 1)
    e("v_lshrrev_b32", kh, 5, lane)
    e("v_bfe_u32", rho, lane, 2, 2)
    e("v_and_b32", pp, 3, lane)
    e("v_lshl_add_u32", rho, kh, 3, rho)
    e("v_mul_u32_u24", rho, P, rho)
    if ps.kind == "U":
        e("v_lshl_add_u32", rho, pp, 3, rho)
        e("v_mul_u32_u24", kh, 68 * P, G1)
        e("v_add3_u32", ps.pat[0], rho, kh, s0)
        e("v_mul_u32_u24", kh, 60 * P, G1)
        e("v_add_u32", kh, 4 * P, kh)
        e("v_add3_u32", ps.pat[1], rho, kh, s0)
    else:
        half = 160 if ps.kind == "kv" else 96
        e("v_and_b32", kh, 1, pp)
        e("v_mul_u32_u24", kh, half, kh)
        e("v_add_u32", rho, rho, kh)
        e("v_lshrrev_b32", pp, 1, pp)
        e("v_lshl_add_u32", pp, G1, 1, pp)
        e("v_lshl_add_u32", rho, pp, 3, rho)
        e("v_add_u32", ps.pat[0], s0, rho)


def dma_atoms(ps, slot, first_of_pass, tag, m0_each=True):
    out = []
    for j in range(ps.ndma):
        ins = []
        if j == 0 and first_of_pass:
            ins.append(mk("s_mov_b32", sSRC, ps.rot))
        if m0_each or j in (0, 4):
            ins.append(mk("s_add_u32", "m0", ps.wreg, slot * SLOT + (4096 if j == 4 else 0)))
        last = j == ps.ndma - 1
        ins.append(mk("buffer_load_dwordx4", ps.voff[j], ps.srd, sSRC, mods=f"offen offset:{1024 * (j % 4)} lds",
                      tag=tag if last else None))
        if last:
            step = 64 * ps.srcpitch
            ins.append(mk("s_add_u32", sSRC, sSRC, step))
            ins.append(mk("s_cmp_eq_u32", sSRC, 10 * step))
            ins.append(mk("s_cselect_b32", sSRC, 0, sSRC))
        out.append(ins)
    return out


def center_atoms(s, t0, t1):
    out = []
    for r in range(4):
        x = XR(s)[r]
        out += [v_("v_lshlrev_b32", t0, 16, x), v_("v_and_b32", t1, sMASK, x),
                v_("v_fma_f32", t0, t0, RSTD, CEN), v_("v_fma_f32", t1, t1, RSTD, CEN),
                v_("v_cvt_pk_bf16_f32", x, t0, t1)]
    return out


PHI_FRAGS = [(0, 0), (0, 1), (0, 2), (1, 0), (1, 1), (1, 2), (1, 3), (1, 4), (2, 2), (2, 3), (2, 4)]
PHI_CONST = {(0, 0): 0, (1, 0): 32, (1, 1): 792, (2, 1): 824}


def phi_addr_setup(p, regs, t):
    e = p.e
    kh, jj, par, b0 = t[0], t[1], t[2], t[3]
    e("v_lshrrev_b32", kh, 5, lane)
    e("v_bfe_u32", jj, lane, 4, 1)
    e("v_bfe_u32", par, lane, 1, 1)
    e("v_lshl_add_u32", jj, jj, 1, par)
    e("v_mul_u32_u24", b0, 1600, kh)
    e("v_bfe_u32", par, lane, 2, 2)
    e("v_mul_u32_u24", par, 40, par)
    e("v_add_u32", b0, b0, par)
    e("v_lshl_add_u32", b0, jj, 3, b0)
    e("v_add_u32", b0, PTB, b0)
    e("v_and_b32", par, 1, lane)
    e("v_mov_b32", regs[4], ZB)
    e("v_cmp_eq_u32", "vcc", par, kh)
    e("v_cndmask_b32", regs[0], regs[4], b0, "vcc")
    e("v_cmp_eq_u32", "vcc", 0, jj)
    e("v_cndmask_b32", regs[1], regs[4], regs[0], "vcc")
    e("v_cmp_le_u32", "vcc", 1, jj)
    e("v_cndmask_b32", regs[2], regs[4], regs[0], "vcc")
    e("v_cmp_ge_u32", "vcc", 1, jj)
    e("v_cndmask_b32", regs[3], regs[4], regs[0], "vcc")


def phi_read_atoms(regs):
    out = []
    sel = {(0, 0): regs[0], (1, 0): regs[1], (1, 1): regs[2], (2, 1): regs[3]}
    for idx, (tp, c) in enumerate(PHI_FRAGS):
        for rd in range(2):
            R0 = 8 * c + 4 * rd
            hl = 1 if R0 >= 20 else 0
            d0 = R0 - 20 * hl
            dst = A(PHI0 + 4 * idx + 2 * rd, 2)
            if (tp, hl) in sel:
                out.append(n_(mk("ds_read_b64_tr_b16", dst, sel[(tp, hl)], mods=f"offset:{PHI_CONST[(tp, hl)] + 40 * d0}")))
            else:
                out.append(n_(mk("ds_read_b64_tr_b16", dst, regs[4])))
    return out


def pack_atoms(acc, n, dst, t0, t1):
    out = []
    for u in range(n):
        a, b = (t0, t1) if u % 2 == 0 else (TMP[3], TMP[4])
        out += [v_("v_accvgpr_read_b32", a, A(acc + 2 * u)), v_("v_accvgpr_read_b32", b, A(acc + 2 * u + 1)),
                v_("v_cvt_pk_bf16_f32", dst[u], a, b)]
    return out


def feature_mfma_atoms(kp):
    out = []
    seen = set()
    for idx, (tp, c) in enumerate(PHI_FRAGS):
        d = PKD[16 * tp:16 * tp + 16]
        out.append(("m", [mk("v_mfma_f32_32x32x16_bf16", d, A(PHI0 + 4 * idx, 4), kp[4 * c:4 * c + 4], d if tp in seen else 0)]))
        seen.add(tp)
    return out


def softmax_atoms(hh):
    pv = [PKD[20 * hh + i] for i in range(20)]
    mx, mn, s0, s1 = TMP[0], TMP[1], TMP[2], TMP[3]
    out = [v_("v_max3_f32", mx, pv[0], pv[1], pv[2]), v_("v_min3_f32", mn, pv[0], pv[1], pv[2])]
    for i in range(3, 19, 2):
        out += [v_("v_max3_f32", mx, mx, pv[i], pv[i + 1]), v_("v_min3_f32", mn, mn, pv[i], pv[i + 1])]
    out += [v_("v_max_f32", mx, mx, pv[19]), v_("v_min_f32", mn, mn, pv[19])]
    out += [v_("v_mul_f32", mx, sL2E, mx), v_("v_mul_f32", mn, sL2E, mn)]
    for i in range(20):
        out.append(v_("v_fma_f32", EP[i], pv[i], sL2E, Neg(mx)))
        out.append(v_("v_fma_f32", pv[i], Neg(pv[i]), sL2E, mn))
    for i in range(20):
        out.append(("t", [mk("v_exp_f32", EP[i], EP[i])]))
        out.append(("t", [mk("v_exp_f32", pv[i], pv[i])]))
    out += [v_("v_add_f32", s0, EP[0], EP[1]), v_("v_add_f32", s1, pv[0], pv[1]),
            v_("v_add_f32", mx, EP[2], EP[3]), v_("v_add_f32", mn, pv[2], pv[3])]
    for i in range(4, 20, 2):
        out += [v_("v_add_f32", s0, s0, EP[i]), v_("v_add_f32", s1, s1, pv[i]),
                v_("v_add_f32", mx, mx, EP[i + 1]), v_("v_add_f32", mn, mn, pv[i + 1])]
    out += [v_("v_add_f32", s0, s0, mx), v_("v_add_f32", s1, s1, mn)]
    out += [("t", [mk("v_rcp_f32", s0, s0)]), ("t", [mk("v_rcp_f32", s1, s1)])]
    for i in range(20):
        out.append(v_("v_mul_f32", EP[i], s0, EP[i]))
    for i in range(20):
        out.append(v_("v_mul_f32", pv[i], s1, pv[i]))
    for u in range(10):
        out.append(v_("v_cvt_pk_bf16_f32", pv[u], pv[2 * u], pv[2 * u + 1]))
    for u in range(10):
        out.append(v_("v_cvt_pk_bf16_f32", pv[10 + u], EP[2 * u], EP[2 * u + 1]))
    return out


def glu_tile_atoms(acc, dst, G, U):
    out = []
    for i in range(8):
        out.append(v_("v_accvgpr_read_b32", G[i], A(acc + i)))
    for i in range(8):
        out.append(v_("v_accvgpr_read_b32", U[i], A(acc + 8 + i)))
    for i in range(8):
        out.append(v_("v_max_f32", G[i], 0, G[i]))
    for i in range(8):
        out.append(v_("v_mul_f32", U[i], G[i], U[i]))
    for q in range(4):
        out.append(v_("v_cvt_pk_bf16_f32", dst[q], U[2 * q], U[2 * q + 1]))
    return out


def h_store(data, blk, second, st, wide, tag=None):
    off = blk + (8 * 6144 if second else 0)
    ins = [mk("s_add_u32", sT0, sHB, off)]
    if wide:
        ins.append(mk("buffer_store_dwordx4", data, l16, WS, sT0, mods="offen" + st, tag=tag))
    else:
        ins.append(mk("buffer_store_dwordx2", data, l8, WS, sT0, mods="offen" + st, tag=tag))
    return n_(*ins)


def glu_atoms(acc, groups, st, regs, tag=None):
    G, U, PA, PB = regs
    out = []
    for n, (kind, t, blk) in enumerate(groups):
        tg = tag if n == len(groups) - 1 else None
        out += glu_tile_atoms(acc + 16 * t, PA, G, U)
        if kind == "pair":
            out += glu_tile_atoms(acc + 16 * (t + 1), PB, G, U)
            for q in range(4):
                out.append(v_("v_permlane16_swap_b32", PA[q], PB[q]))
            out.append(h_store(PA, blk, False, st, True))
            out.append(h_store(PB, blk, True, st, True, tg))
        else:
            out.append(v_("v_permlane16_swap_b32", PA[0], PA[2]))
            out.append(v_("v_permlane16_swap_b32", PA[1], PA[3]))
            out.append(h_store(PA[0:2], blk, False, st, False))
            out.append(h_store(PA[2:4], blk, True, st, False, tg))
    return out


def emit_atoms(p, atoms):
    for kind, ins in atoms:
        if kind == "d":
            continue
        if kind == "blk":
            ins(p)
        else:
            for i in ins:
                p.add(i)


class Side:
    def __init__(self, p):
        self.p = p
        self.q = []

    def fill(self, quota, nmax=2):
        p = self.p
        if self.q and self.q[0][0] == "d":
            if self.q[0][1] > 1:
                self.q[0] = ("d", self.q[0][1] - 1)
            else:
                self.q.pop(0)
            return
        n = 0
        while self.q and self.q[0][0] == "n" and n < nmax:
            for i in self.q.pop(0)[1]:
                p.add(i)
            n += 1
        n = 0
        ns = 0
        while self.q:
            kind, ins = self.q[0]
            if kind == "n" and ns < 2 and all(i.cls == "salu" for i in ins) and len(ins) <= 4:
                ns += 1
            elif kind in ("v", "t"):
                cost = 2 if kind == "t" else 1
                if n + cost > quota and n > 0:
                    break
                n += cost
            else:
                break
            self.q.pop(0)
            for i in ins:
                p.add(i)

    def mfmas(self, quota):
        p = self.p
        while self.q and self.q[0][0] in ("m", "blk"):
            kind, ins = self.q.pop(0)
            if kind == "blk":
                ins(p)
                continue
            for i in ins:
                p.add(i)
            self.fill(quota)

    def flush(self):
        emit_atoms(self.p, self.q)
        self.q = []


class Stream:
    def __init__(self, p, passes, ns, o):
        self.p, self.passes, self.ns, self.depth = p, passes, ns, o["depth"]
        self.frags = [(pi, s, t) for pi, ps in enumerate(passes) for s in range(40) for t in range(ps.nt)]
        self.nstage = 10 * len(passes)
        self.dmaq = []
        self.next_read = 0
        self.cur_stage = -1
        self.side = Side(p)
        self.dma_next = 0
        self.m0_each = True
        self.since_dma = 99
        self.o = o

    def stage_of(self, f):
        pi, s, t = self.frags[f]
        return 10 * pi + s // 4

    def queue_stage(self):
        g = self.dma_next
        if g >= self.nstage:
            return
        ps = self.passes[g // 10]
        atoms = dma_atoms(ps, g % self.ns, g % 10 == 0, f"W{g}", self.m0_each)
        if self.o.get("nodma") and g >= 2:
            atoms = [[mk("s_add_u32", "m0", ps.wreg, (g % self.ns) * SLOT)] + [i for i in atoms[-1] if i.cls == "vmem"]]
        self.dmaq += atoms
        self.dma_next += 1

    def emit_dma_now(self):
        for ins in self.dmaq:
            for i in ins:
                self.p.add(i)
        self.dmaq = []

    def read_frag(self):
        f = self.next_read
        if f >= len(self.frags):
            return
        p = self.p
        pi, s, t = self.frags[f]
        ps = self.passes[pi]
        g = self.stage_of(f)
        if g != self.cur_stage:
            while self.dma_next <= g or any(i.tag == f"W{g}" for ins in self.dmaq for i in ins):
                if self.dmaq:
                    for i in self.dmaq.pop(0):
                        p.add(i)
                else:
                    self.queue_stage()
            p.wait_tag(f"W{g}")
            p.e("s_barrier")
            if g > 0 and g % 10 != 0:
                delta = ((g % self.ns) - ((g - 1) % self.ns)) * SLOT
                for r in ps.pat:
                    p.e("v_add_u32", r, delta, r)
            if g == 0:
                while self.dma_next < self.ns - 1:
                    self.queue_stage()
            else:
                self.queue_stage()
            self.cur_stage = g
        fb = FB0 + 4 * (f % 8)
        for rd, (reg, imm) in enumerate(ps.reads(s % 4, t)):
            p.e("ds_read_b64_tr_b16", A(fb + 2 * rd, 2), reg, mods=f"offset:{imm}")
        self.next_read += 1

    def prime(self):
        for _ in range(self.depth + 1):
            self.read_frag()

    def run_pass(self, pi, quota, deadline=None, hooks=None, stamp_at=()):
        p = self.p
        ps = self.passes[pi]
        idx = [f for f, fr in enumerate(self.frags) if fr[0] == pi]
        for n, f in enumerate(idx):
            _, s, t = self.frags[f]
            if hooks and n in hooks:
                hooks[n](self)
            if n in stamp_at:
                p.stamp(f"p{pi}g{n}")
            if t == 0 and deadline is not None:
                lim = deadline(s)
                while len(self.side.q) > lim:
                    emit_atoms(p, [self.side.q.pop(0)])
            d = A(ps.acc + 16 * t, 16)
            p.e("v_mfma_f32_32x32x16_bf16", d, A(FB0 + 4 * (f % 8), 4), XR(s), d if s else 0)
            crossing = self.next_read < len(self.frags) and self.stage_of(self.next_read) != self.cur_stage
            late = []
            every = max(1, (4 * ps.nt) // self.passes[min(len(self.passes) - 1, self.dma_next // 10)].ndma)
            if len(self.dmaq) > 6 or not self.o.get("pace", True):
                every = 1
            self.since_dma += 1
            if self.dmaq and not crossing and self.since_dma >= every:
                self.since_dma = 0
                ins = self.dmaq.pop(0)
                k = next(n_ for n_, i in enumerate(ins) if i.cls == "vmem")
                for i in ins[:k]:
                    p.add(i)
                late = ins[k:]
            self.read_frag()
            for i in late:
                p.add(i)
            te = self.o.get("touch_every", 2)
            if f % te == 0:
                p.touch(*[A(FB0 + 4 * ((f + k) % 8), 4) for k in range(1, te + 1) if f + k < len(self.frags)])
            q = quota(n) if callable(quota) else quota
            self.side.fill(q)
            self.side.mfmas(q)


def poll_block(reg, addr, srdreg, soff, want, lab, mask=-1, imm=0):
    def blk(p):
        if NOPOLL and any(lab.endswith(x) for x in NOPOLL):
            p.touch(reg)
            return
        p.e("v_cmp_eq_u32", "vcc", want, reg)
        p.e("s_cmp_eq_u64", "vcc", mask)
        p.e("s_cbranch_scc1", lab + "_ok")
        p.region_begin()
        p.e("s_mov_b32", sT3, 0)
        p.label(lab + "_spin")
        p.e("s_add_u32", sT3, sT3, 1)
        p.e("s_cmp_ge_u32", sT3, SPIN_MAX)
        p.e("s_cbranch_scc1", lab + "_ok")
        p.e("s_sleep", SLEEP)
        p.e("buffer_load_dword", reg, addr, srdreg, soff, mods=f"offen offset:{imm} sc1")
        p.wait_vm0()
        p.e("v_cmp_eq_u32", "vcc", want, reg)
        p.e("s_cmp_eq_u64", "vcc", mask)
        p.e("s_cbranch_scc0", lab + "_spin")
        p.label(lab + "_ok")
        p.region_end()
    return blk


def flag_store(p, vtmp, srdreg, soff, atomic=False):
    p.e("v_mov_b32", vtmp, 1)
    p.e("s_mov_b64", "exec", 1)
    if atomic:
        p.e("buffer_atomic_add", vtmp, "off", srdreg, soff, mods="sc1")
    else:
        p.e("buffer_store_dword", vtmp, "off", srdreg, soff, mods="sc1")
    p.e("s_mov_b64", "exec", -1)


def code_prefetch(p, start):
    e = p.e
    pc, a = S(64, 2), V(250, 2)
    p.raw("s_getpc_b64 s[64:65]")
    p.label("F_pc")
    p.raw(f"s_sub_u32 s64, s64, F_pc-{start}")
    p.raw("s_subb_u32 s65, s65, 0")
    e("s_lshr_b32", S(66), S(2), 3)
    e("s_lshl_b32", S(66), S(66), 6)
    e("v_lshrrev_b32", V(252), 6, V(0))
    e("v_lshlrev_b32", V(252), 4, V(252))
    e("v_and_b32", V(253), 15, V(0))
    e("v_add3_u32", V(252), V(252), V(253), S(66))
    e("v_and_b32", V(252), 1023, V(252))
    e("v_lshlrev_b32", V(252), 7, V(252))
    p.add(mk("s_mov_b32", S(66), 0))
    p.ins[-1].text = f"s_mov_b32 s66, F_codeend-{start}-4"
    e("v_min_u32", V(252), S(66), V(252))
    e("v_mov_b32", a[1], pc[1])
    e("v_add_co_u32", a[0], "vcc", pc[0], V(252))
    e("v_addc_co_u32", a[1], "vcc", 0, a[1], "vcc")
    e("s_mov_b64", "exec", 0xFFFF)
    e("global_load_dword", V(254), a, "off")
    e("s_mov_b64", "exec", -1)


def prologue_lane(p):
    e = p.e
    t = [V(23), V(24), V(25), V(26)]
    vx = [V(27 + j) for j in range(4)]
    e("v_lshrrev_b32", t[0], 3, lane)
    e("v_lshrrev_b32", t[1], 4, lane)
    e("v_and_b32", t[2], 7, lane)
    e("v_mul_u32_u24", t[0], 1280, t[0])
    for j in range(4):
        e("v_add_u32", t[3], 4 * j, t[1])
        e("v_and_b32", t[3], 7, t[3])
        e("v_xor_b32", t[3], t[3], t[2])
        e("v_lshl_add_u32", t[3], t[3], 4, t[0])
        e("v_add_u32", vx[j], 8 * 1280 * j - 1024 * j, t[3])
    return vx


def prologue(p, typ, passes, stream, o, vx):
    e = p.e
    sXB, sXW, sPI = S(16), S(17), S(18)
    e("s_lshl_b32", sXB, sRB, 7)
    e("s_lshl_b32", sT1, sW, 5)
    e("s_add_u32", sXB, sXB, sT1)
    e("s_mul_i32", sXB, sXB, 1280)
    e("s_mul_i32", sXW, sW, XW)
    e("s_add_u32", sXW, sXW, XSTG)
    e("s_mov_b32", sPI, sROT)

    def x_piece(pi):
        e("s_add_u32", "m0", sXW, (pi % 7) * 4096)
        e("s_lshl_b32", sT2, sPI, 7)
        e("s_add_u32", sT2, sT2, sXB)
        for j in range(4):
            e("buffer_load_dwordx4", vx[j], XS, sT2, mods=f"offen offset:{1024 * j} lds", tag=f"X{pi}" if j == 3 else None)
        e("s_add_u32", sPI, sPI, 1)
        e("s_cmp_eq_u32", sPI, 10)
        e("s_cselect_b32", sPI, 0, sPI)

    x_piece(0)
    Z4 = V(32, 4)
    for r in range(4):
        e("v_mov_b32", Z4[r], 0)
    e("s_mul_i32", S(4), sP, 3200)
    e("s_mul_i32", S(5), sW, 800)
    e("s_add_u32", S(4), S(4), S(5))
    e("s_add_u32", "m0", S(5), PTB)
    e("buffer_load_dwordx4", l16, PH, S(4), mods="offen lds", tag="PT")
    if typ == "X":
        e("s_cmp_eq_u32", sRB, 0)
        e("s_cselect_b32", S(4), 0, OOB)
        e("s_lshl_b32", S(5), sP, 2)
        e("s_add_u32", S(5), S(5), sW)
        e("s_mul_i32", S(6), S(5), L.KVS)
        e("s_add_u32", S(6), S(6), L.F_KV)
        e("s_lshl_b32", S(5), S(5), 2)
        e("s_add_u32", S(5), S(5), DBG_Z)
        e("v_add_u32", V(36), S(4), l16)
        for k in range(3):
            e("buffer_store_dwordx4", Z4, V(36), WS, S(6), mods=f"offen offset:{1024 * k} sc1")
        e("v_add_u32", V(37), S(4), l4)
        for k in range(3):
            e("buffer_store_dword", Z4[0], V(37), WS, S(6), mods=f"offen offset:{3072 + 256 * k} sc1", tag="ZI" if k == 2 else None)
    else:
        e("s_or_b32", S(4), sRB, sP)
        e("s_cmp_eq_u32", S(4), 0)
        e("s_cselect_b32", S(4), 0, OOB)
        e("s_lshl_b32", S(6), sW, 12)
        e("s_add_u32", S(6), S(6), L.F_FLH)
        e("s_lshl_b32", S(5), sW, 2)
        e("s_add_u32", S(5), S(5), DBG_G)
        e("v_add_u32", V(36), S(4), l16)
        for k in range(4):
            e("buffer_store_dwordx4", Z4, V(36), WS, S(6), mods=f"offen offset:{1024 * k} sc1", tag="ZI" if k == 3 else None)
    x_piece(1)
    p.stamp("x_issued")
    e("v_mov_b32", V(37), S(5))
    e("v_add_u32", V(37), S(4), V(37))

    q = Prog()
    f = q.e
    t = [V(42), V(43), V(44), V(45)]
    f("v_add_u32", t[0], ZB, l16)
    f("ds_write_b128", t[0], Z4)
    f("ds_write_b128", t[0], Z4, mods="offset:1024")
    vr = [V(38 + k) for k in range(4)]
    f("v_and_b32", t[0], 31, lane)
    f("v_lshrrev_b32", t[1], 5, lane)
    f("v_bfe_u32", t[2], lane, 1, 3)
    f("v_xor_b32", t[1], t[1], t[2])
    f("v_lshlrev_b32", t[0], 7, t[0])
    f("v_add_u32", t[0], sXW, t[0])
    for k in range(4):
        f("v_xor_b32", t[2], 2 * k, t[1])
        f("v_lshl_add_u32", vr[k], t[2], 4, t[0])
    for k, ps in enumerate(passes):
        ps.wreg = WREG[k]
    setup_pass(q, passes[0], 0, t, [S(8), S(9), S(12), S(13)])
    n_first = len(q.ins)
    for k, ps in list(enumerate(passes))[1:]:
        setup_pass(q, ps, ((10 * k) % stream.ns) * SLOT, t, [S(8), S(9), S(12), S(13)])
    phr = [V(46 + k) for k in range(5)]
    phi_addr_setup(q, phr, t)
    first = q.ins[:n_first]
    rest = atomize(q.ins[n_first:])
    half = len(first) // 2
    for i in first[:half]:
        p.add(i)
    x_piece(2)
    for i in first[half:]:
        p.add(i)
    x_piece(3)
    NPF = 4
    side = Side(p)
    side.q = rest
    npre = o.get("pre_atoms", 60)
    emit_atoms(p, side.q[:npre])
    side.q = side.q[npre:]
    acc = [V(51), V(52), V(53), V(54)]
    for r in acc:
        e("v_mov_b32", r, 0)
    sONE = S(19)
    e("s_mov_b32", sONE, 0x3F803F80)
    p.stamp("setup")

    def x_reads(pi):
        p.wait_tag(f"X{pi}")
        for k in range(4):
            e("ds_read_b128", XR(4 * pi + k), vr[k], mods=f"offset:{(pi % 7) * 4096}")
    x_reads(0)
    per = -(-len(side.q) // 9)
    for pi in range(10):
        if o.get("pstamp") and pi in (0, 1, 2, 4, 6, 8):
            p.stamp(f"pc{pi}")
        if pi + NPF < 10:
            x_piece(pi + NPF)
        if pi + NPF == 10:
            stream.queue_stage()
            stream.queue_stage()
            stream.emit_dma_now()
        emit_atoms(p, side.q[:per])
        side.q = side.q[per:]
        if pi + 1 < 10:
            x_reads(pi + 1)
        for k in range(4):
            for r in range(4):
                x = XR(4 * pi + k)[r]
                e("v_dot2c_f32_bf16", acc[r & 1], sONE, x)
                e("v_dot2c_f32_bf16", acc[2 + (r & 1)], x, x)
    p.stamp("x_done")
    side.flush()
    p.wait_tag("ZI")
    e("v_mov_b32", V(36), 1)
    e("s_mov_b64", "exec", 1)
    e("buffer_store_dword", V(36), V(37), DBG, 0, mods="offen sc1")
    e("s_mov_b64", "exec", -1)
    e("v_add_f32", acc[0], acc[0], acc[1])
    e("v_add_f32", acc[2], acc[2], acc[3])
    e("v_mov_b32", acc[1], acc[0])
    e("v_mov_b32", acc[3], acc[2])
    e("v_permlane32_swap_b32", acc[0], acc[1])
    e("v_permlane32_swap_b32", acc[2], acc[3])
    e("v_add_f32", acc[0], acc[0], acc[1])
    e("v_add_f32", acc[2], acc[2], acc[3])
    e("v_mul_f32", acc[0], 1.0 / 640, acc[0])
    e("v_mul_f32", acc[2], 1.0 / 640, acc[2])
    e("v_fma_f32", acc[2], Neg(acc[0]), acc[0], acc[2])
    e("v_max_f32", acc[2], 0, acc[2])
    e("v_add_f32", acc[2], 1e-5, acc[2])
    e("v_rsq_f32", RSTD, acc[2])
    e("v_mul_f32", CEN, acc[0], RSTD)
    e("v_sub_f32", CEN, 0, CEN)
    p.wait_tag("PT")
    p.wait_lgkm0()
    return phr


def run_first_pass(p, stream, quota, phr, extra, stamp_at=()):
    for s in (0, 1):
        emit_atoms(p, center_atoms(s, V(23), V(24)))
    stream.prime()
    p.stamp("primed")
    phi = phi_read_atoms(phr)
    groups = {}
    for s in range(2, 40):
        groups[s] = center_atoms(s, V(23 + 2 * (s & 1)), V(24 + 2 * (s & 1)))
        if s - 2 < len(phi):
            groups[s] = groups[s][:10] + [phi[s - 2]] + groups[s][10:]
    groups[30] = groups[30] + extra
    stream.side.q = [a for s in range(2, 40) for a in groups[s]]
    rest = lambda s: sum(len(groups[k]) for k in range(max(s, 1) + 1, 40))
    stream.run_pass(0, quota, deadline=rest, stamp_at=stamp_at)
    assert not stream.side.q


def guard_load():
    return [v_("v_and_b32", V(51), 3, lane), v_("v_lshlrev_b32", V(51), 2, V(51)),
            n_(mk("buffer_load_dword", V(52), V(51), DBG, 0, mods=f"offen offset:{DBG_G} sc1"))]


def guard_check(lab):
    return ("blk", poll_block(V(52), V(51), DBG, 0, 1, lab, imm=DBG_G))


def kv_atoms(o):
    out = []
    pa, va, vb = V(5), V(6), V(7)
    t0, t1 = V(8), V(9)
    q = Prog()
    e = q.e
    e("v_lshrrev_b32", t0, 4, lane)
    e("v_bfe_u32", t1, lane, 2, 2)
    e("v_lshl_add_u32", t0, t0, 3, t1)
    e("v_and_b32", t1, 3, lane)
    e("v_lshlrev_b32", t1, 3, t1)
    e("v_mul_u32_u24", vb, 80, t0)
    e("s_mul_i32", S(4), sW, 10240)
    e("s_add_u32", S(4), S(4), PKB)
    e("v_add3_u32", pa, vb, t1, S(4))
    e("s_lshr_b32", S(5), sW, 1)
    e("s_mul_i32", S(5), S(5), 10240)
    e("s_and_b32", S(4), sW, 1)
    e("s_mul_i32", S(4), S(4), 40)
    e("s_add_u32", S(5), S(5), S(4))
    e("s_add_u32", S(5), S(5), VB)
    e("v_add3_u32", va, vb, t1, S(5))
    e("v_add_u32", vb, S(5), vb)
    e("v_add_u32", vb, 32, vb)
    e("v_and_b32", t0, 15, lane)
    e("v_cmp_eq_u32", S(6, 2), 4, t0)
    e("v_mov_b32", t1, 0x3F803F80)
    addr = atomize(q.ins)
    KA = PKD[0:24]
    AF = [[PKD[24 + 4 * k:28 + 4 * k] for k in range(3)], [PKD[36 + 4 * k:40 + 4 * k] for k in range(3)]]
    BF = [[EP[4 * k:4 * k + 4] for k in range(2)], [EP[8 + 4 * k:12 + 4 * k] for k in range(2)]]

    def blk(p):
        e = p.e
        p.wait_lgkm0()
        e("s_barrier")

        def reads(ks):
            a, b = AF[ks % 2], BF[ks % 2]
            for rd in range(2):
                for ft in range(3):
                    e("ds_read_b64_tr_b16", a[ft][2 * rd:2 * rd + 2], pa, mods=f"offset:{(32 * ks + 4 * rd) * 80 + 32 * ft}")
                e("ds_read_b64_tr_b16", b[0][2 * rd:2 * rd + 2], va, mods=f"offset:{(32 * ks + 4 * rd) * 80}")
                e("ds_read_b64_tr_b16", b[1][2 * rd:2 * rd + 2], vb, mods=f"offset:{(32 * ks + 4 * rd) * 80}")
        reads(0)
        for ks in range(4):
            if ks < 3:
                reads(ks + 1)
            a, b = AF[ks % 2], BF[ks % 2]
            for r in range(4):
                e("v_cndmask_b32", b[1][r], b[1][r], t1, S(6, 2))
            for dt in range(2):
                for ft in range(3):
                    d = KA[(dt * 3 + ft) * 4:(dt * 3 + ft) * 4 + 4]
                    e("v_mfma_f32_16x16x32_bf16", d, a[ft], b[dt], d if ks else 0)
    sA, sB = S(8), S(9)
    wa, ra = V(5), V(6)
    post = [n_(mk("s_lshl_b32", sA, sP, 2), mk("s_add_u32", sA, sA, sW), mk("s_mul_i32", sA, sA, L.KVS),
               mk("s_add_u32", sA, sA, L.F_KV)),
            n_(mk("s_mul_i32", sB, sW, 10240), mk("s_add_u32", sB, sB, PKB)),
            v_("v_and_b32", wa, 15, lane), v_("v_mul_u32_u24", wa, 160, wa), v_("v_lshrrev_b32", ra, 4, lane),
            v_("v_lshl_add_u32", wa, ra, 4, wa), v_("v_add_u32", wa, sB, wa), v_("v_add_u32", ra, sB, l4)]
    masks = {(0, 0): None, (1, 0): None, (2, 0): (0xFFFFFFFF, 0), (0, 1): (0x001F001F, 0x001F001F),
             (1, 1): (0x001F001F, 0x001F001F), (2, 1): (0x001F001F, 0)}
    for (ft, dt), m in masks.items():
        r = (dt * 3 + ft) * 4
        ins = []
        if m:
            ins += [mk("s_mov_b32", sEX[0], m[0]), mk("s_mov_b32", sEX[1], m[1]), mk("s_mov_b64", "exec", sEX)]
        ins.append(mk("ds_write_b128", wa, KA[r:r + 4], mods=f"offset:{dt * 2560 + ft * 64}"))
        if m:
            ins.append(mk("s_mov_b64", "exec", -1))
        post.append(n_(*ins))
    DN = AF[0][0].__class__("v", PKD.idx + 24, 14)
    for k in range(14):
        post.append(n_(mk("ds_read_b32", DN[k], ra, mods=f"offset:{256 * k}")))
    atomics = []
    for k in range(14):
        ins = []
        if k == 13:
            ins.append(mk("s_mov_b64", "exec", 0xFF))
        ins.append(mk("buffer_atomic_add_f32", DN[k], l4, WS, sA, mods=f"offen offset:{256 * k}", tag="KVA" if k == 13 else None))
        if k == 13:
            ins.append(mk("s_mov_b64", "exec", -1))
        atomics.append(n_(*ins))
    return addr, blk, post, atomics, sA


def wt_round_atoms(rnd, st):
    su, sk, sc, sw_, sst, sM, sB, sC1 = S(4), S(5), S(6), S(7), S(8), S(9), S(12), S(13)
    sX, sY = S(14), S(15)
    a = []
    g = lambda *rows: a.append(n_(*[mk(*r) for r in rows]))
    g(("s_lshl_b32", su, sRB, 3), ("s_add_u32", su, su, sP), ("s_lshl_b32", su, su, 2), ("s_add_u32", su, su, sW))
    if rnd:
        g(("s_add_u32", su, su, 512), ("s_cmp_ge_u32", su, 680), ("s_cselect_b32", sX, 344, 0), ("s_sub_u32", su, su, sX))
    g(("s_mul_i32", sk, su, 52429), ("s_lshr_b32", sk, sk, 19),
      ("s_mul_i32", sX, sk, 10), ("s_sub_u32", sc, su, sX))
    g(("s_mul_i32", sw_, sk, 3856), ("s_lshr_b32", sw_, sw_, 16),
      ("s_mul_i32", sX, sw_, 17), ("s_sub_u32", sst, sk, sX))
    g(("s_mul_i32", sB, sw_, 12), ("s_add_u32", sB, sB, sst), ("s_lshl_b32", sB, sB, 5))
    g(("s_cmp_eq_u32", sst, 2), ("s_cselect_b32", sX, 1, 0), ("s_cmp_eq_u32", sst, 8), ("s_cselect_b32", sX, 1, sX))
    g(("s_cmp_eq_u32", sX, 1), ("s_cselect_b32", sM, 16, 8), ("s_cselect_b32", sC1, 8, 16))
    g(("s_sub_u32", sX, sst, 12), ("s_lshr_b32", sY, sX, 1), ("s_mul_i32", sY, sY, 80), ("s_and_b32", sX, sX, 1))
    g(("s_lshl_b32", sX, sX, 3), ("s_add_u32", sY, sY, sX), ("s_mul_i32", su, sw_, 160))
    g(("s_cmp_eq_u32", sst, 16), ("s_cselect_b32", sY, 16, sY), ("s_cselect_b32", sX, 80, 4), ("s_add_u32", sY, sY, su))
    g(("s_cmp_ge_u32", sst, 12), ("s_cselect_b32", sB, sY, sB), ("s_cselect_b32", sM, sX, sM),
      ("s_cselect_b32", sC1, 20, sC1), ("s_cselect_b32", sX, 40, 4),
      ("s_cselect_b32", WD[0], S(10), WDP[0]), ("s_cselect_b32", WD[1], S(11), WDP[1]))
    g(("s_cmp_ge_u32", sst, 12), ("s_mov_b32", WD[2], 1536 * 640 * 2), ("s_cselect_b32", WD[2], 640 * 640 * 2, WD[2]),
      ("s_mov_b32", WD[3], 0x20000))
    g(("s_mul_i32", su, sw_, 10), ("s_add_u32", su, su, sc), ("s_lshl_b32", su, su, 5), ("s_add_u32", su, su, sst))
    sFLG = S(81) if rnd == 0 else S(89)
    g(("s_lshl_b32", su, su, 2), ("s_add_u32", sFLG, su, L.F_FLW))
    t0, t1, vo = TMP[0], TMP[1], TMP[2]
    a.append(v_("v_lshrrev_b32", t0, 5, lane))
    a.append(v_("v_mul_u32_u24", t0, sM, t0))
    a.append(v_("v_bfe_u32", t1, lane, 3, 2))
    a.append(v_("v_add_u32", t0, t0, t1))
    a.append(v_("v_mul_u32_u24", t0, 1280, t0))
    a.append(v_("v_and_b32", t1, 7, lane))
    a.append(v_("v_lshl_add_u32", vo, t1, 4, t0))
    g(("s_lshl_b32", su, sc, 7), ("s_lshl_b32", sw_, sW, 12), ("s_add_u32", sw_, sw_, WTS))
    for j in range(4):
        ins = [mk("s_mov_b32", "m0", sw_), mk("s_mul_i32", sY, sC1, j & 1), mk("s_add_u32", sY, sY, sB)]
        if j >> 1:
            ins.append(mk("s_add_u32", sY, sY, sX))
        ins += [mk("s_mul_i32", sY, sY, 1280), mk("s_add_u32", sY, sY, su)]
        if j:
            ins.append(mk("s_sub_u32", sY, sY, 1024 * j))
        ins.append(mk("buffer_load_dwordx4", vo, WD, sY, mods=f"offen offset:{1024 * j} lds", tag=f"WT{rnd}" if j == 3 else None))
        a.append(n_(*ins))
    b = []
    ra = TMP[0]
    b.append(v_("v_lshrrev_b32", ra, 4, lane))
    b.append(v_("v_bfe_u32", t1, lane, 2, 2))
    b.append(v_("v_lshl_add_u32", ra, ra, 3, t1))
    b.append(v_("v_lshlrev_b32", ra, 7, ra))
    b.append(v_("v_and_b32", t1, 3, lane))
    b.append(v_("v_lshl_add_u32", ra, t1, 3, ra))
    b.append(n_(mk("s_lshl_b32", sY, sW, 12), mk("s_add_u32", sY, sY, WTS)))
    b.append(v_("v_add_u32", ra, sY, ra))
    b.append(("blk", lambda p: p.wait_tag(f"WT{rnd}")))
    FR = PKD[0:16]
    for nt in range(4):
        for rd in range(2):
            b.append(n_(mk("ds_read_b64_tr_b16", FR[4 * nt + 2 * rd:4 * nt + 2 * rd + 2], ra, mods=f"offset:{rd * 512 + 32 * nt}")))
    b.append(n_(mk("s_mul_i32", sY, sk, 40), mk("s_lshl_b32", su, sc, 2), mk("s_add_u32", sY, sY, su),
                mk("s_lshl_b32", sY, sY, 10), mk("s_add_u32", sY, sY, L.F_WT)))
    for nt in range(4):
        b.append(n_(mk("buffer_store_dwordx4", FR[4 * nt:4 * nt + 4], l16, WS, sY, mods=f"offen offset:{1024 * nt}" + st,
                       tag=f"WS{rnd}" if nt == 3 else None)))

    def flag(p):
        p.wait_tag(f"WS{rnd}")
        flag_store(p, TMP[1], WS, sFLG)
    return a, b, ("blk", flag), sFLG


def o_stage_parts(o):
    st = o["st"]
    KVR = V(96, 24)
    AB = [V(120 + 4 * i, 4) for i in range(8)]
    OA = V(152, 32)
    OP = [V(184, 10), V(194, 10)]
    t0, t1, ta, aa = V(204), V(205), V(206), V(207)
    Z4 = V(160, 4)
    sA, sB = S(16), S(17)
    POLL, PADDR = V(204), V(205)
    cnt_load = [v_("v_and_b32", PADDR, 3, lane), v_("v_mul_u32_u24", PADDR, L.KVS, PADDR),
                n_(mk("s_mul_i32", sA, sP, 4 * L.KVS), mk("s_add_u32", sA, sA, L.F_KV + L.KVC)),
                n_(mk("buffer_load_dword", POLL, PADDR, WS, sA, mods="offen sc1"))]
    cnt_check = ("blk", poll_block(POLL, PADDR, WS, sA, 16, "Y_kc"))
    kvl = [n_(mk("s_lshl_b32", sA, sP, 2), mk("s_add_u32", sA, sA, sW), mk("s_mul_i32", sA, sA, L.KVS),
              mk("s_add_u32", sA, sA, L.F_KV))]
    for r in range(7):
        kvl.append(n_(mk("buffer_load_dwordx2", KVR[2 * r:2 * r + 2], l8, WS, sA, mods=f"offen offset:{512 * r} sc1")))
    out = []
    for r in range(4):
        out.append(v_("v_mov_b32", Z4[r], 0))
    out.append(v_("v_add_u32", t0, LDS_Z2, l16))
    for k in range(4):
        out.append(n_(mk("ds_write_b128", t0, Z4, mods=f"offset:{1024 * k}")))
    out += [n_(mk("s_mul_i32", sA, sW, 1920)), v_("v_add_u32", ta, sA, l4)]
    out += [v_("v_lshrrev_b32", t0, 5, lane), v_("v_bfe_u32", t1, lane, 2, 1),
            v_("v_cmp_eq_u32", "vcc", t0, t1),
            v_("v_mul_u32_u24", t0, 2 * 1920, t0), v_("v_bfe_u32", t1, lane, 3, 2), v_("v_lshlrev_b32", t1, 2, t1),
            v_("v_and_b32", aa, 3, lane), v_("v_add_u32", t1, t1, aa), v_("v_mul_u32_u24", t1, 80, t1),
            v_("v_add_u32", t0, t0, t1), v_("v_mov_b32", t1, LDS_Z2), v_("v_cndmask_b32", aa, t1, t0, "vcc")]
    for r in range(7):
        out.append(v_("v_cvt_pk_bf16_f32", KVR[2 * r], KVR[2 * r], KVR[2 * r + 1]))
    for r in range(7):
        out.append(n_(mk("ds_write_b32", ta, KVR[2 * r], mods=f"offset:{LDS_T + 256 * r}")))

    def bar(p):
        p.wait_lgkm0()
        p.e("s_barrier")
    out.append(("blk", bar))
    for hh in range(2):
        seq = [(u, c) for u in range(2) for c in range(5)]
        rd = lambda n: n_(mk("ds_read_b128", AB[n % 8], aa, mods=f"offset:{LDS_T + hh * 1920 + seq[n][0] * 1280 + seq[n][1] * 16}"))
        for n in range(6):
            out.append(rd(n))
        for n, (u, c) in enumerate(seq):
            d = OA[16 * u:16 * u + 16]
            out.append(("m", [mk("v_mfma_f32_32x32x16_bf16", d, AB[n % 8], PKD[20 * hh + 4 * c:20 * hh + 4 * c + 4], d if c else 0)]))
            if n + 6 < len(seq):
                out.append(rd(n + 6))
        out += [v_("v_add_f32", t0, 1e-6, OA[20]), ("t", [mk("v_rcp_f32", t0, t0)])]
        for d in range(20):
            out.append(v_("v_mul_f32", OA[d], t0, OA[d]))
        for q in range(10):
            out.append(v_("v_cvt_pk_bf16_f32", OP[hh][q], OA[2 * q], OA[2 * q + 1]))
    for q in range(10):
        out.append(v_("v_permlane16_swap_b32", OP[0][q], OP[1][q]))
    out.append(n_(mk("s_lshl_b32", sA, sRB, 3), mk("s_lshl_b32", sB, sW, 1), mk("s_add_u32", sA, sA, sB),
                  mk("s_lshl_b32", sA, sA, 3), mk("s_add_u32", sA, sA, sP), mk("s_mul_i32", sA, sA, 2560),
                  mk("s_add_u32", sA, sA, L.F_OB), mk("s_add_u32", sB, sA, 8 * 2560)))
    for h, sx in ((0, sA), (1, sB)):
        d = OP[h]
        out.append(n_(mk("buffer_store_dwordx4", d[0:4], l16, WS, sx, mods="offen" + st)))
        out.append(n_(mk("buffer_store_dwordx4", d[4:8], l16, WS, sx, mods="offen offset:1024" + st)))
        out.append(n_(mk("buffer_store_dwordx2", d[8:10], l8, WS, sx, mods="offen offset:2048" + st, tag="OST" if h else None)))

    def flag(p):
        p.wait_tag("OST")
        pair_flag(p, L.F_FLO, t0, sA, sB)
    return cnt_load, cnt_check, kvl, out, flag


def pair_flag(p, base, vtmp, sA, sB):
    p.e("s_lshl_b32", sA, sRB, 1)
    p.e("s_lshr_b32", sB, sW, 1)
    p.e("s_add_u32", sA, sA, sB)
    p.e("s_lshl_b32", sA, sA, 3)
    p.e("s_add_u32", sA, sA, sP)
    p.e("s_lshl_b32", sA, sA, 1)
    p.e("s_and_b32", sB, sW, 1)
    p.e("s_add_u32", sA, sA, sB)
    p.e("s_lshl_b32", sA, sA, 2)
    p.e("s_add_u32", sA, sA, base)
    flag_store(p, vtmp, WS, sA)


def h_flag(p, typ):
    e = p.e
    p.wait_tag("HST")
    e("s_lshl_b32", sT0, sRB, 1)
    e("s_lshr_b32", sT1, sW, 1)
    e("s_add_u32", sT0, sT0, sT1)
    e("s_lshl_b32", sT0, sT0, 3)
    e("s_add_u32", sT0, sT0, sP)
    e("s_lshl_b32", sT0, sT0, 2)
    e("s_and_b32", sT1, sW, 1)
    e("s_add_u32", sT0, sT0, sT1)
    if typ == "Y":
        e("s_add_u32", sT0, sT0, 2)
    e("s_lshl_b32", sT0, sT0, 2)
    e("s_add_u32", sT0, sT0, L.F_FLH)
    flag_store(p, V(90), WS, sT0)


srt, sct = S(43), S(23)
sH0, sO0, sW0, sFH, sFO, sFW, sFE = S(28), S(29), S(30), S(31), S(40), S(41), S(42)
OUT = S(44, 4)
sST = [S(64 + k) for k in range(12)]
sOI = [S(76 + k) for k in range(4)]
LONE = (6, 10)


def phase2_scalars(o):
    q = Prog()
    e = q.e
    sR, t0, t1, t2, t3 = S(90 - 10), S(85), S(86), S(87), S(88)
    e("s_and_b32", t0, S(2), 7)
    e("s_lshr_b32", t1, S(2), 3)
    e("s_lshr_b32", srt, t0, 1)
    e("s_lshl_b32", srt, srt, 3)
    e("s_and_b32", t2, t1, 7)
    e("s_add_u32", srt, srt, t2)
    e("s_and_b32", sct, t0, 1)
    e("s_lshl_b32", sct, sct, 2)
    e("s_lshr_b32", t3, t1, 3)
    e("s_add_u32", sct, sct, t3)
    if o["rot2"]:
        e("s_mul_i32", t3, t3, 3)
        e("s_add_u32", sR, t3, t2)
    else:
        e("s_mov_b32", sR, 0)
    for n in range(4):
        e("s_add_u32", t0, sR, n)
        e("s_and_b32", sOI[n], t0, 3)
        e("s_lshr_b32", t1, sOI[n], 1)
        e("s_mul_i32", t1, t1, 4)
        e("s_add_u32", t1, t1, sOI[n])
        e("s_add_u32", t1, t1, 4)
        e("s_lshl_b32", sST[n], t1, 10)
    e("s_lshl_b32", t0, srt, 5)
    e("s_lshl_b32", t1, sW, 1)
    e("s_add_u32", t0, t0, t1)
    e("s_mul_i32", sH0, t0, 6144)
    if L.F_HB:
        e("s_add_u32", sH0, sH0, L.F_HB)
    e("s_mul_i32", sO0, t0, 2560)
    e("s_add_u32", sO0, sO0, L.F_OB)
    e("s_mul_i32", sW0, sW, 17 * 40)
    e("s_mul_i32", t1, sct, 5)
    e("s_add_u32", sW0, sW0, t1)
    e("s_lshl_b32", sW0, sW0, 10)
    e("s_add_u32", sW0, sW0, L.F_WT)
    if o.get("fakeW"):
        e("s_mov_b32", sW0, L.F_WT)
    if o.get("fakeA"):
        e("s_mov_b32", sH0, L.F_HB)
        e("s_mov_b32", sO0, L.F_OB)
    e("s_lshl_b32", t0, srt, 3)
    e("s_lshl_b32", t1, sW, 1)
    e("s_add_u32", t0, t0, t1)
    e("s_lshl_b32", sFH, t0, 4)
    e("s_add_u32", sFH, sFH, L.F_FLH)
    e("s_lshl_b32", sFO, t0, 3)
    e("s_add_u32", sFE, sFO, L.F_FLE)
    e("s_add_u32", sFO, sFO, L.F_FLO)
    e("s_mul_i32", t0, sct, 80)
    e("s_lshr_b32", t0, t0, 6)
    e("s_mul_i32", t1, sW, 10)
    e("s_add_u32", t0, t0, t1)
    e("s_lshl_b32", sFW, t0, 7)
    e("s_add_u32", sFW, sFW, L.F_FLW)
    pre = atomize_scalar(q.ins)
    q = Prog()
    e = q.e
    t0, t1, t2 = S(4), S(5), S(6)
    pos_pair = [4, 5, 7, 8, 9, 11]
    e("s_mul_i32", t0, sR, 43)
    e("s_lshr_b32", t0, t0, 8)
    e("s_mul_i32", t0, t0, 6)
    e("s_sub_u32", t0, sR, t0)
    for n, pos in enumerate(pos_pair):
        e("s_cmp_ge_u32", t0, 3)
        e("s_cselect_b32", t1, 3, 0)
        e("s_sub_u32", t2, t0, t1)
        e("s_lshl_b32", t1, t1, 1)
        e("s_add_u32", t1, t1, t2)
        e("s_cmp_ge_u32", t2, 2)
        e("s_cselect_b32", t2, 1, 0)
        e("s_add_u32", t1, t1, t2)
        e("s_lshl_b32", sST[pos], t1, 10)
        if n < 5:
            e("s_add_u32", t0, t0, 1)
            e("s_cmp_eq_u32", t0, 6)
            e("s_cselect_b32", t0, 0, t0)
    e("s_and_b32", t0, sR, 1)
    e("s_mul_i32", t1, t0, 6 * 1024)
    e("s_add_u32", sST[LONE[0]], t1, 2048)
    e("s_sub_u32", sST[LONE[1]], 2048 + 6 * 1024, t1)
    srd(q, OUT, OUTP, 2048 * 640 * 2)
    post = atomize_scalar(q.ins)
    return pre, post


def phase2(p, typ, o):
    e = p.e
    ld = o["ld"]
    D = o["d2"]
    tmp_s = [S(82 + k) for k in range(8)]
    ti = [0]

    def ts():
        ti[0] += 1
        return tmp_s[ti[0] % len(tmp_s)]

    PW, AW, PE, AE = V(22), V(23), V(88), V(89)
    e("v_and_b32", AW, 31, lane)
    e("v_min_u32", AW, 16, AW)
    e("v_lshrrev_b32", PW, 5, lane)
    e("v_lshlrev_b32", PW, 7, PW)
    e("v_lshl_add_u32", AW, AW, 2, PW)
    e("buffer_load_dword", PW, AW, WS, sFW, mods="offen sc1")
    e("v_and_b32", AE, 3, lane)
    e("v_lshlrev_b32", AE, 2, AE)
    e("buffer_load_dword", PE, AE, WS, sFE, mods="offen sc1")
    vA = [V(5 + a) for a in range(4)]
    vL = [V(9 + a) for a in range(4)]
    vO = [V(13 + a) for a in range(4)]
    vR = [V(17 + a) for a in range(4)]
    vW4 = V(21)
    for a in range(4):
        e("v_add_u32", vA[a], 49152 * a, l16)
        e("v_add_u32", vL[a], 49152 * a, l8)
        e("v_add_u32", vO[a], 20480 * a, l16)
        e("v_add_u32", vR[a], 20480 * a, l8)
    e("v_add_u32", vW4, 4096, l16)
    XRES = V(74, 10)
    xo = [V(64 + k) for k in range(5)]
    ro = [V(69 + k) for k in range(5)]
    rq = Prog()
    f = rq.e
    f("s_lshl_b32", S(80), srt, 6)
    f("s_mul_i32", S(80), S(80), 1280)
    f("s_mul_i32", S(81), sct, 160)
    f("s_add_u32", S(80), S(80), S(81))
    for k in range(5):
        it, row, c4, tt = V(84), V(85), V(86), V(87)
        f("s_lshl_b32", S(81), sW, 6)
        f("s_add_u32", S(81), S(81), 256 * k)
        f("v_add_u32", it, S(81), lane)
        f("v_mul_u32_u24", row, 3277, it)
        f("v_lshrrev_b32", row, 16, row)
        f("v_mul_u32_u24", c4, 20, row)
        f("v_sub_u32", c4, it, c4)
        f("v_mul_u32_u24", tt, 1280, row)
        f("v_lshl_add_u32", tt, c4, 3, tt)
        f("v_add_u32", xo[k], S(80), tt)
        f("v_mul_u32_u24", tt, RPITCH, row)
        f("v_lshl_add_u32", tt, c4, 4, tt)
        f("v_add_u32", ro[k], LDS_R, tt)
        f("buffer_load_dwordx2", XRES[2 * k:2 * k + 2], xo[k], XS, 0, mods="offen")
    res_atoms = atomize(rq.ins)
    h_flag(p, typ)
    p.stamp("p1_end")

    if typ == "Y":
        D = o.get("d2y", 3)
        pool = [A(80 + 4 * i, 4) for i in range(44)] + [V(208 + 4 * i, 4) for i in range(12)]
    else:
        D = o.get("d2x", 3)
        pool = [A(80 + 4 * i, 4) for i in range(44)] + [V(96 + 4 * i, 4) for i in range(40)]
    assert D * 9 <= len(pool)
    slot = lambda s_, i: pool[(s_ % D) * 9 + i]

    def w_loads(pos):
        s_ = ts()
        if pos < 12:
            pre = [mk("s_mul_i32", s_, sST[pos], 40), mk("s_add_u32", s_, s_, sW0)]
        elif pos < 16:
            pre = [mk("s_add_u32", s_, sOI[pos - 12], 12), mk("s_mul_i32", s_, s_, 40960), mk("s_add_u32", s_, s_, sW0)]
        else:
            pre = [mk("s_add_u32", s_, sW0, 16 * 40960)]
        out = []
        for nt in range(5):
            i = mk("buffer_load_dwordx4", slot(pos, 4 + nt), l16 if nt < 4 else vW4, WS, s_,
                   mods=f"offen offset:{1024 * (nt % 4)}" + ld)
            out.append((pre if nt == 0 else []) + [i])
        return out

    def a_loads(pos):
        s_ = ts()
        out = []
        if pos < 12:
            pre = [mk("s_add_u32", s_, sST[pos], sH0)]
            for a in range(4):
                q = slot(pos, a)
                if pos in LONE:
                    out.append((pre if a == 0 else []) + [mk("buffer_load_dwordx2", q[0:2], vL[a], WS, s_, mods="offen" + ld)])
                    out.append([mk("buffer_load_dwordx2", q[2:4], vL[a], WS, s_, mods="offen offset:512" + ld)])
                else:
                    out.append((pre if a == 0 else []) + [mk("buffer_load_dwordx4", q, vA[a], WS, s_, mods="offen" + ld)])
        elif pos < 16:
            s2 = ts()
            pre = [mk("s_lshr_b32", s_, sOI[pos - 12], 1), mk("s_mul_i32", s_, s_, 2560), mk("s_and_b32", s2, sOI[pos - 12], 1),
                   mk("s_lshl_b32", s2, s2, 10), mk("s_add_u32", s_, s_, s2), mk("s_add_u32", s_, s_, sO0)]
            for a in range(4):
                out.append((pre if a == 0 else []) + [mk("buffer_load_dwordx4", slot(pos, a), vO[a], WS, s_, mods="offen" + ld)])
        else:
            pre = [mk("s_add_u32", s_, sO0, 2048)]
            for a in range(4):
                q = slot(pos, a)
                out.append((pre if a == 0 else []) + [mk("buffer_load_dwordx2", q[0:2], vR[a], WS, s_, mods="offen" + ld)])
                out.append([mk("buffer_load_dwordx2", q[2:4], vR[a], WS, s_, mods="offen offset:2560" + ld)])
        return out

    def emit_groups(gs):
        for grp in gs:
            for i in grp:
                p.add(i)

    def loads(pos):
        return a_loads(pos) + w_loads(pos)

    poll_block(PW, AW, WS, sFW, 1, typ + "_fw")(p)
    poll_block(PE, AE, WS, sFE, 1, typ + "_fe")(p)
    p.stamp("p2_flags")
    loads0 = a_loads(0) + w_loads(0)
    NI = o.get("ninit", 2)
    OPOS = o.get("opos", 1)
    if typ == "Y":
        cnt_load, cnt_check, kvl, ocomp, oflag = o_stage_parts(o)
    if typ == "Y" and OPOS < 0:
        emit_atoms(p, cnt_load)
        emit_groups(loads0)
        emit_atoms(p, phase2_scalars(o)[1])
        emit_atoms(p, [cnt_check])
        emit_atoms(p, kvl)
        pend = [g for pos in range(1, NI) for g in a_loads(pos) + w_loads(pos)]
        every = max(1, len(ocomp) // (len(pend) + 1))
        for n, a in enumerate(ocomp):
            emit_atoms(p, [a])
            if pend and n % every == every - 1:
                emit_groups([pend.pop(0)])
        emit_groups(pend)
        p.stamp("p2_o")
    else:
        emit_groups(loads0)
        for pos in range(1, NI):
            emit_groups(a_loads(pos) + w_loads(pos))
        emit_atoms(p, phase2_scalars(o)[1])
    side = Side(p)

    ACC = lambda a, nt: A((a * 5 + nt) * 4, 4)
    LCHK, OCHK = o.get("lchk", 1), o.get("ochk", 9)
    POLL, PA_ = V(22), V(23)
    nA = nW = NI
    for pos in range(17):
        pending = []
        want = min(17, pos + D)
        wwant = min(17, pos + D)
        al, wl = [], []
        while nA < want and (nA < 4 or (nA < 12 and pos > LCHK) or pos > OCHK):
            al += a_loads(nA)
            nA += 1
        while nW < wwant:
            wl += w_loads(nW)
            nW += 1
        pending = al + wl
        if pos == LCHK:
            e("v_and_b32", PA_, 7, lane)
            e("v_lshlrev_b32", PA_, 2, PA_)
            e("buffer_load_dword", POLL, PA_, WS, sFH, mods="offen sc1")
        if pos == OCHK:
            e("v_and_b32", PA_, 3, lane)
            e("v_lshlrev_b32", PA_, 2, PA_)
            e("buffer_load_dword", POLL, PA_, WS, sFO, mods="offen sc1")
        if typ == "Y" and pos == OPOS - 1:
            emit_atoms(p, cnt_load)
        if typ == "Y" and pos == OPOS:
            emit_atoms(p, [cnt_check])
            emit_atoms(p, kvl)
            every = max(1, len(ocomp) // (len(pending) + 1))
            for n, a in enumerate(ocomp):
                emit_atoms(p, [a])
                if pending and n % every == every - 1:
                    emit_groups([pending.pop(0)])
            emit_groups(pending)
            pending = []
            p.stamp("p2_o")
        if pos == (OPOS + 2 if typ == "Y" else 3):
            side.q = list(res_atoms)
        if pos in o.get("p2st", (0, 2, 4, 8, 12)):
            p.stamp(f"p2_s{pos}")
        n = 0
        for nt in range(5):
            for a in range(4):
                d = ACC(a, nt)
                e("v_mfma_f32_16x16x32_bf16", d, slot(pos, 4 + nt), slot(pos, a), d if pos else 0)
                n += 1
                if pending and (n % 2 == 0 or len(pending) > 20 - n):
                    for i in pending.pop(0):
                        p.add(i)
                elif side.q:
                    side.fill(2, nmax=1)
        emit_groups(pending)
        if typ == "Y" and pos == max(OPOS + 1, o.get("ofpos", 0)):
            oflag(p)
        if typ == "X" and pos == o.get("kcpos", -1):
            o["x_counter"](p)
        if pos == LCHK:
            poll_block(POLL, PA_, WS, sFH, 1, typ + "_fh")(p)
            p.stamp("p2_late")
        if pos == OCHK:
            poll_block(POLL, PA_, WS, sFO, 1, typ + "_fo")(p)
            p.stamp("p2_ochk")
    side.flush()
    p.stamp("p2_loop")

    g_, n16, wa = V(84), V(85), V(86)
    e("v_lshrrev_b32", g_, 4, lane)
    e("v_and_b32", n16, 15, lane)
    e("v_mul_u32_u24", wa, RPITCH, n16)
    e("v_lshl_add_u32", wa, g_, 4, wa)
    e("s_mul_i32", sT0, sW, 64 * RPITCH)
    e("s_add_u32", sT0, sT0, LDS_R)
    e("v_add_u32", wa, sT0, wa)
    for a in range(4):
        for nt in range(5):
            e("ds_write_b128", wa, ACC(a, nt), mods=f"offset:{a * 16 * RPITCH + nt * 64}")
    p.wait_lgkm0()
    e("s_barrier")
    p.stamp("p2_red")
    RB = V(96, 80)
    for k in range(5):
        for w in range(4):
            e("ds_read_b128", RB[16 * k + 4 * w:16 * k + 4 * w + 4], ro[k], mods=f"offset:{w * 64 * RPITCH}")
    e("s_mov_b32", sT0, 0xFFFF0000)
    for k in range(5):
        b = 16 * k
        for i in range(4):
            e("v_add_f32", RB[b + i], RB[b + i], RB[b + 4 + i])
            e("v_add_f32", RB[b + 8 + i], RB[b + 8 + i], RB[b + 12 + i])
        e("v_lshlrev_b32", RB[b + 4], 16, XRES[2 * k])
        e("v_and_b32", RB[b + 5], sT0, XRES[2 * k])
        e("v_lshlrev_b32", RB[b + 6], 16, XRES[2 * k + 1])
        e("v_and_b32", RB[b + 7], sT0, XRES[2 * k + 1])
        for i in range(4):
            e("v_add_f32", RB[b + i], RB[b + i], RB[b + 8 + i])
        for i in range(4):
            e("v_add_f32", RB[b + i], RB[b + i], RB[b + 4 + i])
        e("v_cvt_pk_bf16_f32", RB[b], RB[b], RB[b + 1])
        e("v_cvt_pk_bf16_f32", RB[b + 1], RB[b + 2], RB[b + 3])
        e("buffer_store_dwordx2", RB[b:b + 2], xo[k], OUT, 0, mods="offen")
    p.stamp("end")


def body_x(p, o, vx):
    st = o["st"]
    kv = Pass("kv", "kv", 5, ACC_A, 320, 20, 20, WQ, 3840, sROTQ, [V(5 + j) for j in range(5)], [V(16)], 0)
    u80 = Pass("u80", "U", 5, ACC_B, 160, 10, 10, WU, 3072, sROTU, [V(10 + j) for j in range(5)], [V(17), V(18)], 0)
    stream = Stream(p, [kv, u80], 5, o)
    stream.m0_each = False
    phr = prologue(p, "X", [kv, u80], stream, o, vx)
    run_first_pass(p, stream, o["q1x"], phr, guard_load(), o.get("sx0", ()))
    p.stamp("pass1")
    vPK, vV = V(19), V(20)
    side = [guard_check("X_g")]
    side += [v_("v_and_b32", TMP[0], 31, lane), n_(mk("s_lshl_b32", sT0, sW, 5)), v_("v_add_u32", TMP[0], sT0, TMP[0]),
             v_("v_lshrrev_b32", TMP[1], 5, lane), v_("v_mul_u32_u24", TMP[0], 80, TMP[0]),
             v_("v_mul_u32_u24", TMP[2], 20480, TMP[1]), v_("v_mul_u32_u24", TMP[1], 10240, TMP[1]),
             v_("v_add_u32", vPK, TMP[0], TMP[2]), v_("v_add_u32", vV, TMP[0], TMP[1]),
             v_("v_add_u32", vPK, PKB, vPK), v_("v_add_u32", vV, VB, vV)]
    side += pack_atoms(ACC_A, 20, EP, TMP[0], TMP[1])
    side += feature_mfma_atoms(EP)
    side += pack_atoms(ACC_A + 40, 20, EP, TMP[0], TMP[1])
    for c in range(5):
        side.append(n_(mk("ds_write_b128", vV, EP[4 * c:4 * c + 4], mods=f"offset:{16 * c}")))
    POLL, PADDR = V(51 - 46 + 10), V(51 - 46 + 11)
    side += [n_(mk("s_lshl_b32", sT0, sP, 2), mk("s_add_u32", sT0, sT0, sW), mk("s_lshl_b32", sMISC, sT0, 2), mk("s_add_u32", sMISC, sMISC, DBG_Z)),
             v_("v_mov_b32", PADDR, 0),
             n_(mk("buffer_load_dword", POLL, PADDR, DBG, sMISC, mods="offen sc1"))]
    addr, kvblk, post0, post, sKV = kv_atoms(o)
    for hh in range(2):
        side += softmax_atoms(hh)
        if hh == 1:
            side += addr
        for c in range(5):
            side.append(n_(mk("ds_write_b128", vPK, PKD[20 * hh + 4 * c:20 * hh + 4 * c + 4], mods=f"offset:{10240 * hh + 16 * c}")))
    side.append(("blk", lambda p_: p_.stamp("softmax_done")))
    side.append(("blk", poll_block(POLL, PADDR, DBG, sMISC, 1, "X_z")))
    side.append(("blk", kvblk))
    side.append(("blk", lambda p_: p_.stamp("kv_mfma")))
    side += post0
    paced = []
    for a in post:
        paced += [a, ("d", o.get("apace", 2))]
    side += paced
    if o.get("nosm"):
        side = [a for a in side if not (a[0] in ("v", "t") and a[1][0].op in ("v_exp_f32", "v_fma_f32", "v_mul_f32", "v_add_f32", "v_max3_f32", "v_min3_f32"))]
    stream.side.q = interleave(side, phase2_scalars(o)[0], start=o.get("p2start", 150))
    stream.run_pass(1, o["q2x"], stamp_at=o.get("sx1", ()))
    left = [a for a in stream.side.q if a[0] != "d"]
    tail = [a for a in left if a in post]
    emit_atoms(p, [a for a in left if a not in post])
    p.stamp("pass2")
    p.wait_lgkm0()
    p.e("s_barrier")
    G, U = EP[0:8], EP[8:16]
    PA, PB = PKD[40:44], PKD[44:48]
    atoms = glu_atoms(ACC_B, [("pair", 0, L.H_X01), ("pair", 2, L.H_X23), ("lone", 4, L.H_XL)], st, (G, U, PA, PB), tag="HST")
    emit_atoms(p, interleave(atoms, tail))

    def counter(p_):
        p_.wait_tag("KVA")
        p_.e("s_add_u32", sT0, sKV, L.KVC)
        flag_store(p_, V(91), WS, sT0, atomic=True)
    o["x_counter"] = counter
    if o.get("kcpos", -1) < 0:
        counter(p)
    phase2(p, "X", o)


def body_y(p, o, vx):
    st = o["st"]
    u64 = Pass("u64", "U", 4, ACC_A, 160, 10, 8, WU, 3072, sROTU, [V(5 + j) for j in range(5)], [V(16), V(17)], 128)
    q = Pass("q", "q", 3, ACC_B, 192, 12, 12, WQ, 3840, sROTQ, [V(10 + j) for j in range(3)], [V(18)], 0)
    u48 = Pass("u48", "U", 3, ACC_A, 96, 6, 6, WU, 3072, sROTU, [V(13 + j) for j in range(3)], [V(19), V(20)], 80)
    stream = Stream(p, [u64, q, u48], 7, o)
    phr = prologue(p, "Y", [u64, q, u48], stream, o, vx)
    run_first_pass(p, stream, o["q1y"], phr, guard_load(), o.get("sy0", ()))
    p.stamp("pass1")
    G, U = EP[0:8], EP[8:16]
    PA, PB = PKD[16:20], PKD[20:24]
    wa0, wb0, wf0, _ = wt_round_atoms(0, st)
    wa1, wb1, wf1, _ = wt_round_atoms(1, st)
    glu = glu_atoms(ACC_A, [("pair", 0, L.H_Y64A), ("pair", 2, L.H_Y64B)], st, (G, U, PA, PB), tag="HE")

    def early_flag(p_):
        p_.wait_tag("HE")
        pair_flag(p_, L.F_FLE, TMP[1], S(16), S(17))
    stream.side.q = [guard_check("Y_g")] + wa0 + glu + wb0
    stream.run_pass(1, o["q2y"], hooks={o.get("y_wa1", 72): lambda s_: s_.side.q.extend(wa1), o.get("y_ef", 100): lambda s_: s_.side.q.extend([wf0, ("blk", early_flag)]),
                           o.get("y_wb1", 108): lambda s_: s_.side.q.extend(wb1)},
                    stamp_at=o.get("sy1", ()))
    stream.side.flush()
    p.stamp("pass2")
    side = pack_atoms(ACC_B, 20, EP, TMP[0], TMP[1])
    side += feature_mfma_atoms(EP)
    side += softmax_atoms(0)
    side.append(wf1)
    side += softmax_atoms(1)
    stream.side.q = interleave(side, phase2_scalars(o)[0], start=90)
    stream.run_pass(2, o["q3y"], stamp_at=o.get("sy2", ()))
    stream.side.flush()
    p.stamp("pass3")
    p.wait_lgkm0()
    p.e("s_barrier")
    atoms = glu_atoms(ACC_A, [("lone", 0, L.H_YL), ("pair", 1, L.H_Y48)], st, (EP[0:8], EP[8:16], PKD[40:44], PKD[44:48]), tag="HST")
    emit_atoms(p, atoms)
    phase2(p, "Y", o)


def build(**kw):
    global NOPOLL
    o = dict(DEF)
    o.update(kw)
    NOPOLL = o.get("nopoll", ())
    global SLEEP
    SLEEP = o.get("sleep", 1)
    p = Prog()
    p.stamps_on = o["stamps"]
    p.lane_stamps = True
    e = p.e
    p.label("F_start")
    e("s_cmp_ge_u32", S(2), 256)
    e("s_cbranch_scc1", "F_end")
    if o.get("diag"):
        p.raw("s_memrealtime s[90:91]")
    p.stamp("start_rt", real=True)
    p.stamp("start")
    if o.get("cpf", True):
        code_prefetch(p, "F_start")
    e("s_load_dwordx8", S(4, 8), S(0, 2), 0)
    e("s_load_dwordx4", S(12, 4), S(0, 2), 40)
    e("s_load_dwordx2", WDP, S(0, 2), 56)
    e("s_load_dwordx2", OUTP, S(0, 2), 64)
    e("s_load_dwordx4", S(16, 4), S(0, 2), 72)
    e("v_and_b32", lane, 63, V(0))
    e("v_lshrrev_b32", V(5), 6, V(0))
    e("v_lshlrev_b32", l16, 4, lane)
    e("v_readfirstlane_b32", sW, V(5))
    e("v_lshlrev_b32", l8, 3, lane)
    e("v_lshlrev_b32", l4, 2, lane)
    e("s_and_b32", sT0, S(2), 7)
    e("s_lshr_b32", sT1, S(2), 3)
    e("s_and_b32", sRB, sT0, 1)
    e("s_lshl_b32", sRB, sRB, 3)
    e("s_and_b32", sT2, sT1, 7)
    e("s_add_u32", sRB, sRB, sT2)
    e("s_lshr_b32", sT0, sT0, 1)
    e("s_lshl_b32", sT0, sT0, 2)
    e("s_lshr_b32", sT1, sT1, 3)
    e("s_add_u32", sT0, sT0, sT1)
    e("s_lshr_b32", sP, sT0, 1)
    e("s_and_b32", sMISC, sT0, 1)
    if o["rot"]:
        e("s_mul_i32", sT1, sT1, 3)
        e("s_add_u32", sROT, sT1, sT2)
        e("s_cmp_ge_u32", sROT, 10)
        e("s_cselect_b32", sT1, 10, 0)
        e("s_sub_u32", sROT, sROT, sT1)
    else:
        e("s_mov_b32", sROT, 0)
    e("s_mul_i32", sROTQ, sROT, 64 * 3840)
    e("s_mul_i32", sROTU, sROT, 64 * 3072)
    e("s_mov_b32", sMASK, 0xFFFF0000)
    e("s_mov_b32", sL2E, LOG2E)
    vx = prologue_lane(p)
    p.wait_smem()
    extra = 1024 * 256 if o["stamps"] else 0
    srd(p, XS, S(4, 2), 2048 * 640 * 2)
    srd(p, WQ, S(6, 2), 640 * 1920 * 2)
    srd(p, PH, S(8, 2), 32 * 400 * 2)
    srd(p, WS, S(18, 2), L.F_END + extra)
    srd(p, DBG, S(16, 2), 256)
    e("s_cmp_ge_u32", sW, 2)
    e("s_cselect_b32", WU[0], S(14), S(12))
    e("s_cselect_b32", WU[1], S(15), S(13))
    e("s_mov_b32", WU[2], 640 * 1536 * 2)
    e("s_mov_b32", WU[3], 0x20000)
    e("s_lshl_b32", sT0, sRB, 3)
    e("s_lshl_b32", sT1, sW, 1)
    e("s_add_u32", sT0, sT0, sT1)
    e("s_lshl_b32", sT0, sT0, 3)
    e("s_add_u32", sT0, sT0, sP)
    e("s_mul_i32", sHB, sT0, 6144)
    if L.F_HB:
        e("s_add_u32", sHB, sHB, L.F_HB)
    e("s_cmp_eq_u32", sMISC, 1)
    e("s_cbranch_scc1", "F_Y")
    p.fork_save()
    names0 = list(getattr(p, "stamp_names", []))

    def dump():
        if o.get("diag"):
            p.raw("s_memrealtime s[92:93]")
            p.wait_smem()
            e("s_mov_b64", "exec", 1)
            e("s_not_b32", sT0, S(90))
            e("v_mov_b32", V(8), sT0)
            e("buffer_atomic_umax", V(8), "off", DBG, 0, mods="offset:4")
            e("v_mov_b32", V(9), S(92))
            e("buffer_atomic_umax", V(9), "off", DBG, 0, mods="offset:8")
            e("s_sub_u32", sT0, S(92), S(90))
            e("v_mov_b32", V(10), sT0)
            e("buffer_atomic_umax", V(10), "off", DBG, 0, mods="offset:12")
            e("v_mov_b32", V(11), S(90))
            e("buffer_atomic_umax", V(11), "off", DBG, 0, mods="offset:16")
            p.wait_vm0()
            e("s_mov_b64", "exec", -1)
        if o["stamps"]:
            p.stamp("end_rt", real=True)
            e("s_lshl_b32", sT0, S(2), 2)
            e("s_add_u32", sT0, sT0, sW)
            e("s_lshl_b32", sT0, sT0, 8)
            e("s_add_u32", sT0, sT0, L.F_END)
            p.dump_stamps(WS, sT0, l4)
    body_x(p, o, vx)
    dump()
    p.names_x = list(getattr(p, "stamp_names", []))
    e("s_endpgm")
    p.label("F_Y")
    p.fork_restore()
    if o["stamps"]:
        p.stamp_names = list(names0)
    body_y(p, o, vx)
    dump()
    p.names_y = list(getattr(p, "stamp_names", []))
    p.label("F_end")
    e("s_endpgm")
    p.label("F_codeend")
    return p
```
